```python
import torch

def _softmax(x, axis=-1):
    return torch.softmax(x, dim=axis)
def _gelu(x):
    return torch.nn.functional.gelu(x, approximate="tanh")
def _silu(x):
    return torch.nn.functional.silu(x)
def _sigmoid(x):
    return torch.sigmoid(x)
def _layernorm(x, axis=-1, eps=1e-5):
    m = x.mean(dim=axis, keepdim=True)
    v = x.var(dim=axis, keepdim=True, unbiased=False)
    return (x - m) / torch.sqrt(v + eps)
def _scatter_add(tgt, idx, src, axis=0):
    return tgt.clone().index_add_(axis, idx, src)
def _segment_sum(src, seg, n):
    out = torch.zeros((n,) + src.shape[1:], dtype=src.dtype)
    return out.index_add_(0, seg, src)
def _pad(x, pw):
    flat = tuple(v for pair in reversed(pw) for v in pair)
    return torch.nn.functional.pad(x, flat)

kernel_name = 'gated_mix__ssm_conv_h3__glu_gated_swiglu__prompt'

def setup_inputs():

    _w = (lambda a: (lambda t: t.to(torch.bfloat16) if t.is_floating_point() else t)(torch.as_tensor(a)))
    def _A_setup():
        B, S, D = 1, 2048, 576
        ks = 4
        return {
            "q": _w((lambda *s: torch.randn(*s, dtype=torch.bfloat16) * 0.05)(B, S, D)),
            "k": _w((lambda *s: torch.randn(*s, dtype=torch.bfloat16) * 0.05)(B, S, D)),
            "v": _w((lambda *s: torch.randn(*s, dtype=torch.bfloat16) * 0.05)(B, S, D)),
            "shift_k": _w((lambda *s: torch.randn(*s, dtype=torch.bfloat16) * 0.05)(D, ks) * 0.5),
            "ssm_k": _w((lambda *s: torch.randn(*s, dtype=torch.bfloat16) * 0.05)(D, S) * (1.0 / S ** 0.5)),
            "ssm_D": _w((lambda *s: torch.randn(*s, dtype=torch.bfloat16) * 0.05)(D)),
        }
    _A_in = _A_setup()

    def _B_setup():
        B, S, D, F = 1, 2048, 576, 4608
        return {
            "x": _w((lambda *s: torch.randn(*s, dtype=torch.bfloat16) * 0.05)(B, S, D)),
            "w1": _w((lambda *s: torch.randn(*s, dtype=torch.bfloat16) * 0.05)(D, F) * (2.0 / D) ** 0.5),
            "w3": _w((lambda *s: torch.randn(*s, dtype=torch.bfloat16) * 0.05)(D, F) * (2.0 / D) ** 0.5),
            "w2": _w((lambda *s: torch.randn(*s, dtype=torch.bfloat16) * 0.05)(F, D) * (2.0 / F) ** 0.5),
        }
    _B_in = _B_setup()

    return {
        "A_q": _A_in["q"],
        "A_k": _A_in["k"],
        "A_v": _A_in["v"],
        "A_shift_k": _A_in["shift_k"],
        "A_ssm_k": _A_in["ssm_k"],
        "A_ssm_D": _A_in["ssm_D"],
        "B_x": _B_in["x"],
        "B_w1": _B_in["w1"],
        "B_w3": _B_in["w3"],
        "B_w2": _B_in["w2"],
        "gate_w": _w((lambda *s: torch.randn(*s, dtype=torch.bfloat16) * 0.05)(576) * 16.0),
    }

def reference(A_q, A_k, A_v, A_shift_k, A_ssm_k, A_ssm_D, B_x, B_w1, B_w3, B_w2, gate_w):
    def _A_ref(q, k, v, shift_k, ssm_k, ssm_D):
        B, S, D = q.shape
        ks = shift_k.shape[-1]
        k_pad = _pad(k, ((0, 0), (ks - 1, 0), (0, 0)))
        k_shift = torch.zeros_like(k)
        for t in range(ks):
            k_shift = k_shift + k_pad[:, t:t + S, :] * shift_k[:, ks - 1 - t][None, None, :]
        kv = k_shift * v
        L = 2 * S
        kv_pad = _pad(kv, ((0, 0), (0, S), (0, 0)))
        kf_pad = _pad(ssm_k, ((0, 0), (0, S)))
        kv_f = (lambda x, axes=(-2,-1): torch.fft.rfft2(x.float(), dim=axes))(kv_pad[:, None, :, :], axes=(1, 2))
        kf_f = (lambda x, axes=(-2,-1): torch.fft.rfft2(x.float(), dim=axes))(kf_pad[:, None, :], axes=(1, 2))
        kf_f = (lambda x, *d: x.permute(*d))(kf_f, 1, 2, 0)
        y_f = kv_f * kf_f[None, :, :, :]
        y = (lambda x, s, axes=(-2,-1): torch.fft.irfft2(x, s=s, dim=axes).to(torch.bfloat16))(y_f, (1, L), axes=(1, 2))[:, 0, :S, :]
        y = y + kv * ssm_D[None, None, :]
        return q * y

    def _B_ref(x, w1, w3, w2):
        gate = torch.einsum("bsd,df->bsf", x, w1)
        up = torch.einsum("bsd,df->bsf", x, w3)
        h = _silu(gate) * up
        out = torch.einsum("bsf,fd->bsd", h, w2)
        return out

    x = A_q
    g = _sigmoid((x * gate_w).sum(-1, keepdims=True))
    a = _A_ref(x, A_k, A_v, A_shift_k, A_ssm_k, A_ssm_D)
    b = _B_ref(x, B_w1, B_w3, B_w2)
    return g * a + (1 - g) * b
```

```python
class Asm:
    def __init__(self):
        self.lines = []
    def __call__(self, s):
        self.lines.append("    " + s)
    def label(self, s):
        self.lines.append(s + ":")
    def raw(self, s):
        self.lines.append(s)
    def text(self):
        return "\n".join(self.lines) + "\n"

def kernel_header(a, name):
    a.raw(".text")
    a.raw(f".globl {name}")
    a.raw(".p2align 8")
    a.raw(f".type {name},@function")
    a.label(name)

def kernel_desc(a, name, vgpr, sgpr, accum=None):
    if accum is None:
        accum = (vgpr + 3) // 4 * 4
    a.raw('.section .rodata,"a"')
    a.raw(".p2align 6")
    a.raw(f".amdhsa_kernel {name}")
    a.raw(f"  .amdhsa_next_free_vgpr {vgpr}")
    a.raw(f"  .amdhsa_next_free_sgpr {sgpr}")
    a.raw(f"  .amdhsa_accum_offset {accum}")
    a.raw("  .amdhsa_group_segment_fixed_size 0")
    a.raw("  .amdhsa_kernarg_size 112")
    a.raw("  .amdhsa_user_sgpr_count 2")
    a.raw("  .amdhsa_user_sgpr_kernarg_segment_ptr 1")
    a.raw("  .amdhsa_system_sgpr_workgroup_id_x 1")
    a.raw("  .amdhsa_float_denorm_mode_32 3")
    a.raw("  .amdhsa_float_denorm_mode_16_64 3")
    a.raw(".end_amdhsa_kernel")

def srd(a, d, base_lo, base_hi, nbytes):
    a(f"s_mov_b32 s{d}, s{base_lo}")
    a(f"s_and_b32 s{d+1}, s{base_hi}, 0xffff")
    a(f"s_mov_b32 s{d+2}, {nbytes}")
    a(f"s_mov_b32 s{d+3}, 0x00020000")

def vr(lo, n):
    return f"v[{lo}:{lo+n-1}]" if n > 1 else f"v{lo}"

KA = dict(q=0, k=8, v=16, shift_k=24, ssm_k=32, ssm_D=40, x=48, w1=56, w3=64, w2=72, gate_w=80, out=88, dbg=96, ws=104)
WS_H = 0
H_BYTES = 2048 * 4608 * 2
WS_P = 0x1400000
P_BYTES = 5 * 2048 * 576 * 4
WS_KVT = 0x3000000
```

```python
from gen_common import *

STAGE = 34816
NSTG = 4
NSTEP = 18

def gemm1(a, name="gemm1_kernel", do_mfma=True, do_dma=True, do_reads=True, do_epi=True, stamp=False):
    kernel_header(a, name)
    a("s_cmp_ge_u32 s2, 256")
    a(f"s_cbranch_scc1 {name}_done")
    if stamp:
        a("s_memtime s[50:51]")
        a("s_memrealtime s[52:53]")
        a(f"s_load_dwordx2 s[62:63], s[0:1], {KA['dbg']}")
    a(f"s_load_dwordx2 s[4:5], s[0:1], {KA['q']}")
    a(f"s_load_dwordx4 s[24:27], s[0:1], {KA['w1']}")
    a(f"s_load_dwordx2 s[6:7], s[0:1], {KA['ws']}")
    a("v_lshrrev_b32 v1, 6, v0")
    a("v_and_b32 v2, 63, v0")
    a("v_readfirstlane_b32 s22, v1")
    a("s_and_b32 s28, s2, 7")
    a("s_lshr_b32 s29, s2, 3")
    a("s_and_b32 s30, s29, 3")
    a("s_lshl_b32 s28, s28, 2")
    a("s_add_u32 s30, s30, s28")
    a("s_lshr_b32 s31, s29, 2")
    a("s_and_b32 s32, s22, 3")
    a("s_lshr_b32 s33, s22, 2")
    a("v_lshrrev_b32 v3, 4, v2")
    a("v_and_b32 v4, 15, v2")
    a("v_sub_u32 v5, 0, v3")
    a("v_and_b32 v5, 3, v5")
    a("v_and_b32 v6, 3, v2")
    a("v_xor_b32 v6, v6, v5")
    a("v_lshrrev_b32 v7, 2, v2")
    a("s_lshl_b32 s34, s31, 8")
    a("s_lshl_b32 s35, s22, 5")
    a("s_add_u32 s34, s34, s35")
    a("v_add_u32 v7, s34, v7")
    a("s_movk_i32 s35, 1152")
    a("v_mul_lo_u32 v7, v7, s35")
    a("v_lshl_add_u32 v8, v6, 4, v7")
    a("v_add_u32 v9, 18432, v8")
    a("s_mul_i32 s36, s30, 288")
    a("s_movk_i32 s37, 3641")
    a("s_movk_i32 s38, 9216")
    for j in range(3):
        d = 10 + j
        a(f"v_add_u32 v5, {64*j}, v2")
        a("v_mul_lo_u32 v6, v5, s37")
        a("v_lshrrev_b32 v6, 16, v6")
        a("v_mul_u32_u24 v7, 18, v6")
        a("v_sub_u32 v7, v5, v7")
        a("s_lshl_b32 s39, s32, 3")
        a("v_add_u32 v6, s39, v6")
        a("v_and_b32 v13, 0x13, v6")
        a("v_and_b32 v14, 8, v6")
        a("v_lshrrev_b32 v14, 1, v14")
        a("v_or_b32 v13, v13, v14")
        a("v_and_b32 v14, 4, v6")
        a("v_lshlrev_b32 v14, 1, v14")
        a("v_or_b32 v13, v13, v14")
        a("v_mul_lo_u32 v13, v13, s38")
        a("v_lshl_add_u32 v13, v7, 4, v13")
        a(f"v_add_u32 v{d}, s36, v13")
    a("v_lshrrev_b32 v5, 2, v4")
    a("v_sub_u32 v5, 0, v5")
    a("v_and_b32 v5, 3, v5")
    a("v_xor_b32 v6, v3, v5")
    a("s_lshl_b32 s39, s32, 12")
    a("v_lshlrev_b32 v7, 6, v4")
    a("v_lshl_add_u32 v7, v6, 4, v7")
    a("v_add_u32 v13, s39, v7")
    a(f"v_add_u32 v14, {2*STAGE}, v13")
    a("v_lshrrev_b32 v5, 1, v3")
    a("v_lshlrev_b32 v5, 4, v5")
    a("v_and_b32 v6, 1, v3")
    a("v_lshl_add_u32 v5, v6, 2, v5")
    a("v_lshrrev_b32 v6, 2, v4")
    a("v_add_u32 v5, v5, v6")
    a("v_mul_u32_u24 v5, 288, v5")
    a("v_and_b32 v6, 3, v2")
    a("v_lshl_add_u32 v5, v6, 3, v5")
    a("v_add_u32 v15, 16384, v5")
    a(f"v_add_u32 v1, {2*STAGE}, v15")
    a("s_waitcnt lgkmcnt(0)")
    srd(a, 8, 4, 5, 2048*1152)
    a("s_cmp_eq_u32 s33, 0")
    a("s_cselect_b32 s12, s24, s26")
    a("s_cselect_b32 s13, s25, s27")
    a("s_and_b32 s13, s13, 0xffff")
    a(f"s_mov_b32 s14, {576*9216}")
    a("s_mov_b32 s15, 0x00020000")
    srd(a, 16, 6, 7, H_BYTES)
    a("s_lshl_b32 s40, s22, 11")
    a("s_mul_i32 s41, s22, 2304")
    a("s_add_u32 s41, s41, 16384")
    a("s_mov_b32 s20, 0")
    a("s_mov_b32 s21, 0")

    def dma_piece(stage, i):
        if not do_dma: return
        b = (stage % NSTG) * STAGE
        if i < 2:
            a(f"s_add_u32 m0, s40, {b + i*1024}")
            a("s_nop 0")
            a(f"buffer_load_dwordx4 v{8+i}, s[8:11], s20 offen lds")
        else:
            j = i - 2
            a(f"s_add_u32 m0, s41, {b + j*1024}")
            if j == 2:
                a("s_mov_b64 exec, 0xffff")
            else:
                a("s_nop 0")
            a(f"buffer_load_dwordx4 v{10+j}, s[12:15], s21 offen lds")
            if j == 2:
                a("s_mov_b64 exec, -1")
                a("s_add_u32 s20, s20, 64")
                a(f"s_add_u32 s21, s21, {32*9216}")

    for st in range(NSTG):
        for i in range(5):
            dma_piece(st, i)

    a("s_cmp_eq_u32 s33, 0")
    a(f"s_cbranch_scc0 {name}_light")

    def body(tag, tiles):
        NT = len(tiles)
        NB = 2 * NT
        NSLOT = NB + 2
        ACC = 256 - NB * 16
        SLOT = 48
        ASET = 16
        def acc(n, mi): return ACC + (n * 4 + mi) * 4
        def slot(s): return SLOT + (s % NSLOT) * 4
        def aset(t, mi): return ASET + (t & 1) * 16 + mi * 4
        def readB(t, n):
            if not do_reads: return
            b = (t % NSTG)
            base = "v15" if b < 2 else "v1"
            off = (b & 1) * STAGE + (n & 1) * 9216 + tiles[n >> 1] * 32
            s = slot(NB * t + n)
            a(f"ds_read_b64_tr_b16 {vr(s,2)}, {base} offset:{off}")
            a(f"ds_read_b64_tr_b16 {vr(s+2,2)}, {base} offset:{off + 2304}")
        def readA(t, mi):
            if not do_reads: return
            b = (t % NSTG)
            base = "v13" if b < 2 else "v14"
            off = (b & 1) * STAGE + mi * 1024
            a(f"ds_read_b128 {vr(aset(t,mi),4)}, {base} offset:{off}")
        if do_dma: a("s_waitcnt vmcnt(15)")
        a("s_barrier")
        for mi in range(4): readA(0, mi)
        for n in range(NB): readB(0, n)
        a("s_waitcnt vmcnt(10) lgkmcnt(0)" if do_dma else "s_waitcnt lgkmcnt(0)")
        a("s_barrier")
        for t in range(NSTEP):
            nxt = t + 1 < NSTEP
            if nxt:
                readB(t + 1, 0); readB(t + 1, 1)
            for n in range(NB):
                if do_mfma:
                    for mi in range(4):
                        c = "0" if t == 0 else vr(acc(n, mi), 4)
                        a(f"v_mfma_f32_16x16x32_bf16 {vr(acc(n,mi),4)}, {vr(slot(NB*t+n),4)}, {vr(aset(t,mi),4)}, {c}")
                if nxt and n + 2 < NB: readB(t + 1, n + 2)
                if nxt and n < 4: readA(t + 1, n)
                if t + 4 < NSTEP and n < 5: dma_piece(t + 4, n)
            if t + 2 < NSTEP:
                later = min(NSTEP - 1, t + 4) - (t + 2)
                if do_dma:
                    a(f"s_waitcnt vmcnt({5*later}) lgkmcnt(0)")
                else:
                    a("s_waitcnt lgkmcnt(0)")
                a("s_barrier")
            elif nxt:
                a("s_waitcnt lgkmcnt(0)")
        if stamp:
            a("s_memtime s[54:55]")
            a("s_memrealtime s[56:57]")
        a("s_nop 7")
        a("s_nop 3")
        if do_epi:
            a("v_lshrrev_b32 v5, 2, v4")
            a("v_sub_u32 v5, 0, v5")
            a("v_and_b32 v5, 3, v5")
            a("v_lshrrev_b32 v6, 1, v3")
            a("v_xor_b32 v6, v6, v5")
            a("v_and_b32 v7, 1, v3")
            a("v_lshl_add_u32 v7, v7, 4, v4")
            a("v_lshlrev_b32 v7, 6, v7")
            a("v_lshl_add_u32 v7, v6, 4, v7")
            a("s_and_b32 s39, s32, 1")
            a("s_lshl_b32 s39, s39, 12")
            a("v_add_u32 v7, s39, v7")
            a("s_mul_i32 s42, s30, 9")
            a(f"s_add_u32 s42, s42, {tiles[0]}")
            a("s_and_b32 s43, s42, 1")
            a("s_lshl_b32 s43, s43, 5")
            a("v_xor_b32 v8, s43, v7")
            a("v_xor_b32 v9, 32, v8")
            a("s_lshl_b32 s44, s31, 1")
            a("s_lshr_b32 s45, s32, 1")
            a("s_add_u32 s44, s44, s45")
            a("s_mul_i32 s44, s44, 1179648")
            a("s_mov_b32 s46, 0xbfb8aa3b")
            T = 16
            for j in range(NT):
                a(f"s_add_u32 s45, s42, {j}")
                a("s_lshr_b32 s45, s45, 1")
                a("s_lshl_b32 s45, s45, 13")
                a("s_add_u32 s45, s45, s44")
                for pair in range(2):
                    q = 48 + ((j * 2 + pair) % 4) * 4
                    for half in range(2):
                        mi = pair * 2 + half
                        G = acc(2 * j, mi); U = acc(2 * j + 1, mi)
                        tb = T + half * 8
                        for r in range(4): a(f"v_mul_f32 v{tb+r}, s46, v{G+r}")
                        for r in range(4): a(f"v_exp_f32 v{tb+r}, v{tb+r}")
                        for r in range(4): a(f"v_mul_f32 v{tb+4+r}, v{G+r}, v{U+r}")
                        for r in range(4): a(f"v_add_f32 v{tb+r}, 1.0, v{tb+r}")
                        for r in range(4): a(f"v_rcp_f32 v{tb+r}, v{tb+r}")
                        a("s_nop 0")
                        for r in range(4): a(f"v_mul_f32 v{tb+4+r}, v{tb+4+r}, v{tb+r}")
                        a(f"v_cvt_pk_bf16_f32 v{q+half*2}, v{tb+4}, v{tb+5}")
                        a(f"v_cvt_pk_bf16_f32 v{q+half*2+1}, v{tb+6}, v{tb+7}")
                    a("s_nop 1")
                    a(f"v_permlane16_swap_b32 v{q}, v{q+2}")
                    a(f"v_permlane16_swap_b32 v{q+1}, v{q+3}")
                    a("s_nop 0")
                    a(f"buffer_store_dwordx4 {vr(q,4)}, v{8 + (j & 1)}, s[16:19], s45 offen offset:{pair*2048}")
        if stamp:
            a("s_waitcnt vmcnt(0)")
            a("s_memtime s[58:59]")
            a("s_memrealtime s[60:61]")
            a("s_waitcnt lgkmcnt(0)")
            a("s_cmp_eq_u32 s2, 77")
            a(f"s_cbranch_scc0 {name}_done")
            a("s_sub_u32 s54, s54, s50")
            a("s_sub_u32 s56, s56, s52")
            a("s_sub_u32 s58, s58, s50")
            a("s_sub_u32 s60, s60, s52")
            a("v_mov_b32 v20, s54")
            a("v_mov_b32 v21, s56")
            a("v_mov_b32 v22, s58")
            a("v_mov_b32 v23, s60")
            a("s_lshl_b32 s50, s22, 4")
            a("v_mov_b32 v24, s50")
            a("s_mov_b64 exec, 1")
            a("global_store_dwordx4 v24, v[20:23], s[62:63]")
        a("s_endpgm")
    body("heavy", [0, 1, 2, 3, 4])
    a.label(f"{name}_light")
    body("light", [5, 6, 7, 8])
    a.label(f"{name}_done")
    a("s_endpgm")
    kernel_desc(a, name, 256, 64)

if __name__ == "__main__":
    import sys
    opts = sys.argv[2:]
    a = Asm()
    a.raw(f"; @launch kernel=gemm1_kernel grid=(256,1,1) block=(512,1,1) lds={NSTG*STAGE}")
    a.raw('.amdgcn_target "amdgcn-amd-amdhsa--gfx950"')
    gemm1(a, do_mfma="nomfma" not in opts, do_dma="nodma" not in opts, do_reads="noreads" not in opts, do_epi="noepi" not in opts, stamp="stamp" in opts)
    open(sys.argv[1], "w").write(a.text())
```

```python
from gen_common import *

G2_STAGE = 40960
G2_NST = 15
G2_STARTS = [0, 15, 30, 44, 58]
G2_ENDS = [15, 30, 44, 58, 72]

def gemm2(a, name="gemm2_kernel", NSTG=4, stamp=False, do_store=True):
    kernel_header(a, name)
    a("s_cmp_ge_u32 s2, 240")
    a(f"s_cbranch_scc1 {name}_done")
    if stamp:
        a("s_memtime s[50:51]")
        a("s_memrealtime s[52:53]")
        a(f"s_load_dwordx2 s[62:63], s[0:1], {KA['dbg']}")
    a(f"s_load_dwordx2 s[4:5], s[0:1], {KA['w2']}")
    a(f"s_load_dwordx2 s[6:7], s[0:1], {KA['ws']}")
    a("v_lshrrev_b32 v1, 6, v0")
    a("v_and_b32 v2, 63, v0")
    a("v_readfirstlane_b32 s22, v1")
    a("s_and_b32 s28, s2, 7")
    a("s_lshr_b32 s29, s2, 3")
    a("s_mul_i32 s28, s28, 30")
    a("s_add_u32 s28, s28, s29")
    a("s_mul_i32 s29, s28, 1366")
    a("s_lshr_b32 s30, s29, 16")
    a("s_mul_i32 s29, s30, 48")
    a("s_sub_u32 s28, s28, s29")
    a("s_mul_i32 s29, s28, 21846")
    a("s_lshr_b32 s31, s29, 16")
    a("s_mul_i32 s29, s31, 3")
    a("s_sub_u32 s34, s28, s29")
    a("s_and_b32 s32, s22, 1")
    a("s_lshr_b32 s33, s22, 1")
    a("s_mul_i32 s35, s30, 15")
    a("s_sub_u32 s36, s30, 2")
    a("s_max_i32 s36, s36, 0")
    a("s_sub_u32 s35, s35, s36")
    a("s_cmp_lt_u32 s30, 2")
    a("s_cselect_b32 s36, 15, 14")
    a("s_add_u32 s36, s36, s35")
    a("v_lshrrev_b32 v3, 4, v2")
    a("v_and_b32 v4, 15, v2")
    a("v_lshlrev_b32 v8, 4, v2")
    a("s_lshl_b32 s37, s22, 12")
    a("v_add_u32 v8, s37, v8")
    a("s_mul_i32 s37, s22, 384")
    a("s_movk_i32 s38, 2731")
    a("s_movk_i32 s39, 1152")
    a("s_mul_i32 s40, s34, 384")
    for j in range(6):
        d = 10 + j
        a(f"v_add_u32 v5, {64*j}, v2")
        a("v_add_u32 v5, s37, v5")
        a("v_mul_lo_u32 v6, v5, s38")
        a("v_lshrrev_b32 v6, 16, v6")
        a("v_mul_u32_u24 v7, 24, v6")
        a("v_sub_u32 v7, v5, v7")
        a("v_bfe_u32 v16, v6, 1, 1")
        a("v_bfe_u32 v17, v6, 3, 1")
        a("v_lshl_add_u32 v16, v17, 1, v16")
        a("v_lshlrev_b32 v16, 1, v16")
        a("v_xor_b32 v7, v7, v16")
        a("v_mul_lo_u32 v6, v6, s39")
        a("v_lshl_add_u32 v6, v7, 4, v6")
        a("v_add_u32 v6, s40, v6")
        a(f"v_subrev_u32 v{d}, {1024*(j%3)}, v6")
    a("v_lshrrev_b32 v5, 2, v4")
    a("v_sub_u32 v5, 0, v5")
    a("v_and_b32 v5, 3, v5")
    a("v_xor_b32 v6, v3, v5")
    a("s_lshl_b32 s41, s32, 12")
    a("v_lshlrev_b32 v7, 6, v4")
    a("v_lshl_add_u32 v7, v6, 4, v7")
    a("v_add_u32 v16, s41, v7")
    for b in range(1, NSTG):
        a(f"v_add_u32 v{16+b}, {b*G2_STAGE}, v16")
    a("v_lshrrev_b32 v5, 2, v4")
    a("v_lshl_add_u32 v6, v3, 3, v5")
    a("v_mul_u32_u24 v6, 384, v6")
    a("v_and_b32 v7, 1, v2")
    a("v_lshl_add_u32 v6, v7, 4, v6")
    a("v_add_u32 v6, 16384, v6")
    a("v_lshrrev_b32 v5, 1, v5")
    a("v_and_b32 v7, 1, v3")
    a("v_lshl_add_u32 v5, v7, 1, v5")
    a("v_bfe_u32 v9, v2, 1, 1")
    a("v_xor_b32 v5, v5, v9")
    for jj4 in range(4):
        a("s_mul_i32 s41, s33, 3")
        a(f"s_add_u32 s41, s41, {jj4>>1}")
        a("s_and_b32 s42, s41, 1")
        a("s_lshl_b32 s42, s42, 1")
        a("s_lshr_b32 s41, s41, 1")
        a("s_lshl_b32 s41, s41, 7")
        a("v_xor_b32 v7, s42, v5")
        a("v_lshl_add_u32 v7, v7, 5, v6")
        a(f"v_xor_b32 v36, {jj4&1}, v9")
        a("v_lshl_add_u32 v7, v36, 3, v7")
        a(f"v_add_u32 v{20+jj4}, s41, v7")
        for b in range(1, NSTG):
            a(f"v_add_u32 v{20+4*b+jj4}, {b*G2_STAGE}, v{20+jj4}")
    a("s_waitcnt lgkmcnt(0)")
    a("s_mov_b32 s8, s4")
    a("s_and_b32 s9, s5, 0xffff")
    a(f"s_mul_i32 s10, s36, {64*1152}")
    a("s_mov_b32 s11, 0x00020000")
    srd(a, 12, 6, 7, H_BYTES)
    a(f"s_add_u32 s16, s6, {WS_P}")
    a("s_addc_u32 s17, s7, 0")
    a("s_and_b32 s17, s17, 0xffff")
    a(f"s_mov_b32 s18, {5*2048*576*4}")
    a("s_mov_b32 s19, 0x00020000")
    a("s_mul_i32 s20, s31, 1179648")
    a("s_lshl_b32 s41, s35, 14")
    a("s_add_u32 s20, s20, s41")
    a(f"s_mul_i32 s21, s35, {64*1152}")
    a("s_lshl_b32 s43, s22, 12")
    a("s_mul_i32 s44, s22, 6144")
    a("s_add_u32 s44, s44, 16384")

    def dma_ops(stage):
        b = (stage % NSTG) * G2_STAGE
        ops = []
        ops.append([f"s_add_u32 m0, s43, {b}", "s_nop 0", "buffer_load_dwordx4 v8, s[12:15], s20 offen lds"])
        for j in range(1, 4):
            ops.append([f"buffer_load_dwordx4 v8, s[12:15], s20 offen offset:{1024*j} lds"])
        for hh in range(2):
            for j in range(3):
                o = []
                if j == 0:
                    o = [f"s_add_u32 m0, s44, {b + hh*3072}", "s_nop 0"]
                off = f" offset:{1024*j}" if j else ""
                o.append(f"buffer_load_dwordx4 v{10+hh*3+j}, s[8:11], s21 offen{off} lds")
                ops.append(o)
        ops[-1] += ["s_add_u32 s20, s20, 16384", f"s_add_u32 s21, s21, {64*1152}"]
        return ops

    for st in range(NSTG):
        for o in dma_ops(st):
            for x in o: a(x)

    FR = 40
    ACC = 128
    def acc(mi, j): return ACC + (mi * 6 + j) * 4
    def fa(t, mi): return FR + (t & 1) * 40 + mi * 4
    def fb(t, j): return FR + (t & 1) * 40 + 16 + j * 4
    def read_ops(t):
        st = t >> 1; b = st % NSTG; tt = t & 1
        ops = []
        for mi in range(4):
            ops.append(f"ds_read_b128 {vr(fa(t,mi),4)}, v{16+b} offset:{tt*8192 + mi*1024}")
        for j in range(6):
            off = tt * 32 * 384 + (j >> 2) * 128
            ops.append(f"ds_read_b64_tr_b16 {vr(fb(t,j),2)}, v{20+4*b+(j&3)} offset:{off}")
            ops.append(f"ds_read_b64_tr_b16 {vr(fb(t,j)+2,2)}, v{20+4*b+(j&3)} offset:{off + 4*384}")
        A = ops[:4]; B = ops[4:]
        return [A[0], B[0], B[1], A[1], A[2], A[3]] + B[2:]
    NT = 2 * G2_NST
    a(f"s_waitcnt vmcnt({10*(NSTG-1)})")
    a("s_barrier")
    for x in read_ops(0): a(x)
    a("s_waitcnt lgkmcnt(0)")
    for t in range(NT):
        st = t >> 1
        side = []
        if t & 1:
            if st + 1 < G2_NST:
                later = min(G2_NST - 1, st + NSTG - 1) - (st + 1)
                a(f"s_waitcnt vmcnt({10*later})")
                a("s_barrier")
        rd = read_ops(t + 1) if t + 1 < NT else []
        dm = []
        if (t & 1) and st + NSTG < G2_NST:
            dm = dma_ops(st + NSTG)
        k = 0
        for j in range(6):
            for mi in range(4):
                c = "0" if t == 0 else vr(acc(mi, j), 4)
                a(f"v_mfma_f32_16x16x32_bf16 {vr(acc(mi,j),4)}, {vr(fb(t,j),4)}, {vr(fa(t,mi),4)}, {c}")
                if rd: a(rd.pop(0))
                if dm and (k & 1):
                    for x in dm.pop(0): a(x)
                k += 1
        assert not rd and not dm
        if t + 1 < NT:
            a("s_waitcnt lgkmcnt(0)")
    if stamp:
        a("s_memtime s[54:55]")
        a("s_memrealtime s[56:57]")
    a("s_nop 7")
    a("s_nop 3")
    if do_store:
        a("s_mul_i32 s45, s30, 128")
        a("s_lshl_b32 s46, s31, 3")
        a("s_add_u32 s45, s45, s46")
        a("s_lshl_b32 s46, s32, 2")
        a("s_add_u32 s45, s45, s46")
        a("s_mul_i32 s45, s45, 36")
        a("s_mul_i32 s46, s34, 12")
        a("s_add_u32 s45, s45, s46")
        a("s_mul_i32 s46, s33, 6")
        a("s_add_u32 s45, s45, s46")
        a("s_lshl_b32 s45, s45, 10")
        a("v_lshlrev_b32 v5, 4, v2")
        a("v_add_u32 v6, 4096, v5")
        for mi in range(4):
            for j in range(6):
                v = "v5" if j < 4 else "v6"
                a(f"buffer_store_dwordx4 {vr(acc(mi,j),4)}, {v}, s[16:19], s45 offen offset:{(j&3)*1024}")
            if mi < 3: a(f"s_add_u32 s45, s45, {36*1024}")
    if stamp:
        a("s_waitcnt vmcnt(0)")
        a("s_memtime s[58:59]")
        a("s_memrealtime s[60:61]")
        a("s_waitcnt lgkmcnt(0)")
        a("s_cmp_eq_u32 s2, 77")
        a(f"s_cbranch_scc0 {name}_done")
        for d, s in ((54, 50), (56, 52), (58, 50), (60, 52)): a(f"s_sub_u32 s{d}, s{d}, s{s}")
        for i, s in enumerate((54, 56, 58, 60)): a(f"v_mov_b32 v{20+i}, s{s}")
        a("s_lshl_b32 s50, s22, 4")
        a("v_mov_b32 v24, s50")
        a("s_mov_b64 exec, 1")
        a("global_store_dwordx4 v24, v[20:23], s[62:63]")
    a.label(f"{name}_done")
    a("s_endpgm")
    kernel_desc(a, name, 224, 64)

if __name__ == "__main__":
    import sys
    from gen_gemm1 import gemm1, NSTG as N1, STAGE as S1
    opts = sys.argv[2:]
    nstg = 3 if "n3" in opts else 4
    a = Asm()
    a.raw(f"; @launch kernel=gemm1_kernel grid=(256,1,1) block=(512,1,1) lds={N1*S1}")
    a.raw(f"; @launch kernel=gemm2_kernel grid=(240,1,1) block=(256,1,1) lds={nstg*G2_STAGE}")
    a.raw('.amdgcn_target "amdgcn-amd-amdhsa--gfx950"')
    gemm1(a)
    gemm2(a, NSTG=nstg, stamp="stamp" in opts)
    open(sys.argv[1], "w").write(a.text())
```

```python
from gen_common import *

WS_XR = 0x3000000
XR_BYTES = 576 * 4096
WS_Z4 = 0x3400000
Z4_BYTES = 144 * 2048 * 8

def round_pair(a, x, y, tmp):
    a(f"v_cvt_pk_bf16_f32 v{tmp}, v{x}, v{y}")
    a(f"v_lshlrev_b32 v{x}, 16, v{tmp}")
    a(f"v_and_b32 v{y}, 0xffff0000, v{tmp}")

def prep(a, name="prep_kernel", exact=True):
    kernel_header(a, name)
    a("s_cmp_ge_u32 s2, 288")
    a(f"s_cbranch_scc1 {name}_done")
    a(f"s_load_dwordx4 s[4:7], s[0:1], {KA['k']}")
    a(f"s_load_dwordx2 s[20:21], s[0:1], {KA['shift_k']}")
    a(f"s_load_dwordx2 s[22:23], s[0:1], {KA['ws']}")
    a("s_mul_i32 s24, s2, 7282")
    a("s_lshr_b32 s24, s24, 16")
    a("s_mul_i32 s25, s24, 9")
    a("s_sub_u32 s25, s2, s25")
    a("v_and_b32 v1, 7, v0")
    a("v_lshrrev_b32 v2, 3, v0")
    a("s_lshl_b32 s26, s24, 6")
    a("v_lshl_add_u32 v3, v2, 1, s26")
    a("s_movk_i32 s27, 1152")
    a("v_mul_lo_u32 v3, v3, s27")
    a("s_lshl_b32 s28, s25, 7")
    a("v_lshl_add_u32 v4, v1, 4, s28")
    a("v_add_u32 v3, v3, v4")
    a("v_subrev_u32 v5, 3456, v3")
    a("v_subrev_u32 v6, 2304, v3")
    a("v_subrev_u32 v7, 1152, v3")
    a("v_lshlrev_b32 v8, 2, v4")
    a("s_waitcnt lgkmcnt(0)")
    srd(a, 8, 4, 5, 2048 * 1152)
    srd(a, 12, 6, 7, 2048 * 1152)
    srd(a, 16, 20, 21, 576 * 8)
    a(f"s_add_u32 s32, s22, {WS_XR}")
    a("s_addc_u32 s33, s23, 0")
    a("s_and_b32 s33, s33, 0xffff")
    a(f"s_mov_b32 s34, {XR_BYTES}")
    a("s_mov_b32 s35, 0x00020000")
    K = 16
    a(f"buffer_load_dwordx4 v[16:19], v5, s[8:11], 0 offen")
    a(f"buffer_load_dwordx4 v[20:23], v6, s[8:11], 0 offen")
    a(f"buffer_load_dwordx4 v[24:27], v7, s[8:11], 0 offen")
    a(f"buffer_load_dwordx4 v[28:31], v3, s[8:11], 0 offen")
    a(f"buffer_load_dwordx4 v[32:35], v3, s[8:11], 0 offen offset:1152")
    a(f"buffer_load_dwordx4 v[36:39], v3, s[12:15], 0 offen")
    a(f"buffer_load_dwordx4 v[40:43], v3, s[12:15], 0 offen offset:1152")
    for i in range(4):
        a(f"buffer_load_dwordx4 v[{44+4*i}:{47+4*i}], v8, s[16:19], 0 offen offset:{16*i}")
    a("v_mul_u32_u24 v9, 1056, v1")
    a("v_sub_u32 v10, 31, v2")
    a("v_lshl_add_u32 v9, v10, 2, v9")
    a("s_waitcnt vmcnt(0)")
    for e in range(8):
        def unpack(dst, src, hi):
            if hi: a(f"v_and_b32 v{dst}, 0xffff0000, v{src}")
            else: a(f"v_lshlrev_b32 v{dst}, 16, v{src}")
        for r in range(5): unpack(64 + r, 16 + 4 * r + (e >> 1), e & 1)
        unpack(69, 36 + (e >> 1), e & 1); unpack(70, 40 + (e >> 1), e & 1)
        unpack(71, 44 + 2 * e, 0); unpack(72, 44 + 2 * e, 1)
        unpack(73, 45 + 2 * e, 0); unpack(74, 45 + 2 * e, 1)
        if exact:
            a("v_mul_f32 v76, v64, v74"); a("v_mul_f32 v77, v65, v74")
            round_pair(a, 76, 77, 75)
            for t in range(1, 4):
                a(f"v_mul_f32 v78, v{64+t}, v{74-t}"); a(f"v_mul_f32 v79, v{65+t}, v{74-t}")
                round_pair(a, 78, 79, 75)
                a("v_add_f32 v76, v76, v78"); a("v_add_f32 v77, v77, v79")
                round_pair(a, 76, 77, 75)
        else:
            a("v_mul_f32 v76, v64, v74"); a("v_mul_f32 v77, v65, v74")
            for t in range(1, 4):
                a(f"v_fmac_f32 v76, v{64+t}, v{74-t}"); a(f"v_fmac_f32 v77, v{65+t}, v{74-t}")
        a("v_mul_f32 v76, v76, v69"); a("v_mul_f32 v77, v77, v70")
        a("v_cvt_pk_bf16_f32 v75, v77, v76")
        a(f"ds_write_b32 v9, v75 offset:{132*e}")
    a("s_waitcnt lgkmcnt(0)")
    a("s_barrier")
    a("v_mul_u32_u24 v9, 132, v2")
    a("v_lshl_add_u32 v9, v1, 4, v9")
    for i in range(2):
        for j in range(2):
            a(f"ds_read2_b32 v[{16+4*i+2*j}:{17+4*i+2*j}], v9 offset0:{(32*33*i + 2*j)%256 if False else 2*j} offset1:{2*j+1}")
        if i == 0: a(f"v_add_u32 v9, {32*132}, v9")
    a("s_lshl_b32 s29, s25, 18")
    a("s_lshl_b32 s30, s26, 1")
    a("s_sub_u32 s30, 3968, s30")
    a("s_add_u32 s29, s29, s30")
    a("v_lshlrev_b32 v10, 12, v2")
    a("v_lshl_add_u32 v10, v1, 4, v10")
    a("v_add_u32 v11, 0x20000, v10")
    a("s_waitcnt lgkmcnt(0)")
    a("buffer_store_dwordx4 v[16:19], v10, s[32:35], s29 offen")
    a("buffer_store_dwordx4 v[20:23], v11, s[32:35], s29 offen")
    a.label(f"{name}_done")
    a("s_endpgm")
    kernel_desc(a, name, 80, 48)

CONV_WLDS = 8768
def conv(a, name="conv_kernel"):
    kernel_header(a, name)
    a("s_cmp_ge_u32 s2, 144")
    a(f"s_cbranch_scc1 {name}_done")
    a(f"s_load_dwordx4 s[4:7], s[0:1], {KA['ssm_k']}")
    a(f"s_load_dwordx2 s[22:23], s[0:1], {KA['ws']}")
    a("v_lshrrev_b32 v1, 6, v0")
    a("v_and_b32 v2, 63, v0")
    a("v_readfirstlane_b32 s24, v1")
    a("v_lshrrev_b32 v3, 4, v2")
    a("v_and_b32 v4, 15, v2")
    a("s_lshl_b32 s25, s2, 2")
    a("s_add_u32 s25, s25, s24")
    a(f"s_mul_i32 s26, s24, {CONV_WLDS}")
    a("s_lshl_b32 s27, s25, 12")
    a("v_lshlrev_b32 v5, 4, v2")
    a("v_mov_b32 v8, 0"); a("v_mov_b32 v9, 0")
    a("v_and_b32 v6, 3, v2")
    a("v_lshl_add_u32 v6, v6, 3, s26")
    a("ds_write_b64 v6, v[8:9]")
    a("v_lshl_add_u32 v6, v2, 3, s26")
    a(f"ds_write_b64 v6, v[8:9] offset:{4160+4096}")
    a("s_waitcnt lgkmcnt(0)")
    srd(a, 8, 4, 5, 576 * 4096)
    a(f"s_add_u32 s12, s22, {WS_XR}")
    a("s_addc_u32 s13, s23, 0")
    a("s_and_b32 s13, s13, 0xffff")
    a(f"s_mov_b32 s14, {XR_BYTES}")
    a("s_mov_b32 s15, 0x00020000")
    a(f"s_add_u32 s16, s22, {WS_Z4}")
    a("s_addc_u32 s17, s23, 0")
    a("s_and_b32 s17, s17, 0xffff")
    a(f"s_mov_b32 s18, {Z4_BYTES}")
    a("s_mov_b32 s19, 0x00020000")
    a("s_add_u32 m0, s26, 32")
    a("s_lshl_b32 s28, s25, 1")
    a("s_and_b32 s28, s28, 0xfffffffc")
    a("s_load_dword s29, s[6:7], s28")
    for i in range(4):
        a(f"buffer_load_dwordx4 v5, s[8:11], s27 offen offset:{1024*i} lds")
    a("s_add_u32 m0, s26, 4160")
    a("s_nop 0")
    for i in range(4):
        a(f"buffer_load_dwordx4 v5, s[12:15], s27 offen offset:{1024*i} lds")
    a("v_lshlrev_b32 v6, 1, v4")
    a("v_lshl_add_u32 v6, v3, 4, v6")
    a("v_add3_u32 v6, v6, s26, 2")
    a("v_lshlrev_b32 v7, 5, v4")
    a("v_lshlrev_b32 v8, 4, v3")
    a("v_sub_u32 v7, v8, v7")
    a(f"s_add_u32 s30, s26, {4160+480}")
    a("v_add_u32 v7, s30, v7")
    a("v_lshlrev_b32 v8, 5, v4")
    a("v_lshl_add_u32 v8, v3, 3, v8")
    a(f"s_add_u32 s30, s26, {4160+504}")
    a("v_sub_u32 v8, s30, v8")
    ACC = 16; FR = 48
    def fa(r, i): return FR + (r & 1) * 64 + i * 4
    def fb(r, i): return FR + (r & 1) * 64 + 32 + i * 4
    def reads(r):
        o = []
        for i in range(8):
            o.append(f"ds_read_b128 {vr(fa(r,i),4)}, v6 offset:{512*i + 64*r}")
            o.append(f"ds_read_b128 {vr(fb(r,i),4)}, v7 offset:{3584 - 512*i + 64*r}")
        return o
    a("s_waitcnt vmcnt(0)")
    for x in reads(0): a(x)
    for r in range(8):
        a("s_waitcnt lgkmcnt(0)")
        rd = reads(r + 1) if r < 7 else []
        first = set()
        pairs = [(aa, nt - aa) for aa in range(8) for nt in range(aa, 8)]
        for (aa, bb) in pairs:
            nt = aa + bb
            c = "0" if (r == 0 and nt not in first) else vr(ACC + 4 * nt, 4)
            first.add(nt)
            a(f"v_mfma_f32_16x16x32_bf16 {vr(ACC+4*nt,4)}, {vr(fa(r,aa),4)}, {vr(fb(r,bb),4)}, {c}")
            if rd: a(rd.pop(0))
    for nt in range(8):
        a(f"ds_read_b64 {vr(FR+2*nt,2)}, v8 offset:{3584 - 512*nt}")
    a("s_and_b32 s28, s25, 1")
    a("s_lshl_b32 s28, s28, 4")
    a("s_waitcnt lgkmcnt(0)")
    a("s_lshr_b32 s29, s29, s28")
    a("s_lshl_b32 s29, s29, 16")
    a("s_nop 7")
    a("v_lshlrev_b32 v9, 5, v4")
    a("v_lshl_add_u32 v9, v3, 3, v9")
    a("v_add_u32 v9, s26, v9")
    T = 80
    for nt in range(8):
        k0 = FR + 2 * nt
        a(f"v_and_b32 v{T+0}, 0xffff0000, v{k0+1}")
        a(f"v_lshlrev_b32 v{T+1}, 16, v{k0+1}")
        a(f"v_and_b32 v{T+2}, 0xffff0000, v{k0}")
        a(f"v_lshlrev_b32 v{T+3}, 16, v{k0}")
        for r in range(4): a(f"v_mul_f32 v{T+r}, s29, v{T+r}")
        round_pair(a, T, T + 1, T + 4); round_pair(a, T + 2, T + 3, T + 4)
        y = ACC + 4 * nt
        round_pair(a, y, y + 1, T + 4); round_pair(a, y + 2, y + 3, T + 4)
        for r in range(4): a(f"v_add_f32 v{T+r}, v{T+r}, v{y+r}")
        a(f"v_cvt_pk_bf16_f32 v{T+6}, v{T}, v{T+1}")
        a(f"v_cvt_pk_bf16_f32 v{T+7}, v{T+2}, v{T+3}")
        a(f"ds_write_b64 v9, {vr(T+6,2)} offset:{512*nt}")
    a("s_waitcnt lgkmcnt(0)")
    a("s_barrier")
    a("v_lshlrev_b32 v9, 2, v0")
    a("v_lshlrev_b32 v10, 4, v0")
    a("s_lshl_b32 s30, s2, 14")
    a("s_mov_b32 s31, 0x05040100")
    a("s_mov_b32 s32, 0x07060302")
    for i in range(4):
        for ch in range(4):
            a(f"ds_read_b32 v{16+4*i+ch}, v9 offset:{ch*CONV_WLDS + 1024*i}")
    for i in range(4):
        a(f"s_waitcnt lgkmcnt({12-4*i})")
        s = 16 + 4 * i; d = 48 + 4 * i
        a(f"v_perm_b32 v{d}, v{s+1}, v{s}, s31")
        a(f"v_perm_b32 v{d+1}, v{s+3}, v{s+2}, s31")
        a(f"v_perm_b32 v{d+2}, v{s+1}, v{s}, s32")
        a(f"v_perm_b32 v{d+3}, v{s+3}, v{s+2}, s32")
        if i: a("v_add_u32 v10, 4096, v10")
        a(f"buffer_store_dwordx4 {vr(d,4)}, v10, s[16:19], s30 offen")
    a.label(f"{name}_done")
    a("s_endpgm")
    kernel_desc(a, name, 176, 48)

def final(a, name="final_kernel", NS=5):
    kernel_header(a, name)
    a("s_cmp_ge_u32 s2, 256")
    a(f"s_cbranch_scc1 {name}_done")
    a(f"s_load_dwordx2 s[4:5], s[0:1], {KA['q']}")
    a(f"s_load_dwordx4 s[20:23], s[0:1], {KA['gate_w']}")
    a(f"s_load_dwordx2 s[6:7], s[0:1], {KA['ws']}")
    a("v_lshrrev_b32 v1, 6, v0")
    a("v_and_b32 v2, 63, v0")
    a("v_readfirstlane_b32 s24, v1")
    a("v_lshrrev_b32 v3, 4, v2")
    a("v_and_b32 v4, 15, v2")
    a("s_lshr_b32 s25, s2, 1")
    a("s_and_b32 s26, s2, 1")
    a("s_mul_i32 s27, s26, 9")
    a("s_add_u32 s27, s27, s24")
    a("s_xor_b32 s28, s26, 1")
    a("s_mul_i32 s28, s28, 9")
    a("s_add_u32 s28, s28, s24")
    a("s_mul_i32 s29, s25, 36")
    a("s_lshl_b32 s30, s27, 1")
    a("s_add_u32 s29, s29, s30")
    a("s_lshl_b32 s29, s29, 10")
    a("v_lshrrev_b32 v5, 1, v3")
    a("v_lshlrev_b32 v6, 4, v2")
    a("v_lshl_add_u32 v6, v5, 10, v6")
    a("v_xor_b32 v7, 1024, v6")
    a("s_lshl_b32 s30, s25, 4")
    a("v_add_u32 v8, s30, v4")
    a("v_mul_u32_u24 v9, 1152, v8")
    a("v_lshl_add_u32 v9, v3, 4, v9")
    a("s_lshl_b32 s31, s27, 6")
    a("s_lshl_b32 s32, s28, 6")
    a("v_lshlrev_b32 v10, 4, v3")
    a("v_lshlrev_b32 v11, 15, v3")
    a("v_lshl_add_u32 v11, v8, 3, v11")
    a("v_add_u32 v12, 16384, v11")
    a("s_lshl_b32 s33, s27, 17")
    a("s_waitcnt lgkmcnt(0)")
    srd(a, 8, 4, 5, 2048 * 1152)
    srd(a, 12, 20, 21, 1152)
    srd(a, 16, 22, 23, 2048 * 1152)
    a(f"s_add_u32 s36, s6, {WS_P}")
    a("s_addc_u32 s37, s7, 0")
    a("s_and_b32 s37, s37, 0xffff")
    a(f"s_mov_b32 s38, {NS*2048*576*4}")
    a("s_mov_b32 s39, 0x00020000")
    a(f"s_add_u32 s40, s6, {WS_Z4}")
    a("s_addc_u32 s41, s7, 0")
    a("s_and_b32 s41, s41, 0xffff")
    a(f"s_mov_b32 s42, {Z4_BYTES}")
    a("s_mov_b32 s43, 0x00020000")
    a("buffer_load_dwordx4 v[16:19], v9, s[8:11], s31 offen")
    a("buffer_load_dwordx4 v[20:23], v9, s[8:11], s32 offen")
    a("buffer_load_dwordx4 v[24:27], v10, s[12:15], s31 offen")
    a("buffer_load_dwordx4 v[28:31], v10, s[12:15], s32 offen")
    PB = 48
    for ks in range(NS):
        a(f"buffer_load_dwordx4 {vr(PB+8*ks,4)}, v6, s[36:39], s29 offen")
        a(f"buffer_load_dwordx4 {vr(PB+8*ks+4,4)}, v7, s[36:39], s29 offen")
        if ks < NS - 1: a(f"s_add_u32 s29, s29, {2048*576*4}")
    a("buffer_load_dwordx2 v[32:33], v11, s[40:43], s33 offen")
    a("buffer_load_dwordx2 v[34:35], v12, s[40:43], s33 offen")
    a(f"s_waitcnt vmcnt({2*NS+2})")
    Q = 96
    a("v_mov_b32 v36, 0")
    for part in range(2):
        for i in range(4):
            qs = 16 + 4 * part + i; gs = 24 + 4 * part + i
            q0 = Q + 2 * i if part == 0 else 38
            q1 = q0 + 1
            a(f"v_lshlrev_b32 v{q0}, 16, v{qs}")
            a(f"v_and_b32 v{q1}, 0xffff0000, v{qs}")
            a(f"v_lshlrev_b32 v40, 16, v{gs}")
            a(f"v_and_b32 v41, 0xffff0000, v{gs}")
            a(f"v_mul_f32 v40, v40, v{q0}")
            a(f"v_mul_f32 v41, v41, v{q1}")
            round_pair(a, 40, 41, 42)
            a("v_add_f32 v36, v36, v40")
            a("v_add_f32 v36, v36, v41")
    a("v_mul_u32_u24 v37, 37, v4")
    a("s_lshl_b32 s34, s24, 2")
    a("v_add3_u32 v38, v37, v3, s34")
    a("v_lshlrev_b32 v38, 2, v38")
    a("ds_write_b32 v38, v36")
    a("s_waitcnt lgkmcnt(0)")
    a("s_barrier")
    a("v_mul_u32_u24 v38, 9, v3")
    a("v_add_u32 v38, v38, v37")
    a("v_lshlrev_b32 v38, 2, v38")
    for i in range(4):
        a(f"ds_read2_b32 v[{104+2*i}:{105+2*i}], v38 offset0:{2*i} offset1:{2*i+1}")
    a("ds_read_b32 v112, v38 offset:32")
    a("s_waitcnt lgkmcnt(0)")
    for i in range(1, 9): a(f"v_add_f32 v104, v104, v{104+i}")
    a("v_mov_b32 v105, v104")
    a("s_nop 1")
    a("v_permlane32_swap_b32 v104, v105")
    a("s_nop 1")
    a("v_add_f32 v104, v104, v105")
    a("v_mov_b32 v105, v104")
    a("s_nop 1")
    a("v_permlane16_swap_b32 v104, v105")
    a("s_nop 1")
    a("v_add_f32 v104, v104, v105")
    a("v_cvt_pk_bf16_f32 v105, v104, v104")
    a("v_lshlrev_b32 v104, 16, v105")
    a("v_mul_f32 v104, 0xbfb8aa3b, v104")
    a("v_exp_f32 v104, v104")
    a("s_nop 0")
    a("v_add_f32 v104, 1.0, v104")
    a("v_rcp_f32 v104, v104")
    a("s_nop 0")
    a("v_cvt_pk_bf16_f32 v105, v104, v104")
    a("v_lshlrev_b32 v104, 16, v105")
    a("v_sub_f32 v105, 1.0, v104")
    a("v_cvt_pk_bf16_f32 v106, v105, v105")
    a("v_lshlrev_b32 v105, 16, v106")
    a("s_waitcnt vmcnt(0)")
    for ks in range(1, NS):
        for i in range(8): a(f"v_add_f32 v{PB+i}, v{PB+i}, v{PB+8*ks+i}")
    Z = 108
    for i in range(4):
        a(f"v_lshlrev_b32 v{Z+2*i}, 16, v{32+i}")
        a(f"v_and_b32 v{Z+2*i+1}, 0xffff0000, v{32+i}")
    for i in range(4):
        x, y = 2 * i, 2 * i + 1
        round_pair(a, PB + x, PB + y, 42)
        a(f"v_mul_f32 v{Z+x}, v{Z+x}, v{Q+x}"); a(f"v_mul_f32 v{Z+y}, v{Z+y}, v{Q+y}")
        round_pair(a, Z + x, Z + y, 42)
        a(f"v_mul_f32 v{Z+x}, v{Z+x}, v104"); a(f"v_mul_f32 v{Z+y}, v{Z+y}, v104")
        round_pair(a, Z + x, Z + y, 42)
        a(f"v_mul_f32 v{PB+x}, v{PB+x}, v105"); a(f"v_mul_f32 v{PB+y}, v{PB+y}, v105")
        round_pair(a, PB + x, PB + y, 42)
        a(f"v_add_f32 v{Z+x}, v{Z+x}, v{PB+x}"); a(f"v_add_f32 v{Z+y}, v{Z+y}, v{PB+y}")
        a(f"v_cvt_pk_bf16_f32 v{44+i}, v{Z+x}, v{Z+y}")
    a("buffer_store_dwordx4 v[44:47], v9, s[16:19], s31 offen")
    a.label(f"{name}_done")
    a("s_endpgm")
    kernel_desc(a, name, 120, 48)
```

```python
import sys
from gen_common import *
from gen_gemm1 import gemm1, NSTG as N1, STAGE as S1
from gen_gemm2 import gemm2, G2_STAGE
from gen_side import *
opts = sys.argv[2:]
hdr = open('gated_mix__ssm_conv_h3__glu_gated_swiglu__prompt.s.ref').read().split('\n')
hdr = [l for l in hdr if l.startswith(';') and '@launch' not in l]
a = Asm()
for l in hdr: a.raw(l)
a.raw(f"; @launch kernel=prep_kernel grid=(288,1,1) block=(256,1,1) lds=8448")
a.raw(f"; @launch kernel=gemm1_kernel grid=(256,1,1) block=(512,1,1) lds={N1*S1}")
a.raw(f"; @launch kernel=conv_kernel grid=(144,1,1) block=(256,1,1) lds={4*CONV_WLDS}")
a.raw(f"; @launch kernel=gemm2_kernel grid=(240,1,1) block=(256,1,1) lds={4*G2_STAGE}")
a.raw(f"; @launch kernel=final_kernel grid=(256,1,1) block=(576,1,1) lds=2368")
a.raw('.amdgcn_target "amdgcn-amd-amdhsa--gfx950"')
prep(a, exact="inexact" not in opts)
gemm1(a)
conv(a)
gemm2(a, NSTG=4)
final(a)
open(sys.argv[1], "w").write(a.text())
```

```python
from gen_common import *

G1_LDS = 155648
WBUF = 32768
XA0 = 98304
XAS = 14336
SLOT = 18432
RSLOT = [0, 32768, 65536, 98304, 116736, 135168]
P = 7
RING = 6
vW0, vW1, vX0, vX1, vX2, vRW, vRX0, vRX1, vST = 1, 2, 3, 4, 5, 6, 7, 8, 9
TMP = 10
vRW2 = 22
vPF = 23
FR = 24
ACC = 48
WR = 112

def slot_addr(q): return RSLOT[(q - 9) % 6]

def gemm1c(a, name="gemm1_kernel", stamp=False, do_epi=True, AB=1, prio=1, pf=0, stmod="sc0 sc1", MV=96, rot=1, il=1):
    kernel_header(a, name)
    a("s_cmp_ge_u32 s2, 256")
    a(f"s_cbranch_scc1 {name}_done")
    a("s_and_b32 s23, s2, 7")
    a("s_lshr_b32 s29, s2, 3")
    a("s_lshl_b32 s28, s23, 5")
    a("s_add_u32 s28, s28, s29")
    a("s_cmp_ge_u32 s28, 252")
    a(f"s_cbranch_scc1 {name}_done")
    if stamp:
        a("s_memtime s[70:71]")
        a("s_memrealtime s[72:73]")
    a(f"s_load_dwordx2 s[4:5], s[0:1], {KA['q']}")
    a(f"s_load_dwordx4 s[24:27], s[0:1], {KA['w1']}")
    a(f"s_load_dwordx2 s[6:7], s[0:1], {KA['ws']}")
    a("v_lshrrev_b32 v10, 6, v0")
    a("v_and_b32 v11, 63, v0")
    a("v_readfirstlane_b32 s22, v10")
    a("s_mul_i32 s29, s28, 9363")
    a("s_lshr_b32 s30, s29, 16")
    a("s_mul_i32 s29, s30, 7")
    a("s_sub_u32 s31, s28, s29")
    a("s_mul_i32 s32, s31, 18")
    a("s_cmp_eq_u32 s31, 6")
    a("s_cselect_b32 s29, 1, 0")
    a("s_add_u32 s32, s32, s29")
    a("s_lshl_b32 s34, s31, 2")
    a("s_lshl_b32 s35, s30, 1")
    a("s_add_u32 s34, s34, s35")
    a("s_mul_i32 s35, s34, 7282")
    a("s_lshr_b32 s35, s35, 16")
    a("s_mul_i32 s35, s35, 9")
    a("s_sub_u32 s49, s34, s35")
    if not rot: a("s_mov_b32 s49, 0")
    for s in range(9):
        a(f"s_add_u32 s34, s49, {s}")
        a("s_sub_u32 s35, s34, 9")
        a("s_cmp_ge_u32 s34, 9")
        a("s_cselect_b32 s34, s35, s34")
        a(f"s_mul_i32 s{50+s}, s34, {64*9216}")
        a(f"s_lshl_b32 s{92+s}, s34, 7")
    a("v_lshrrev_b32 v12, 4, v11")
    a("v_and_b32 v13, 15, v11")
    a("s_and_b32 s33, s22, 3")
    a("s_lshl_b32 s33, s33, 4")
    a("v_add_u32 v14, s33, v12")
    a("v_mul_u32_u24 v14, 9216, v14")
    a("s_lshl_b32 s33, s30, 8")
    a("v_add_u32 v14, s33, v14")
    a("v_lshlrev_b32 v15, 1, v12")
    a("v_xor_b32 v15, v15, v13")
    a(f"v_lshl_add_u32 v{vW0}, v15, 4, v14")
    a("v_xor_b32 v15, 8, v15")
    a("v_lshl_add_u32 v14, v15, 4, v14")
    a(f"v_add_u32 v{vW1}, {8*9216 - 2048}, v14")
    a("v_lshrrev_b32 v14, 3, v11")
    a("v_and_b32 v15, 7, v11")
    a("v_xor_b32 v15, v15, v12")
    a("v_mul_u32_u24 v14, 1152, v14")
    a(f"v_lshl_add_u32 v{vX0}, v15, 4, v14")
    a("v_xor_b32 v15, 4, v15")
    a("v_lshl_add_u32 v14, v15, 4, v14")
    a(f"v_add_u32 v{vX1}, {8*1152 - 1024}, v14")
    a("s_lshr_b32 s33, s22, 2")
    a("s_and_b32 s34, s22, 3")
    a("s_lshl_b32 s34, s34, 12")
    a("s_lshl_b32 s40, s33, 14")
    a("s_add_u32 s40, s40, s34")
    a("s_xor_b32 s60, s40, 16384")
    a("s_add_u32 s34, s32, s22")
    a(f"s_mul_i32 s41, s34, {SLOT}")
    a("s_xor_b32 s35, s22, 4")
    a("s_add_u32 s34, s32, s35")
    a(f"s_mul_i32 s61, s34, {SLOT}")
    a("s_lshl_b32 s42, s22, 11")
    a("s_lshl_b32 s62, s35, 11")
    a("s_cmp_eq_u32 s22, 7")
    a("s_cselect_b64 s[64:65], 0, -1")
    a("s_cmp_eq_u32 s35, 7")
    a("s_cselect_b64 s[66:67], 0, -1")
    a("s_waitcnt lgkmcnt(0)")
    if stamp: a("s_memtime s[88:89]")
    srd(a, 8, 4, 5, 2048 * 1152)
    a("s_cmp_eq_u32 s33, 0")
    a("s_cselect_b32 s12, s24, s26")
    a("s_cselect_b32 s13, s25, s27")
    a("s_cselect_b32 s36, s26, s24")
    a("s_cselect_b32 s37, s27, s25")
    a("s_and_b32 s13, s13, 0xffff")
    a("s_and_b32 s37, s37, 0xffff")
    a(f"s_mov_b32 s14, {576*9216}")
    a("s_mov_b32 s15, 0x00020000")
    a(f"s_mov_b32 s38, {576*9216}")
    a("s_mov_b32 s39, 0x00020000")

    def stageA_dma(s, own=True):
        sr = "s[12:15]" if own else "s[36:39]"
        mW, sX, mX, ex = ("s40", "s41", "s42", "s[64:65]") if own else ("s60", "s61", "s62", "s[66:67]")
        g = []
        g.append([f"s_add_u32 m0, {mW}, {(s % 3) * WBUF}", f"s_add_u32 s21, s{50+s}, {4*9216 - 1024}",
                  f"buffer_load_dwordx4 v{vW0}, {sr}, s{50+s} offen lds"])
        g.append([f"buffer_load_dwordx4 v{vW0}, {sr}, s21 offen offset:1024 lds"])
        g.append([f"buffer_load_dwordx4 v{vW1}, {sr}, s{50+s} offen offset:2048 lds"])
        g.append([f"buffer_load_dwordx4 v{vW1}, {sr}, s21 offen offset:3072 lds"])
        g.append([f"s_add_u32 m0, {mX}, {XA0 + (s % 4) * XAS}", f"s_add_u32 s45, {sX}, s{92+s}", f"s_mov_b64 exec, {ex}",
                  f"buffer_load_dwordx4 v{vX0}, s[8:11], s45 offen lds"])
        g.append([f"buffer_load_dwordx4 v{vX1}, s[8:11], s45 offen offset:1024 lds", "s_mov_b64 exec, -1"])
        return g
    def subB_dma(q):
        sa = slot_addr(q); j = q - 2
        g = []
        g.append([f"s_add_u32 m0, s42, {sa}", f"s_add_u32 s45, s44, {j*SLOT}", f"buffer_load_dwordx4 v{vX0}, s[8:11], s45 offen lds"])
        g.append([f"buffer_load_dwordx4 v{vX1}, s[8:11], s45 offen offset:1024 lds"])
        g.append([f"s_add_u32 m0, s43, {sa}", f"s_add_u32 s45, s68, {j*SLOT}", "s_mov_b64 exec, 0xffff", f"buffer_load_dwordx4 v{vX2}, s[8:11], s45 offen lds", "s_mov_b64 exec, -1"])
        return g
    def emit(groups):
        for g in groups:
            for x in g: a(x)

    def rest_setup():
        a("v_bfe_u32 v14, v11, 3, 1")
        a("s_lshl_b32 s34, s22, 1")
        a("v_add_u32 v14, s34, v14")
        a("v_mul_u32_u24 v14, 1152, v14")
        a("v_and_b32 v15, 7, v11")
        a("v_xor_b32 v15, s22, v15")
        a("v_lshl_add_u32 v14, v15, 4, v14")
        a("s_add_u32 s34, s49, s22")
        a("s_sub_u32 s35, s34, 9")
        a("s_cmp_ge_u32 s34, 9")
        a("s_cselect_b32 s34, s35, s34")
        a("s_lshl_b32 s63, s34, 7")
        a(f"v_mov_b32 v{vX2}, v14")
        a("v_lshrrev_b32 v14, 2, v13")
        a("v_and_b32 v15, 1, v12")
        a("v_lshl_add_u32 v15, v15, 2, v14")
        a("v_xor_b32 v15, s22, v15")
        a("v_lshl_add_u32 v14, v12, 3, v14")
        a("v_lshlrev_b32 v14, 8, v14")
        a("v_lshl_add_u32 v14, v15, 5, v14")
        a("v_and_b32 v15, 3, v11")
        a(f"v_lshl_add_u32 v{vRW}, v15, 3, v14")
        a(f"v_add_u32 v{vRW2}, 0x10000, v{vRW}")
        a("v_lshrrev_b32 v14, 1, v13")
        a("v_xor_b32 v14, v14, v12")
        a("v_lshlrev_b32 v15, 7, v13")
        a("v_lshl_add_u32 v14, v14, 4, v15")
        a(f"v_add_u32 v{vRX0}, {XA0}, v14")
        a(f"v_xor_b32 v{vRX1}, 64, v{vRX0}")
        a("s_lshl_b32 s34, s30, 3")
        a("s_add_u32 s34, s34, s22")
        a("s_lshr_b32 s35, s34, 2")
        a("s_lshl_b32 s35, s35, 18")
        a("s_and_b32 s34, s34, 3")
        a("s_lshl_b32 s34, s34, 9")
        a("s_add_u32 s34, s34, s35")
        a("v_lshlrev_b32 v14, 5, v13")
        a("v_lshl_add_u32 v14, v12, 3, v14")
        a(f"v_add_u32 v{vST}, s34, v14")
        a("s_lshl_b32 s43, s22, 8")
        a("s_add_u32 s43, s43, 16384")
        a(f"s_mul_i32 s44, s32, {SLOT}")
        a("s_add_u32 s68, s44, s100")
        a("s_add_u32 s44, s44, s63")
        a("s_mov_b32 s46, 0xbfb8aa3b")
        a("s_lshl_b32 s47, s32, 11")
        srd(a, 16, 6, 7, H_BYTES)

    def prefetch():
        a("s_mul_i32 s50, s30, 7")
        a("s_lshl_b32 s51, s23, 5")
        a("s_max_u32 s52, s50, s51")
        a("s_add_u32 s50, s50, 7")
        a("s_add_u32 s51, s51, 32")
        a("s_min_u32 s50, s50, s51")
        a("s_sub_u32 s50, s50, s52")
        a("s_sub_u32 s52, s28, s52")
        a("v_subrev_u32 v14, 256, v0")
        a("v_mul_lo_u32 v15, v14, s50")
        a("v_add_u32 v15, s52, v15")
        a("s_lshl_b32 s51, s50, 8")
        a("s_lshl_b32 s53, s30, 8")
        a(f"s_add_u32 s53, s53, {192*9216}")
        n = 0
        for it in range(3):
            a("v_cmp_gt_u32 vcc, 768, v15")
            a("v_lshrrev_b32 v16, 1, v15")
            a("v_mul_u32_u24 v16, 9216, v16")
            a("v_and_b32 v17, 1, v15")
            a("v_lshl_add_u32 v16, v17, 7, v16")
            a("s_and_b64 exec, exec, vcc")
            a(f"buffer_load_dword v{vPF}, v16, s[12:15], s53 offen")
            a(f"buffer_load_dword v{vPF}, v16, s[36:39], s53 offen")
            n += 2
            if it < 2: a("v_add_u32 v15, s51, v15")
        a("s_mov_b64 exec, -1")
        a("s_and_b32 s50, s28, 31")
        a(f"s_mul_i32 s50, s50, {576*128}")
        a("v_lshlrev_b32 v16, 7, v14")
        a(f"buffer_load_dword v{vPF}, v16, s[8:11], s50 offen")
        a(f"s_add_u32 s50, s50, {256*128}")
        a(f"buffer_load_dword v{vPF}, v16, s[8:11], s50 offen")
        a(f"s_add_u32 s50, s50, {256*128}")
        a("v_cmp_gt_u32 vcc, 64, v14")
        a("s_and_b64 exec, exec, vcc")
        a(f"buffer_load_dword v{vPF}, v16, s[8:11], s50 offen")
        a("s_mov_b64 exec, -1")
        return n + 3

    a("s_cmp_eq_u32 s33, 0")
    a(f"s_cbranch_scc0 {name}_proY")
    emit(stageA_dma(0, True)); emit(stageA_dma(0, False))
    rest_setup()
    if stamp: a("s_memtime s[90:91]")
    a("s_waitcnt vmcnt(0)")
    a("s_barrier")
    a(f"s_branch {name}_pro_end")
    a.label(f"{name}_proY")
    if pf: prefetch()
    emit(stageA_dma(1, True)); emit(stageA_dma(1, False))
    rest_setup()
    if stamp: a("s_memtime s[90:91]")
    a("s_barrier")
    emit(stageA_dma(2, True)); emit(stageA_dma(2, False))
    a.label(f"{name}_pro_end")
    if stamp:
        a("s_memtime s[84:85]"); a("s_waitcnt lgkmcnt(0)")
    a("s_cmp_ge_u32 s31, 5")
    a(f"s_cbranch_scc1 {name}_v19")

    def body(NSUB):
        NPER = 9 + NSUB - P
        vm = dict(n=0)
        landed = {2: 0}
        lg = dict(n=0); lgidx = {}; waited = dict(lg=0)
        def wreg(mat, ks): return WR + (mat * 18 + ks) * 4
        def acc(sub, mat): return ACC + (sub % 8) * 8 + mat * 4
        def frags(p):
            if p < 9: return [(tt, sub, 2 * p + tt) for tt in range(2) for sub in range(P)]
            return [(ks & 1, p - 2, ks) for ks in range(18)]
        cur_base = dict(v=XA0)
        ring = dict(n=0)
        rslot = {}
        def emit_read(p, i):
            tt, sub, ks = frags(p)[i]
            if p < 9:
                off = XA0 + (p % 4) * XAS + sub * 2048
            else:
                sa = slot_addr(p)
                if i == 0 and not (sa >= cur_base['v'] and sa + SLOT - cur_base['v'] <= 65536):
                    d = sa - cur_base['v']
                    a(f"v_add_u32 v{vRX0}, {d & 0xffffffff}, v{vRX0}")
                    a(f"v_add_u32 v{vRX1}, {d & 0xffffffff}, v{vRX1}")
                    cur_base['v'] = sa
                off = sa + (ks >> 1) * 2048
            off -= cur_base['v']
            assert 0 <= off < 65536
            r = FR + (ring['n'] % RING) * 4; ring['n'] += 1
            rslot[(p, i)] = r
            a(f"ds_read_b128 {vr(r, 4)}, v{vRX1 if tt else vRX0} offset:{off}")
            lg['n'] += 1; lgidx[("X", p, i)] = lg['n']
        def emit_wread(s, tt, mat):
            b = s % 3
            base = f"v{vRW2}" if b == 2 else f"v{vRW}"
            off = ((b & 1) * WBUF if b < 2 else 0) + mat * 16384 + tt * 8192
            r = wreg(mat, 2 * s + tt)
            a(f"ds_read_b64_tr_b16 {vr(r,2)}, {base} offset:{off}")
            a(f"ds_read_b64_tr_b16 {vr(r+2,2)}, {base} offset:{off + 1024}")
            lg['n'] += 2; lgidx[("W", 2 * s + tt, mat)] = lg['n']
        def wait_lg(tag):
            need = lgidx[tag]
            if need <= waited['lg']: return
            n = lg['n'] - need
            a(f"s_waitcnt lgkmcnt({min(n, 15)})")
            waited['lg'] = need if n <= 15 else lg['n'] - 15
        def preload_list(p):
            o = []
            if p < 9:
                o += [lambda: emit_wread(p, 0, 0), lambda: emit_read(p, 0), lambda: emit_wread(p, 0, 1)]
                for i in range(1, RING): o.append(lambda i=i: emit_read(p, i))
                o += [lambda: emit_wread(p, 1, 0), lambda: emit_wread(p, 1, 1)]
            else:
                for i in range(RING): o.append(lambda i=i: emit_read(p, i))
            return o
        def preload(p):
            for f in preload_list(p): f()
        epq = []
        def add_epi(sub, avail):
            G = acc(sub, 0); U = acc(sub, 1); T = TMP; O = TMP + 8 + (sub & 1) * 2
            ops = []
            for r in range(4): ops.append((4, [f"v_mul_f32 v{T+r}, s46, v{G+r}"]))
            for r in range(4): ops.append((8, [f"v_exp_f32 v{T+r}, v{T+r}"]))
            for r in range(4): ops.append((4, [f"v_mul_f32 v{T+4+r}, v{G+r}, v{U+r}"]))
            for r in range(4): ops.append((4, [f"v_add_f32 v{T+r}, 1.0, v{T+r}"]))
            for r in range(4): ops.append((8, [f"v_rcp_f32 v{T+r}, v{T+r}"]))
            for r in range(4): ops.append((4, [f"v_mul_f32 v{T+4+r}, v{T+4+r}, v{T+r}"]))
            ops.append((4, [f"v_cvt_pk_bf16_f32 v{O}, v{T+4}, v{T+5}"]))
            ops.append((4, [f"v_cvt_pk_bf16_f32 v{O+1}, v{T+6}, v{T+7}"]))
            st = [f"buffer_store_dwordx2 {vr(O,2)}, v{vST}, s[16:19], s47 offen offset:{(sub&1)*2048} {stmod}"]
            if sub & 1: st.append("s_add_u32 s47, s47, 4096")
            ops.append((0, st, "vm"))
            for o in ops: epq.append((o[0], o[1], avail, len(o) > 2, sub))
        if do_epi:
            for sub in range(NSUB): add_epi(sub, max(8, sub + 2))
        done_sub = set()
        sched = {p: [] for p in range(NPER)}
        for p in range(NPER):
            if p + 3 <= 11: sched[p] = [p + 3]
        nq = 12
        for p in range(9, NPER):
            k = 0
            while nq < NPER and nq - 6 <= p - 1 and k < 2:
                sched[p].append(nq); nq += 1; k += 1
        preload(0)
        a(f"s_cmp_eq_u32 s33, 0")
        a(f"s_cbranch_scc1 {name}_skipY{NSUB}")
        a("s_waitcnt vmcnt(12) lgkmcnt(0)")
        a("s_barrier")
        a.label(f"{name}_skipY{NSUB}")
        for p in range(NPER):
            fr = frags(p); nf = len(fr); mcred = 0.0
            if prio: a("s_setprio 1")
            for i in range(nf):
                tt, sub, ks = fr[i]
                if ks == 0 and do_epi and sub >= 8: assert (sub - 8) in done_sub
                for mat in range(2):
                    wait_lg(("X", p, i))
                    if p < 9: wait_lg(("W", ks, mat))
                    c = "0" if ks == 0 else vr(acc(sub, mat), 4)
                    a(f"v_mfma_f32_16x16x32_bf16 {vr(acc(sub,mat),4)}, {vr(wreg(mat,ks),4)}, {vr(rslot[(p,i)],4)}, {c}")
                    if mat == 0 and p >= 9:
                        mcred = min(mcred + MV / 18.0, 12); u = 0
                        while epq and epq[0][2] <= p - 1 and not epq[0][3] and epq[0][0] <= mcred and u + epq[0][0] <= 8:
                            c_, ins, av, isvm, sb = epq.pop(0)
                            for x in ins: a(x)
                            mcred -= c_; u += c_
                if i + RING < nf: emit_read(p, i + RING)
                if i == nf - 1 - AB:
                    a("s_waitcnt lgkmcnt(0)"); waited['lg'] = lg['n']
                    if prio: a("s_setprio 3")
                    if p == NPER - 1:
                        a(f"s_cmp_eq_u32 s33, 0")
                        a(f"s_cbranch_scc0 {name}_skipA{NSUB}")
                        a("s_barrier")
                        a.label(f"{name}_skipA{NSUB}")
                    else:
                        a("s_barrier")
            if prio: a("s_setprio 0")
            if stamp and p == 8:
                a("s_memtime s[86:87]"); a("s_waitcnt lgkmcnt(0)")
            if p == NPER - 1: break
            pl = preload_list(p + 1)
            if not il:
                for f in pl: f()
                pl = []
            dq = []
            for q in sched[p]:
                gs = stageA_dma(q) if q < 9 else subB_dma(q)
                for k, gg in enumerate(gs): dq.append((gg, q if k == len(gs) - 1 else None))
            def pop_dma():
                gg, q = dq.pop(0)
                for x in gg: a(x)
                vm['n'] += 1
                if q is not None: landed[q] = vm['n']
            if p >= 8 and epq:
                rem = sum(o[0] for o in epq if o[4] < NSUB - 1)
                budget = rem / (NPER - 1 - p) - MV * 0.9
                used = 0
                step = budget / (len(dq) + 0.5) if dq else 1e9
                nxt_d = 0; nxt_p = 8
                while epq and epq[0][2] <= p and (used + epq[0][0] <= budget + 3 or epq[0][0] == 0):
                    if dq and used >= nxt_d:
                        pop_dma(); nxt_d += step
                    elif pl and used >= nxt_p:
                        pl.pop(0)(); nxt_p = used + 8
                    c, ins, av, isvm, sub = epq.pop(0)
                    for x in ins: a(x)
                    used += c
                    if isvm: vm['n'] += 1; done_sub.add(sub)
            while dq:
                pop_dma()
                for k in range(2):
                    if pl: pl.pop(0)()
            for f in pl: f()
            if p + 2 < NPER:
                a(f"s_waitcnt vmcnt({min(63, vm['n'] - landed[p + 2])}) lgkmcnt(0)")
            else:
                a("s_waitcnt lgkmcnt(0)")
            waited['lg'] = lg['n']
            a("s_barrier")
        if stamp:
            a("s_memtime s[74:75]")
        a("s_nop 7")
        a("s_nop 3")
        while epq:
            c, ins, av, isvm, sub = epq.pop(0)
            for x in ins: a(x)
        if stamp:
            a("s_waitcnt vmcnt(0)")
            a("s_memrealtime s[80:81]")
            a("s_waitcnt lgkmcnt(0)")
            for d, s in ((74, 70), (84, 70), (86, 70), (88, 70), (90, 70)): a(f"s_sub_u32 s{d}, s{d}, s{s}")
            for k, s in enumerate((72, 80, 84, 86, 74, 28, 88, 90)): a(f"v_mov_b32 v{24+k}, s{s}")
            a("s_lshl_b32 s70, s2, 3")
            a("s_add_u32 s70, s70, s22")
            a("s_lshl_b32 s70, s70, 5")
            a("s_add_u32 s70, s70, 0x8000000")
            a("v_mov_b32 v32, s70")
            a("s_mov_b64 exec, 1")
            a("global_store_dwordx4 v32, v[24:27], s[6:7]")
            a("global_store_dwordx4 v32, v[28:31], s[6:7] offset:16")
        a("s_endpgm")
    body(18)
    a.label(f"{name}_v19")
    body(19)
    a.label(f"{name}_done")
    a("s_endpgm")
    kernel_desc(a, name, 256, 102)

if __name__ == "__main__":
    import sys
    opts = sys.argv[2:]
    a = Asm()
    a.raw(f"; @launch kernel=gemm1_kernel grid=(256,1,1) block=(512,1,1) lds={G1_LDS}")
    a.raw('.amdgcn_target "amdgcn-amd-amdhsa--gfx950"')
    kw = {}
    for o in opts:
        if "=" in o:
            k, v = o.split("="); kw[k] = float(v) if "." in v else int(v)
    gemm1c(a, stamp="stamp" in opts, do_epi="noepi" not in opts, **kw)
    open(sys.argv[1], "w").write(a.text())
```

```python
from gen_common import *
from gen_side import WS_XR, XR_BYTES, WS_Z4, Z4_BYTES

G2_STAGE = 40960
NSTG = 4
G2_LDS = NSTG * G2_STAGE
PB_BYTES = 5 * 2048 * 576 * 2
CW = 12928
C1OFF = 4160; XOFF = 8320

def gemm2b(a, name="gemm2_kernel", stamp=False, N1=12, N2=18, do_conv=True, stmod="sc0 sc1"):
    assert 3 * N1 + 2 * N2 == 72
    kernel_header(a, name)
    a("s_cmp_ge_u32 s2, 240")
    a(f"s_cbranch_scc1 {name}_done")
    if stamp:
        a("s_memtime s[70:71]")
        a("s_memrealtime s[72:73]")
    a(f"s_load_dwordx2 s[4:5], s[0:1], {KA['w2']}")
    a(f"s_load_dwordx2 s[6:7], s[0:1], {KA['ws']}")
    a(f"s_load_dwordx4 s[24:27], s[0:1], {KA['ssm_k']}")
    a("v_lshrrev_b32 v1, 6, v0")
    a("v_and_b32 v2, 63, v0")
    a("v_readfirstlane_b32 s22, v1")
    a("s_and_b32 s28, s2, 7")
    a("s_lshr_b32 s29, s2, 3")
    a("s_mul_i32 s28, s28, 30")
    a("s_add_u32 s23, s28, s29")
    a("s_mul_i32 s29, s23, 1366")
    a("s_lshr_b32 s30, s29, 16")
    a("s_mul_i32 s29, s30, 48")
    a("s_sub_u32 s28, s23, s29")
    a("s_mul_i32 s29, s28, 21846")
    a("s_lshr_b32 s31, s29, 16")
    a("s_mul_i32 s29, s31, 3")
    a("s_sub_u32 s34, s28, s29")
    a("s_and_b32 s47, s22, 3")
    a("s_and_b32 s32, s22, 1")
    a("s_lshr_b32 s33, s47, 1")
    a(f"s_mul_i32 s35, s30, {N1}")
    a("s_cmp_eq_u32 s30, 4")
    a(f"s_cselect_b32 s36, {N2-N1}, 0")
    a("s_add_u32 s35, s35, s36")
    a("v_lshrrev_b32 v3, 4, v2")
    a("v_and_b32 v4, 15, v2")
    a("v_lshlrev_b32 v8, 4, v2")
    a("s_lshl_b32 s37, s47, 12")
    a("v_add_u32 v8, s37, v8")
    a("s_mul_i32 s37, s47, 384")
    a("s_movk_i32 s38, 2731")
    a("s_movk_i32 s39, 1152")
    a("s_mul_i32 s40, s34, 384")
    for j in range(6):
        d = 10 + j
        a(f"v_add_u32 v5, {64*j}, v2")
        a("v_add_u32 v5, s37, v5")
        a("v_mul_lo_u32 v6, v5, s38")
        a("v_lshrrev_b32 v6, 16, v6")
        a("v_mul_u32_u24 v7, 24, v6")
        a("v_sub_u32 v7, v5, v7")
        a("v_bfe_u32 v16, v6, 1, 1")
        a("v_bfe_u32 v17, v6, 3, 1")
        a("v_lshl_add_u32 v16, v17, 1, v16")
        a("v_lshlrev_b32 v16, 1, v16")
        a("v_xor_b32 v7, v7, v16")
        a("v_mul_lo_u32 v6, v6, s39")
        a("v_lshl_add_u32 v6, v7, 4, v6")
        a("v_add_u32 v6, s40, v6")
        a(f"v_subrev_u32 v{d}, {1024*(j%3)}, v6")
    a("s_lshl_b32 s20, s31, 14")
    a("s_lshl_b32 s41, s35, 18")
    a("s_add_u32 s20, s20, s41")
    a(f"s_mul_i32 s21, s35, {64*1152}")
    a("s_lshl_b32 s43, s47, 12")
    a("s_mul_i32 s44, s47, 6144")
    a("s_add_u32 s44, s44, 16384")
    a("s_waitcnt lgkmcnt(0)")
    srd(a, 8, 4, 5, 4608 * 1152)
    srd(a, 12, 6, 7, H_BYTES)

    def dma_ops(stage, adv=1):
        b = (stage % NSTG) * G2_STAGE
        ops = []
        ops.append([f"s_add_u32 m0, s43, {b}", "s_nop 0", "buffer_load_dwordx4 v8, s[12:15], s20 offen lds"])
        for j in range(1, 4):
            ops.append([f"buffer_load_dwordx4 v8, s[12:15], s20 offen offset:{1024*j} lds"])
        for hh in range(2):
            for j in range(3):
                o = []
                if j == 0:
                    o = [f"s_add_u32 m0, s44, {b + hh*3072}", "s_nop 0"]
                off = f" offset:{1024*j}" if j else ""
                o.append(f"buffer_load_dwordx4 v{10+hh*3+j}, s[8:11], s21 offen{off} lds")
                ops.append(o)
        ops[-1] += [f"s_add_u32 s20, s20, {262144*adv}", f"s_add_u32 s21, s21, {64*1152*adv}"]
        return ops
    def emit(ops):
        for o in ops:
            for x in o: a(x)

    a("s_cmp_ge_u32 s22, 4")
    a(f"s_cbranch_scc1 {name}_prod")
    emit(dma_ops(0))
    a("v_lshrrev_b32 v5, 1, v3")
    a("v_lshlrev_b32 v5, 9, v5")
    a("v_and_b32 v6, 1, v3")
    a("v_lshl_add_u32 v5, v6, 4, v5")
    a("s_lshl_b32 s41, s32, 13")
    a("v_lshl_add_u32 v7, v4, 5, v5")
    a("v_add_u32 v16, s41, v7")
    for b in range(1, NSTG):
        a(f"v_add_u32 v{16+b}, {b*G2_STAGE}, v16")
    a("v_lshrrev_b32 v5, 2, v4")
    a("v_lshl_add_u32 v6, v3, 3, v5")
    a("v_mul_u32_u24 v6, 384, v6")
    a("v_and_b32 v7, 1, v2")
    a("v_lshl_add_u32 v6, v7, 4, v6")
    a("v_add_u32 v6, 16384, v6")
    a("v_lshrrev_b32 v5, 1, v5")
    a("v_and_b32 v7, 1, v3")
    a("v_lshl_add_u32 v5, v7, 1, v5")
    a("v_bfe_u32 v9, v2, 1, 1")
    a("v_xor_b32 v5, v5, v9")
    for jj4 in range(4):
        a("s_mul_i32 s41, s33, 3")
        a(f"s_add_u32 s41, s41, {jj4>>1}")
        a("s_and_b32 s42, s41, 1")
        a("s_lshl_b32 s42, s42, 1")
        a("s_lshr_b32 s41, s41, 1")
        a("s_lshl_b32 s41, s41, 7")
        a("v_xor_b32 v7, s42, v5")
        a("v_lshl_add_u32 v7, v7, 5, v6")
        a(f"v_xor_b32 v36, {jj4&1}, v9")
        a("v_lshl_add_u32 v7, v36, 3, v7")
        a(f"v_add_u32 v{20+jj4}, s41, v7")
        for b in range(1, NSTG):
            a(f"v_add_u32 v{20+4*b+jj4}, {b*G2_STAGE}, v{20+jj4}")
    a(f"s_add_u32 s16, s6, {WS_P}")
    a("s_addc_u32 s17, s7, 0")
    a("s_and_b32 s17, s17, 0xffff")
    a(f"s_mov_b32 s18, {PB_BYTES}")
    a("s_mov_b32 s19, 0x00020000")
    FR = 40; ACC = 128
    def acc(mi, j): return ACC + (mi * 6 + j) * 4
    def fa(t, mi): return FR + (t & 1) * 40 + mi * 4
    def fb(t, j): return FR + (t & 1) * 40 + 16 + j * 4
    def read_ops(t):
        st = t >> 1; b = st % NSTG; tt = t & 1
        ops = []
        for mi in range(4):
            ops.append(f"ds_read_b128 {vr(fa(t,mi),4)}, v{16+b} offset:{tt*1024 + mi*2048}")
        for j in range(6):
            off = tt * 32 * 384 + (j >> 2) * 128
            ops.append(f"ds_read_b64_tr_b16 {vr(fb(t,j),2)}, v{20+4*b+(j&3)} offset:{off}")
            ops.append(f"ds_read_b64_tr_b16 {vr(fb(t,j)+2,2)}, v{20+4*b+(j&3)} offset:{off + 4*384}")
        A = ops[:4]; B = ops[4:]
        return [A[0], B[0], B[1], A[1], A[2], A[3]] + B[2:]
    a("s_setprio 1")
    a("s_waitcnt vmcnt(0)")
    a("s_barrier")
    if stamp: a("s_memtime s[84:85]")
    for x in read_ops(0): a(x)
    a("s_waitcnt lgkmcnt(0)")
    a("s_cmp_ge_u32 s30, 3")
    a(f"s_cbranch_scc1 {name}_consN")
    def cons(NST):
        NT = 2 * NST
        for t in range(NT):
            st = t >> 1
            if (t & 1) and st + 1 < NST:
                a("s_barrier")
            rd = read_ops(t + 1) if t + 1 < NT else []
            for j in range(6):
                for mi in range(4):
                    c = "0" if t == 0 else vr(acc(mi, j), 4)
                    a(f"v_mfma_f32_16x16x32_bf16 {vr(acc(mi,j),4)}, {vr(fb(t,j),4)}, {vr(fa(t,mi),4)}, {c}")
                    if rd: a(rd.pop(0))
            if t + 1 < NT:
                a("s_waitcnt lgkmcnt(0)")
    cons(N1)
    a(f"s_branch {name}_cons_epi")
    a.label(f"{name}_consN")
    cons(N2)
    a.label(f"{name}_cons_epi")
    if stamp: a("s_memtime s[74:75]")
    a("s_lshl_b32 s45, s30, 7")
    a("s_lshl_b32 s46, s31, 3")
    a("s_add_u32 s45, s45, s46")
    a("s_lshl_b32 s46, s32, 2")
    a("s_add_u32 s45, s45, s46")
    a("s_mul_i32 s45, s45, 18")
    a("s_mul_i32 s46, s34, 6")
    a("s_add_u32 s45, s45, s46")
    a("s_mul_i32 s46, s33, 3")
    a("s_add_u32 s45, s45, s46")
    a("s_lshl_b32 s45, s45, 10")
    a("v_lshlrev_b32 v5, 4, v2")
    a("v_cmp_lt_u32 vcc, 31, v2")
    a("s_nop 3")
    k = 0
    for mi in range(4):
        for pp in range(3):
            t0 = acc(mi, 2 * pp); t1 = acc(mi, 2 * pp + 1)
            T = FR + (k % 4) * 8; k += 1
            a(f"v_cvt_pk_bf16_f32 v{T}, v{t0}, v{t0+1}")
            a(f"v_cvt_pk_bf16_f32 v{T+1}, v{t0+2}, v{t0+3}")
            a(f"v_cvt_pk_bf16_f32 v{T+2}, v{t1}, v{t1+1}")
            a(f"v_cvt_pk_bf16_f32 v{T+3}, v{t1+2}, v{t1+3}")
            a(f"v_cndmask_b32 v{T+4}, v{T}, v{T+2}, vcc")
            a(f"v_cndmask_b32 v{T+5}, v{T+1}, v{T+3}, vcc")
            a(f"v_cndmask_b32 v{T+6}, v{T+2}, v{T}, vcc")
            a(f"v_cndmask_b32 v{T+7}, v{T+3}, v{T+1}, vcc")
            a(f"buffer_store_dwordx4 {vr(T+4,4)}, v5, s[16:19], s45 offen offset:{pp*1024} {stmod}")
        if mi < 3: a(f"s_add_u32 s45, s45, {18*1024}")
    def stamp_out():
        a("s_waitcnt vmcnt(0)")
        a("s_memrealtime s[80:81]")
        a("s_memtime s[86:87]")
        a("s_waitcnt lgkmcnt(0)")
        for d, s in ((74, 70), (84, 70), (86, 70)): a(f"s_sub_u32 s{d}, s{d}, s{s}")
        for kk, s in enumerate((72, 80, 84, 74, 86, 23, 22, 22)): a(f"v_mov_b32 v{24+kk}, s{s}")
        a("s_lshl_b32 s70, s2, 3")
        a("s_add_u32 s70, s70, s22")
        a("s_lshl_b32 s70, s70, 5")
        a("s_add_u32 s70, s70, 0x8000000")
        a("v_mov_b32 v32, s70")
        a("s_mov_b64 exec, 1")
        a("global_store_dwordx4 v32, v[24:27], s[6:7]")
        a("global_store_dwordx4 v32, v[28:31], s[6:7] offset:16")
    if stamp: stamp_out()
    a("s_endpgm")

    a.label(f"{name}_prod")
    a("s_add_u32 s20, s20, 262144")
    a(f"s_add_u32 s21, s21, {64*1152}")
    emit(dma_ops(1))
    a("s_lshl_b32 s48, s23, 2")
    a("s_add_u32 s48, s48, s47")
    a("s_min_u32 s48, s48, 575")
    a("s_lshl_b32 s49, s48, 12")
    a("s_lshl_b32 s50, s48, 1")
    a("s_and_b32 s50, s50, 0xfffffffc")
    a("s_load_dword s51, s[26:27], s50")
    a("s_load_dwordx4 s[52:55], s[24:25], s49")
    srd(a, 56, 24, 25, 576 * 4096)
    a("s_sub_u32 s60, s24, 2")
    a("s_subb_u32 s61, s25, 0")
    a("s_and_b32 s61, s61, 0xffff")
    a(f"s_mov_b32 s62, {576*4096 + 2}")
    a("s_mov_b32 s63, 0x00020000")
    a(f"s_add_u32 s64, s6, {WS_XR}")
    a("s_addc_u32 s65, s7, 0")
    a("s_and_b32 s65, s65, 0xffff")
    a(f"s_mov_b32 s66, {XR_BYTES}")
    a("s_mov_b32 s67, 0x00020000")
    a(f"s_add_u32 s16, s6, {WS_Z4}")
    a("s_addc_u32 s17, s7, 0")
    a("s_and_b32 s17, s17, 0xffff")
    a(f"s_mov_b32 s18, {Z4_BYTES}")
    a("s_mov_b32 s19, 0x00020000")
    a("s_barrier")
    if stamp: a("s_memtime s[84:85]")
    emit(dma_ops(2)); emit(dma_ops(3))
    a("s_cmp_ge_u32 s30, 3")
    a(f"s_cbranch_scc1 {name}_prodN")
    def prod(NST, conv):
        issued = 30
        landed = {1: 10, 2: 20, 3: 30}
        CB = ((NST - 4) % NSTG) * G2_STAGE
        assert (NST - 4) % NSTG <= NSTG - 2
        for st in range(NST - 1):
            a(f"s_waitcnt vmcnt({issued - landed[st + 1]})")
            a("s_barrier")
            if st + NSTG < NST:
                emit(dma_ops(st + NSTG)); issued += 10; landed[st + NSTG] = issued
            if conv and st == NST - 3:
                a(f"s_mul_i32 s68, s47, {CW}")
                a(f"s_add_u32 s68, s68, {CB}")
                a("v_lshlrev_b32 v5, 4, v2")
                a("s_add_u32 m0, s68, 32")
                a("s_nop 0")
                for i in range(4): a(f"buffer_load_dwordx4 v5, s[56:59], s49 offen offset:{1024*i} lds")
                a(f"s_add_u32 m0, s68, {C1OFF + 32}")
                a("s_mov_b64 exec, -2")
                a("buffer_load_dwordx4 v5, s[60:63], s49 offen lds")
                a("s_mov_b64 exec, -1")
                for i in range(1, 4): a(f"buffer_load_dwordx4 v5, s[60:63], s49 offen offset:{1024*i} lds")
                a(f"s_add_u32 m0, s68, {XOFF}")
                a("s_nop 0")
                for i in range(4): a(f"buffer_load_dwordx4 v5, s[64:67], s49 offen offset:{1024*i} lds")
                issued += 12
                a("v_mov_b32 v32, 0"); a("v_mov_b32 v33, 0")
                a("v_and_b32 v6, 3, v2")
                a("v_lshl_add_u32 v6, v6, 3, s68")
                a("ds_write_b64 v6, v[32:33]")
                a(f"ds_write_b64 v6, v[32:33] offset:{C1OFF}")
                a("v_lshl_add_u32 v6, v2, 3, s68")
                a(f"ds_write_b64 v6, v[32:33] offset:{XOFF + 4096}")
                a("s_waitcnt lgkmcnt(0)")
                a("s_lshl_b32 s76, s52, 16")
                for k in range(3):
                    a(f"s_lshr_b32 s{77+k}, s{52+k}, 16")
                    a(f"s_lshl_b32 s69, s{53+k}, 16")
                    a(f"s_or_b32 s{77+k}, s{77+k}, s69")
                for k in range(4): a(f"v_mov_b32 v{32+k}, s{76+k}")
                a("v_mov_b32 v6, s68")
                a(f"ds_write_b128 v6, v[32:35] offset:{C1OFF + 32}")
        if not conv:
            if stamp:
                a("s_memtime s[74:75]"); stamp_out()
            a("s_endpgm"); return
        a("v_lshrrev_b32 v5, 1, v4")
        a("v_lshl_add_u32 v5, v3, 2, v5")
        a("v_lshlrev_b32 v5, 2, v5")
        a("v_and_b32 v6, 1, v4")
        a("v_xor_b32 v6, 1, v6")
        a(f"v_mul_u32_u24 v6, {C1OFF}, v6")
        a("v_add3_u32 v5, v5, v6, 4")
        a("v_add_u32 v16, s68, v5")
        for k in range(1, 4): a(f"v_add_u32 v{16+k}, {1024*k}, v16")
        a("v_lshlrev_b32 v7, 5, v4")
        a("v_lshlrev_b32 v6, 4, v3")
        a("v_sub_u32 v7, v6, v7")
        a(f"s_add_u32 s69, s68, {XOFF + 480}")
        a("v_add_u32 v20, s69, v7")
        a("v_lshlrev_b32 v7, 5, v4")
        a("v_lshl_add_u32 v7, v3, 3, v7")
        a(f"s_add_u32 s69, s68, {XOFF + 504}")
        a("v_sub_u32 v21, s69, v7")
        a("v_add_u32 v22, s68, v7")
        a("s_and_b32 s50, s48, 1")
        a("s_lshl_b32 s50, s50, 4")
        a("s_lshr_b32 s51, s51, s50")
        a("s_lshl_b32 s51, s51, 16")
        CA = 32; CF = 64
        def cfa(r, i): return CF + (r & 1) * 64 + i * 4
        def cfb(r, i): return CF + (r & 1) * 64 + 32 + i * 4
        def creads(r):
            o = []
            for i in range(8):
                d = 128 * (i & 1) + 16 * r
                o.append(f"ds_read2_b32 {vr(cfa(r,i),2)}, v{16 + (i>>1)} offset0:{d} offset1:{d+1}")
                o.append(f"ds_read2_b32 {vr(cfa(r,i)+2,2)}, v{16 + (i>>1)} offset0:{d+2} offset1:{d+3}")
                o.append(f"ds_read_b128 {vr(cfb(r,i),4)}, v20 offset:{3584 - 512*i + 64*r}")
            return o
        a("s_waitcnt vmcnt(0) lgkmcnt(0)")
        if stamp: a("s_memtime s[74:75]")
        for nt in range(8): a(f"ds_read_b64 {vr(192+2*nt,2)}, v21 offset:{3584 - 512*nt}")
        for x in creads(0): a(x)
        a("s_waitcnt lgkmcnt(15)")
        a("s_waitcnt lgkmcnt(0)")
        for nt in range(8):
            k0 = 192 + 2 * nt; y = CA + 4 * nt
            a(f"v_and_b32 v{y}, 0xffff0000, v{k0+1}")
            a(f"v_lshlrev_b32 v{y+1}, 16, v{k0+1}")
            a(f"v_and_b32 v{y+2}, 0xffff0000, v{k0}")
            a(f"v_lshlrev_b32 v{y+3}, 16, v{k0}")
            for r in range(4): a(f"v_mul_f32 v{y+r}, s51, v{y+r}")
        a("s_nop 1")
        for r in range(8):
            rd = creads(r + 1) if r < 7 else []
            for aa in range(8):
                for nt in range(aa, 8):
                    a(f"v_mfma_f32_16x16x32_bf16 {vr(CA+4*nt,4)}, {vr(cfa(r,aa),4)}, {vr(cfb(r,nt-aa),4)}, {vr(CA+4*nt,4)}")
                    if rd: a(rd.pop(0))
            if r < 7: a("s_waitcnt lgkmcnt(0)")
        a("s_nop 7")
        a("s_nop 3")
        for nt in range(8):
            y = CA + 4 * nt
            a(f"v_cvt_pk_bf16_f32 v{CF+2*nt}, v{y}, v{y+1}")
            a(f"v_cvt_pk_bf16_f32 v{CF+2*nt+1}, v{y+2}, v{y+3}")
            a(f"ds_write_b64 v22, {vr(CF+2*nt,2)} offset:{512*nt}")
        a("s_waitcnt lgkmcnt(0)")
        a("s_barrier")
        a("v_subrev_u32 v5, 256, v0")
        a("v_lshlrev_b32 v9, 2, v5")
        a(f"v_add_u32 v9, {CB}, v9")
        a("v_lshlrev_b32 v10, 4, v5")
        a("s_lshl_b32 s30, s23, 14")
        a("s_mov_b32 s31, 0x05040100")
        a("s_mov_b32 s32, 0x07060302")
        for i in range(4):
            for ch in range(4):
                a(f"ds_read_b32 v{96+4*i+ch}, v9 offset:{ch*CW + 1024*i}")
        for i in range(4):
            a(f"s_waitcnt lgkmcnt({12-4*i})")
            s = 96 + 4 * i; d = 128 + 4 * i
            a(f"v_perm_b32 v{d}, v{s+1}, v{s}, s31")
            a(f"v_perm_b32 v{d+1}, v{s+3}, v{s+2}, s31")
            a(f"v_perm_b32 v{d+2}, v{s+1}, v{s}, s32")
            a(f"v_perm_b32 v{d+3}, v{s+3}, v{s+2}, s32")
            if i: a("v_add_u32 v10, 4096, v10")
            a(f"buffer_store_dwordx4 {vr(d,4)}, v10, s[16:19], s30 offen {stmod}")
        if stamp: stamp_out()
        a("s_endpgm")
    prod(N1, do_conv)
    a.label(f"{name}_prodN")
    prod(N2, False)
    a.label(f"{name}_done")
    a("s_endpgm")
    kernel_desc(a, name, 224, 96)
```

```python
from gen_common import *

WS_XR = 0x3000000
XR_BYTES = 576 * 4096
WS_Z4 = 0x3400000
Z4_BYTES = 144 * 2048 * 8

def round_pair(a, x, y, tmp):
    a(f"v_cvt_pk_bf16_f32 v{tmp}, v{x}, v{y}")
    a(f"v_lshlrev_b32 v{x}, 16, v{tmp}")
    a(f"v_and_b32 v{y}, 0xffff0000, v{tmp}")

def prep(a, name="prep_kernel", exact=True):
    kernel_header(a, name)
    a("s_cmp_ge_u32 s2, 288")
    a(f"s_cbranch_scc1 {name}_done")
    a(f"s_load_dwordx4 s[4:7], s[0:1], {KA['k']}")
    a(f"s_load_dwordx2 s[20:21], s[0:1], {KA['shift_k']}")
    a(f"s_load_dwordx2 s[22:23], s[0:1], {KA['ws']}")
    a("s_mul_i32 s24, s2, 7282")
    a("s_lshr_b32 s24, s24, 16")
    a("s_mul_i32 s25, s24, 9")
    a("s_sub_u32 s25, s2, s25")
    a("v_and_b32 v1, 7, v0")
    a("v_lshrrev_b32 v2, 3, v0")
    a("s_lshl_b32 s26, s24, 6")
    a("v_lshl_add_u32 v3, v2, 1, s26")
    a("s_movk_i32 s27, 1152")
    a("v_mul_lo_u32 v3, v3, s27")
    a("s_lshl_b32 s28, s25, 7")
    a("v_lshl_add_u32 v4, v1, 4, s28")
    a("v_add_u32 v3, v3, v4")
    a("v_subrev_u32 v5, 3456, v3")
    a("v_subrev_u32 v6, 2304, v3")
    a("v_subrev_u32 v7, 1152, v3")
    a("v_lshlrev_b32 v8, 2, v4")
    a("s_waitcnt lgkmcnt(0)")
    srd(a, 8, 4, 5, 2048 * 1152)
    srd(a, 12, 6, 7, 2048 * 1152)
    srd(a, 16, 20, 21, 576 * 8)
    a(f"s_add_u32 s32, s22, {WS_XR}")
    a("s_addc_u32 s33, s23, 0")
    a("s_and_b32 s33, s33, 0xffff")
    a(f"s_mov_b32 s34, {XR_BYTES}")
    a("s_mov_b32 s35, 0x00020000")
    K = 16
    a(f"buffer_load_dwordx4 v[16:19], v5, s[8:11], 0 offen")
    a(f"buffer_load_dwordx4 v[20:23], v6, s[8:11], 0 offen")
    a(f"buffer_load_dwordx4 v[24:27], v7, s[8:11], 0 offen")
    a(f"buffer_load_dwordx4 v[28:31], v3, s[8:11], 0 offen")
    a(f"buffer_load_dwordx4 v[32:35], v3, s[8:11], 0 offen offset:1152")
    a(f"buffer_load_dwordx4 v[36:39], v3, s[12:15], 0 offen")
    a(f"buffer_load_dwordx4 v[40:43], v3, s[12:15], 0 offen offset:1152")
    for i in range(4):
        a(f"buffer_load_dwordx4 v[{44+4*i}:{47+4*i}], v8, s[16:19], 0 offen offset:{16*i}")
    a("v_mul_u32_u24 v9, 1056, v1")
    a("v_sub_u32 v10, 31, v2")
    a("v_lshl_add_u32 v9, v10, 2, v9")
    a("s_waitcnt vmcnt(0)")
    for e in range(8):
        def unpack(dst, src, hi):
            if hi: a(f"v_and_b32 v{dst}, 0xffff0000, v{src}")
            else: a(f"v_lshlrev_b32 v{dst}, 16, v{src}")
        for r in range(5): unpack(64 + r, 16 + 4 * r + (e >> 1), e & 1)
        unpack(69, 36 + (e >> 1), e & 1); unpack(70, 40 + (e >> 1), e & 1)
        unpack(71, 44 + 2 * e, 0); unpack(72, 44 + 2 * e, 1)
        unpack(73, 45 + 2 * e, 0); unpack(74, 45 + 2 * e, 1)
        if exact:
            a("v_mul_f32 v76, v64, v74"); a("v_mul_f32 v77, v65, v74")
            round_pair(a, 76, 77, 75)
            for t in range(1, 4):
                a(f"v_mul_f32 v78, v{64+t}, v{74-t}"); a(f"v_mul_f32 v79, v{65+t}, v{74-t}")
                round_pair(a, 78, 79, 75)
                a("v_add_f32 v76, v76, v78"); a("v_add_f32 v77, v77, v79")
                round_pair(a, 76, 77, 75)
        else:
            a("v_mul_f32 v76, v64, v74"); a("v_mul_f32 v77, v65, v74")
            for t in range(1, 4):
                a(f"v_fmac_f32 v76, v{64+t}, v{74-t}"); a(f"v_fmac_f32 v77, v{65+t}, v{74-t}")
        a("v_mul_f32 v76, v76, v69"); a("v_mul_f32 v77, v77, v70")
        a("v_cvt_pk_bf16_f32 v75, v77, v76")
        a(f"ds_write_b32 v9, v75 offset:{132*e}")
    a("s_waitcnt lgkmcnt(0)")
    a("s_barrier")
    a("v_mul_u32_u24 v9, 132, v2")
    a("v_lshl_add_u32 v9, v1, 4, v9")
    for i in range(2):
        for j in range(2):
            a(f"ds_read2_b32 v[{16+4*i+2*j}:{17+4*i+2*j}], v9 offset0:{(32*33*i + 2*j)%256 if False else 2*j} offset1:{2*j+1}")
        if i == 0: a(f"v_add_u32 v9, {32*132}, v9")
    a("s_lshl_b32 s29, s25, 18")
    a("s_lshl_b32 s30, s26, 1")
    a("s_sub_u32 s30, 3968, s30")
    a("s_add_u32 s29, s29, s30")
    a("v_lshlrev_b32 v10, 12, v2")
    a("v_lshl_add_u32 v10, v1, 4, v10")
    a("v_add_u32 v11, 0x20000, v10")
    a("s_waitcnt lgkmcnt(0)")
    a("buffer_store_dwordx4 v[16:19], v10, s[32:35], s29 offen")
    a("buffer_store_dwordx4 v[20:23], v11, s[32:35], s29 offen")
    a.label(f"{name}_done")
    a("s_endpgm")
    kernel_desc(a, name, 80, 48)

CONV_WLDS = 8768
def conv(a, name="conv_kernel"):
    kernel_header(a, name)
    a("s_cmp_ge_u32 s2, 144")
    a(f"s_cbranch_scc1 {name}_done")
    a(f"s_load_dwordx4 s[4:7], s[0:1], {KA['ssm_k']}")
    a(f"s_load_dwordx2 s[22:23], s[0:1], {KA['ws']}")
    a("v_lshrrev_b32 v1, 6, v0")
    a("v_and_b32 v2, 63, v0")
    a("v_readfirstlane_b32 s24, v1")
    a("v_lshrrev_b32 v3, 4, v2")
    a("v_and_b32 v4, 15, v2")
    a("s_lshl_b32 s25, s2, 2")
    a("s_add_u32 s25, s25, s24")
    a(f"s_mul_i32 s26, s24, {CONV_WLDS}")
    a("s_lshl_b32 s27, s25, 12")
    a("v_lshlrev_b32 v5, 4, v2")
    a("v_mov_b32 v8, 0"); a("v_mov_b32 v9, 0")
    a("v_and_b32 v6, 3, v2")
    a("v_lshl_add_u32 v6, v6, 3, s26")
    a("ds_write_b64 v6, v[8:9]")
    a("v_lshl_add_u32 v6, v2, 3, s26")
    a(f"ds_write_b64 v6, v[8:9] offset:{4160+4096}")
    a("s_waitcnt lgkmcnt(0)")
    srd(a, 8, 4, 5, 576 * 4096)
    a(f"s_add_u32 s12, s22, {WS_XR}")
    a("s_addc_u32 s13, s23, 0")
    a("s_and_b32 s13, s13, 0xffff")
    a(f"s_mov_b32 s14, {XR_BYTES}")
    a("s_mov_b32 s15, 0x00020000")
    a(f"s_add_u32 s16, s22, {WS_Z4}")
    a("s_addc_u32 s17, s23, 0")
    a("s_and_b32 s17, s17, 0xffff")
    a(f"s_mov_b32 s18, {Z4_BYTES}")
    a("s_mov_b32 s19, 0x00020000")
    a("s_add_u32 m0, s26, 32")
    a("s_lshl_b32 s28, s25, 1")
    a("s_and_b32 s28, s28, 0xfffffffc")
    a("s_load_dword s29, s[6:7], s28")
    for i in range(4):
        a(f"buffer_load_dwordx4 v5, s[8:11], s27 offen offset:{1024*i} lds")
    a("s_add_u32 m0, s26, 4160")
    a("s_nop 0")
    for i in range(4):
        a(f"buffer_load_dwordx4 v5, s[12:15], s27 offen offset:{1024*i} lds")
    a("v_lshlrev_b32 v6, 1, v4")
    a("v_lshl_add_u32 v6, v3, 4, v6")
    a("v_add3_u32 v6, v6, s26, 2")
    a("v_lshlrev_b32 v7, 5, v4")
    a("v_lshlrev_b32 v8, 4, v3")
    a("v_sub_u32 v7, v8, v7")
    a(f"s_add_u32 s30, s26, {4160+480}")
    a("v_add_u32 v7, s30, v7")
    a("v_lshlrev_b32 v8, 5, v4")
    a("v_lshl_add_u32 v8, v3, 3, v8")
    a(f"s_add_u32 s30, s26, {4160+504}")
    a("v_sub_u32 v8, s30, v8")
    ACC = 16; FR = 48
    def fa(r, i): return FR + (r & 1) * 64 + i * 4
    def fb(r, i): return FR + (r & 1) * 64 + 32 + i * 4
    def reads(r):
        o = []
        for i in range(8):
            o.append(f"ds_read_b128 {vr(fa(r,i),4)}, v6 offset:{512*i + 64*r}")
            o.append(f"ds_read_b128 {vr(fb(r,i),4)}, v7 offset:{3584 - 512*i + 64*r}")
        return o
    a("s_waitcnt vmcnt(0)")
    for x in reads(0): a(x)
    for r in range(8):
        a("s_waitcnt lgkmcnt(0)")
        rd = reads(r + 1) if r < 7 else []
        first = set()
        pairs = [(aa, nt - aa) for aa in range(8) for nt in range(aa, 8)]
        for (aa, bb) in pairs:
            nt = aa + bb
            c = "0" if (r == 0 and nt not in first) else vr(ACC + 4 * nt, 4)
            first.add(nt)
            a(f"v_mfma_f32_16x16x32_bf16 {vr(ACC+4*nt,4)}, {vr(fa(r,aa),4)}, {vr(fb(r,bb),4)}, {c}")
            if rd: a(rd.pop(0))
    for nt in range(8):
        a(f"ds_read_b64 {vr(FR+2*nt,2)}, v8 offset:{3584 - 512*nt}")
    a("s_and_b32 s28, s25, 1")
    a("s_lshl_b32 s28, s28, 4")
    a("s_waitcnt lgkmcnt(0)")
    a("s_lshr_b32 s29, s29, s28")
    a("s_lshl_b32 s29, s29, 16")
    a("s_nop 7")
    a("v_lshlrev_b32 v9, 5, v4")
    a("v_lshl_add_u32 v9, v3, 3, v9")
    a("v_add_u32 v9, s26, v9")
    T = 80
    for nt in range(8):
        k0 = FR + 2 * nt
        a(f"v_and_b32 v{T+0}, 0xffff0000, v{k0+1}")
        a(f"v_lshlrev_b32 v{T+1}, 16, v{k0+1}")
        a(f"v_and_b32 v{T+2}, 0xffff0000, v{k0}")
        a(f"v_lshlrev_b32 v{T+3}, 16, v{k0}")
        for r in range(4): a(f"v_mul_f32 v{T+r}, s29, v{T+r}")
        round_pair(a, T, T + 1, T + 4); round_pair(a, T + 2, T + 3, T + 4)
        y = ACC + 4 * nt
        round_pair(a, y, y + 1, T + 4); round_pair(a, y + 2, y + 3, T + 4)
        for r in range(4): a(f"v_add_f32 v{T+r}, v{T+r}, v{y+r}")
        a(f"v_cvt_pk_bf16_f32 v{T+6}, v{T}, v{T+1}")
        a(f"v_cvt_pk_bf16_f32 v{T+7}, v{T+2}, v{T+3}")
        a(f"ds_write_b64 v9, {vr(T+6,2)} offset:{512*nt}")
    a("s_waitcnt lgkmcnt(0)")
    a("s_barrier")
    a("v_lshlrev_b32 v9, 2, v0")
    a("v_lshlrev_b32 v10, 4, v0")
    a("s_lshl_b32 s30, s2, 14")
    a("s_mov_b32 s31, 0x05040100")
    a("s_mov_b32 s32, 0x07060302")
    for i in range(4):
        for ch in range(4):
            a(f"ds_read_b32 v{16+4*i+ch}, v9 offset:{ch*CONV_WLDS + 1024*i}")
    for i in range(4):
        a(f"s_waitcnt lgkmcnt({12-4*i})")
        s = 16 + 4 * i; d = 48 + 4 * i
        a(f"v_perm_b32 v{d}, v{s+1}, v{s}, s31")
        a(f"v_perm_b32 v{d+1}, v{s+3}, v{s+2}, s31")
        a(f"v_perm_b32 v{d+2}, v{s+1}, v{s}, s32")
        a(f"v_perm_b32 v{d+3}, v{s+3}, v{s+2}, s32")
        if i: a("v_add_u32 v10, 4096, v10")
        a(f"buffer_store_dwordx4 {vr(d,4)}, v10, s[16:19], s30 offen")
    a.label(f"{name}_done")
    a("s_endpgm")
    kernel_desc(a, name, 176, 48)

def final(a, name="final_kernel", NS=5):
    kernel_header(a, name)
    a("s_cmp_ge_u32 s2, 256")
    a(f"s_cbranch_scc1 {name}_done")
    a(f"s_load_dwordx2 s[4:5], s[0:1], {KA['q']}")
    a(f"s_load_dwordx4 s[20:23], s[0:1], {KA['gate_w']}")
    a(f"s_load_dwordx2 s[6:7], s[0:1], {KA['ws']}")
    a("v_lshrrev_b32 v1, 6, v0")
    a("v_and_b32 v2, 63, v0")
    a("v_readfirstlane_b32 s24, v1")
    a("v_lshrrev_b32 v3, 4, v2")
    a("v_and_b32 v4, 15, v2")
    a("s_lshr_b32 s25, s2, 1")
    a("s_and_b32 s26, s2, 1")
    a("s_mul_i32 s27, s26, 9")
    a("s_add_u32 s27, s27, s24")
    a("s_xor_b32 s28, s26, 1")
    a("s_mul_i32 s28, s28, 9")
    a("s_add_u32 s28, s28, s24")
    a("s_mul_i32 s29, s25, 36")
    a("s_lshl_b32 s30, s27, 1")
    a("s_add_u32 s29, s29, s30")
    a("s_lshl_b32 s29, s29, 10")
    a("v_lshrrev_b32 v5, 1, v3")
    a("v_lshlrev_b32 v6, 4, v2")
    a("v_lshl_add_u32 v6, v5, 10, v6")
    a("v_xor_b32 v7, 1024, v6")
    a("s_lshl_b32 s30, s25, 4")
    a("v_add_u32 v8, s30, v4")
    a("v_mul_u32_u24 v9, 1152, v8")
    a("v_lshl_add_u32 v9, v3, 4, v9")
    a("s_lshl_b32 s31, s27, 6")
    a("s_lshl_b32 s32, s28, 6")
    a("v_lshlrev_b32 v10, 4, v3")
    a("v_lshlrev_b32 v11, 15, v3")
    a("v_lshl_add_u32 v11, v8, 3, v11")
    a("v_add_u32 v12, 16384, v11")
    a("s_lshl_b32 s33, s27, 17")
    a("s_waitcnt lgkmcnt(0)")
    srd(a, 8, 4, 5, 2048 * 1152)
    srd(a, 12, 20, 21, 1152)
    srd(a, 16, 22, 23, 2048 * 1152)
    a(f"s_add_u32 s36, s6, {WS_P}")
    a("s_addc_u32 s37, s7, 0")
    a("s_and_b32 s37, s37, 0xffff")
    a(f"s_mov_b32 s38, {NS*2048*576*4}")
    a("s_mov_b32 s39, 0x00020000")
    a(f"s_add_u32 s40, s6, {WS_Z4}")
    a("s_addc_u32 s41, s7, 0")
    a("s_and_b32 s41, s41, 0xffff")
    a(f"s_mov_b32 s42, {Z4_BYTES}")
    a("s_mov_b32 s43, 0x00020000")
    a("buffer_load_dwordx4 v[16:19], v9, s[8:11], s31 offen")
    a("buffer_load_dwordx4 v[20:23], v9, s[8:11], s32 offen")
    a("buffer_load_dwordx4 v[24:27], v10, s[12:15], s31 offen")
    a("buffer_load_dwordx4 v[28:31], v10, s[12:15], s32 offen")
    PB = 48
    for ks in range(NS):
        a(f"buffer_load_dwordx4 {vr(PB+8*ks,4)}, v6, s[36:39], s29 offen")
        a(f"buffer_load_dwordx4 {vr(PB+8*ks+4,4)}, v7, s[36:39], s29 offen")
        if ks < NS - 1: a(f"s_add_u32 s29, s29, {2048*576*4}")
    a("buffer_load_dwordx2 v[32:33], v11, s[40:43], s33 offen")
    a("buffer_load_dwordx2 v[34:35], v12, s[40:43], s33 offen")
    a(f"s_waitcnt vmcnt({2*NS+2})")
    Q = 96
    a("v_mov_b32 v36, 0")
    for part in range(2):
        for i in range(4):
            qs = 16 + 4 * part + i; gs = 24 + 4 * part + i
            q0 = Q + 2 * i if part == 0 else 38
            q1 = q0 + 1
            a(f"v_lshlrev_b32 v{q0}, 16, v{qs}")
            a(f"v_and_b32 v{q1}, 0xffff0000, v{qs}")
            a(f"v_lshlrev_b32 v40, 16, v{gs}")
            a(f"v_and_b32 v41, 0xffff0000, v{gs}")
            a(f"v_mul_f32 v40, v40, v{q0}")
            a(f"v_mul_f32 v41, v41, v{q1}")
            round_pair(a, 40, 41, 42)
            a("v_add_f32 v36, v36, v40")
            a("v_add_f32 v36, v36, v41")
    a("v_mul_u32_u24 v37, 37, v4")
    a("s_lshl_b32 s34, s24, 2")
    a("v_add3_u32 v38, v37, v3, s34")
    a("v_lshlrev_b32 v38, 2, v38")
    a("ds_write_b32 v38, v36")
    a("s_waitcnt lgkmcnt(0)")
    a("s_barrier")
    a("v_mul_u32_u24 v38, 9, v3")
    a("v_add_u32 v38, v38, v37")
    a("v_lshlrev_b32 v38, 2, v38")
    for i in range(4):
        a(f"ds_read2_b32 v[{104+2*i}:{105+2*i}], v38 offset0:{2*i} offset1:{2*i+1}")
    a("ds_read_b32 v112, v38 offset:32")
    a("s_waitcnt lgkmcnt(0)")
    for i in range(1, 9): a(f"v_add_f32 v104, v104, v{104+i}")
    a("v_mov_b32 v105, v104")
    a("s_nop 1")
    a("v_permlane32_swap_b32 v104, v105")
    a("s_nop 1")
    a("v_add_f32 v104, v104, v105")
    a("v_mov_b32 v105, v104")
    a("s_nop 1")
    a("v_permlane16_swap_b32 v104, v105")
    a("s_nop 1")
    a("v_add_f32 v104, v104, v105")
    a("v_cvt_pk_bf16_f32 v105, v104, v104")
    a("v_lshlrev_b32 v104, 16, v105")
    a("v_mul_f32 v104, 0xbfb8aa3b, v104")
    a("v_exp_f32 v104, v104")
    a("s_nop 0")
    a("v_add_f32 v104, 1.0, v104")
    a("v_rcp_f32 v104, v104")
    a("s_nop 0")
    a("v_cvt_pk_bf16_f32 v105, v104, v104")
    a("v_lshlrev_b32 v104, 16, v105")
    a("v_sub_f32 v105, 1.0, v104")
    a("v_cvt_pk_bf16_f32 v106, v105, v105")
    a("v_lshlrev_b32 v105, 16, v106")
    a("s_waitcnt vmcnt(0)")
    for ks in range(1, NS):
        for i in range(8): a(f"v_add_f32 v{PB+i}, v{PB+i}, v{PB+8*ks+i}")
    Z = 108
    for i in range(4):
        a(f"v_lshlrev_b32 v{Z+2*i}, 16, v{32+i}")
        a(f"v_and_b32 v{Z+2*i+1}, 0xffff0000, v{32+i}")
    for i in range(4):
        x, y = 2 * i, 2 * i + 1
        round_pair(a, PB + x, PB + y, 42)
        a(f"v_mul_f32 v{Z+x}, v{Z+x}, v{Q+x}"); a(f"v_mul_f32 v{Z+y}, v{Z+y}, v{Q+y}")
        round_pair(a, Z + x, Z + y, 42)
        a(f"v_mul_f32 v{Z+x}, v{Z+x}, v104"); a(f"v_mul_f32 v{Z+y}, v{Z+y}, v104")
        round_pair(a, Z + x, Z + y, 42)
        a(f"v_mul_f32 v{PB+x}, v{PB+x}, v105"); a(f"v_mul_f32 v{PB+y}, v{PB+y}, v105")
        round_pair(a, PB + x, PB + y, 42)
        a(f"v_add_f32 v{Z+x}, v{Z+x}, v{PB+x}"); a(f"v_add_f32 v{Z+y}, v{Z+y}, v{PB+y}")
        a(f"v_cvt_pk_bf16_f32 v{44+i}, v{Z+x}, v{Z+y}")
    a("buffer_store_dwordx4 v[44:47], v9, s[16:19], s31 offen")
    a.label(f"{name}_done")
    a("s_endpgm")
    kernel_desc(a, name, 120, 48)

def final2(a, name="final_kernel", NS=5):
    kernel_header(a, name)
    a("s_cmp_ge_u32 s2, 256")
    a(f"s_cbranch_scc1 {name}_done")
    a(f"s_load_dwordx2 s[4:5], s[0:1], {KA['q']}")
    a(f"s_load_dwordx4 s[20:23], s[0:1], {KA['gate_w']}")
    a(f"s_load_dwordx2 s[6:7], s[0:1], {KA['ws']}")
    a("v_lshrrev_b32 v1, 6, v0")
    a("v_and_b32 v2, 63, v0")
    a("v_readfirstlane_b32 s24, v1")
    a("v_lshrrev_b32 v3, 4, v2")
    a("v_and_b32 v4, 15, v2")
    a("s_lshr_b32 s25, s2, 1")
    a("s_and_b32 s26, s2, 1")
    a("s_mul_i32 s27, s26, 9")
    a("s_add_u32 s27, s27, s24")
    a("s_xor_b32 s28, s26, 1")
    a("s_mul_i32 s28, s28, 9")
    a("s_add_u32 s28, s28, s24")
    a("s_mul_i32 s29, s25, 18")
    a("s_add_u32 s29, s29, s27")
    a("s_lshl_b32 s29, s29, 10")
    a("v_lshlrev_b32 v6, 4, v2")
    a("s_lshl_b32 s30, s25, 4")
    a("v_add_u32 v8, s30, v4")
    a("v_mul_u32_u24 v9, 1152, v8")
    a("v_lshl_add_u32 v9, v3, 4, v9")
    a("s_lshl_b32 s31, s27, 6")
    a("s_lshl_b32 s32, s28, 6")
    a("v_lshlrev_b32 v10, 4, v3")
    a("v_lshlrev_b32 v11, 15, v3")
    a("v_lshl_add_u32 v11, v8, 3, v11")
    a("v_add_u32 v12, 16384, v11")
    a("s_lshl_b32 s33, s27, 17")
    a("s_waitcnt lgkmcnt(0)")
    srd(a, 8, 4, 5, 2048 * 1152)
    srd(a, 12, 20, 21, 1152)
    srd(a, 16, 22, 23, 2048 * 1152)
    a(f"s_add_u32 s36, s6, {WS_P}")
    a("s_addc_u32 s37, s7, 0")
    a("s_and_b32 s37, s37, 0xffff")
    a(f"s_mov_b32 s38, {NS*2048*576*2}")
    a("s_mov_b32 s39, 0x00020000")
    a(f"s_add_u32 s40, s6, {WS_Z4}")
    a("s_addc_u32 s41, s7, 0")
    a("s_and_b32 s41, s41, 0xffff")
    a(f"s_mov_b32 s42, {Z4_BYTES}")
    a("s_mov_b32 s43, 0x00020000")
    a("buffer_load_dwordx4 v[16:19], v9, s[8:11], s31 offen")
    a("buffer_load_dwordx4 v[20:23], v9, s[8:11], s32 offen")
    a("buffer_load_dwordx4 v[24:27], v10, s[12:15], s31 offen")
    a("buffer_load_dwordx4 v[28:31], v10, s[12:15], s32 offen")
    PB = 48
    for ks in range(NS):
        a(f"buffer_load_dwordx4 {vr(64+4*ks,4)}, v6, s[36:39], s29 offen")
        if ks < NS - 1: a(f"s_add_u32 s29, s29, {2048*576*2}")
    a("buffer_load_dwordx2 v[32:33], v11, s[40:43], s33 offen")
    a("buffer_load_dwordx2 v[34:35], v12, s[40:43], s33 offen")
    a(f"s_waitcnt vmcnt({NS+2})")
    Q = 96
    a("v_mov_b32 v36, 0")
    for part in range(2):
        for i in range(4):
            qs = 16 + 4 * part + i; gs = 24 + 4 * part + i
            q0 = Q + 2 * i if part == 0 else 38
            q1 = q0 + 1
            a(f"v_lshlrev_b32 v{q0}, 16, v{qs}")
            a(f"v_and_b32 v{q1}, 0xffff0000, v{qs}")
            a(f"v_lshlrev_b32 v40, 16, v{gs}")
            a(f"v_and_b32 v41, 0xffff0000, v{gs}")
            a(f"v_mul_f32 v40, v40, v{q0}")
            a(f"v_mul_f32 v41, v41, v{q1}")
            round_pair(a, 40, 41, 42)
            a("v_add_f32 v36, v36, v40")
            a("v_add_f32 v36, v36, v41")
    a("v_mul_u32_u24 v37, 37, v4")
    a("s_lshl_b32 s34, s24, 2")
    a("v_add3_u32 v38, v37, v3, s34")
    a("v_lshlrev_b32 v38, 2, v38")
    a("ds_write_b32 v38, v36")
    a("s_waitcnt lgkmcnt(0)")
    a("s_barrier")
    a("v_mul_u32_u24 v38, 9, v3")
    a("v_add_u32 v38, v38, v37")
    a("v_lshlrev_b32 v38, 2, v38")
    for i in range(4):
        a(f"ds_read2_b32 v[{104+2*i}:{105+2*i}], v38 offset0:{2*i} offset1:{2*i+1}")
    a("ds_read_b32 v112, v38 offset:32")
    a("s_waitcnt lgkmcnt(0)")
    for i in range(1, 9): a(f"v_add_f32 v104, v104, v{104+i}")
    a("v_mov_b32 v105, v104")
    a("s_nop 1")
    a("v_permlane32_swap_b32 v104, v105")
    a("s_nop 1")
    a("v_add_f32 v104, v104, v105")
    a("v_mov_b32 v105, v104")
    a("s_nop 1")
    a("v_permlane16_swap_b32 v104, v105")
    a("s_nop 1")
    a("v_add_f32 v104, v104, v105")
    a("v_cvt_pk_bf16_f32 v105, v104, v104")
    a("v_lshlrev_b32 v104, 16, v105")
    a("v_mul_f32 v104, 0xbfb8aa3b, v104")
    a("v_exp_f32 v104, v104")
    a("s_nop 0")
    a("v_add_f32 v104, 1.0, v104")
    a("v_rcp_f32 v104, v104")
    a("s_nop 0")
    a("v_cvt_pk_bf16_f32 v105, v104, v104")
    a("v_lshlrev_b32 v104, 16, v105")
    a("v_sub_f32 v105, 1.0, v104")
    a("v_cvt_pk_bf16_f32 v106, v105, v105")
    a("v_lshlrev_b32 v105, 16, v106")
    a("s_waitcnt vmcnt(0)")
    for i in range(4):
        a(f"v_lshlrev_b32 v{PB+2*i}, 16, v{64+i}")
        a(f"v_and_b32 v{PB+2*i+1}, 0xffff0000, v{64+i}")
    for ks in range(1, NS):
        for i in range(4):
            a(f"v_lshlrev_b32 v{56+2*i}, 16, v{64+4*ks+i}")
            a(f"v_and_b32 v{56+2*i+1}, 0xffff0000, v{64+4*ks+i}")
        for i in range(8): a(f"v_add_f32 v{PB+i}, v{PB+i}, v{56+i}")
    Z = 108
    for i in range(4):
        a(f"v_lshlrev_b32 v{Z+2*i}, 16, v{32+i}")
        a(f"v_and_b32 v{Z+2*i+1}, 0xffff0000, v{32+i}")
    for i in range(4):
        x, y = 2 * i, 2 * i + 1
        round_pair(a, PB + x, PB + y, 42)
        a(f"v_mul_f32 v{Z+x}, v{Z+x}, v{Q+x}"); a(f"v_mul_f32 v{Z+y}, v{Z+y}, v{Q+y}")
        round_pair(a, Z + x, Z + y, 42)
        a(f"v_mul_f32 v{Z+x}, v{Z+x}, v104"); a(f"v_mul_f32 v{Z+y}, v{Z+y}, v104")
        round_pair(a, Z + x, Z + y, 42)
        a(f"v_mul_f32 v{PB+x}, v{PB+x}, v105"); a(f"v_mul_f32 v{PB+y}, v{PB+y}, v105")
        round_pair(a, PB + x, PB + y, 42)
        a(f"v_add_f32 v{Z+x}, v{Z+x}, v{PB+x}"); a(f"v_add_f32 v{Z+y}, v{Z+y}, v{PB+y}")
        a(f"v_cvt_pk_bf16_f32 v{44+i}, v{Z+x}, v{Z+y}")
    a("buffer_store_dwordx4 v[44:47], v9, s[16:19], s31 offen")
    a.label(f"{name}_done")
    a("s_endpgm")
    kernel_desc(a, name, 120, 48)
```

```python
import sys
from gen_common import *
from gen_gemm1c import gemm1c, G1_LDS
from gen_gemm2b import gemm2b, G2_LDS
from gen_side import *
opts = sys.argv[2:]
kw = {}
for o in opts:
    if "=" in o:
        k, v = o.split("="); kw[k] = int(v)
hdr = open('gated_mix__ssm_conv_h3__glu_gated_swiglu__prompt.s.ref').read().split('\n')
hdr = [l for l in hdr if l.startswith(';') and '@launch' not in l]
a = Asm()
for l in hdr: a.raw(l)
a.raw(f"; @launch kernel=prep_kernel grid=(288,1,1) block=(256,1,1) lds=8448")
a.raw(f"; @launch kernel=gemm1_kernel grid=(256,1,1) block=(512,1,1) lds={G1_LDS}")
a.raw(f"; @launch kernel=gemm2_kernel grid=(240,1,1) block=(512,1,1) lds={G2_LDS}")
a.raw(f"; @launch kernel=final_kernel grid=(256,1,1) block=(576,1,1) lds=2368")
a.raw('.amdgcn_target "amdgcn-amd-amdhsa--gfx950"')
prep(a, exact="inexact" not in opts)
gemm1c(a, MV=144)
gemm2b(a, stamp="stamp" in opts, **kw)
final2(a)
open(sys.argv[1], "w").write(a.text())
```

```python
from gen_common import *

PSLAB = 2048 * 576 * 2
NSL = 4
WS_Z = WS_P + NSL * PSLAB
WS_G = 0x3800000
WS_XR = 0x3000000
XR_BYTES = 576 * 4096
CSTR = 4128; HWV = 4 * CSTR
CONV_LDS = 9 * HWV

def conv4(a, name, stamp=False, pp=1, AB=1):
    if stamp:
        a("s_memtime s[70:71]")
        a("s_memrealtime s[72:73]")
    a(f"s_load_dwordx4 s[24:27], s[0:1], {KA['ssm_k']}")
    a(f"s_load_dwordx2 s[6:7], s[0:1], {KA['ws']}")
    a("v_lshrrev_b32 v1, 6, v0")
    a("v_and_b32 v2, 63, v0")
    a("v_readfirstlane_b32 s22, v1")
    a("v_lshrrev_b32 v3, 4, v2")
    a("v_and_b32 v4, 15, v2")
    a("s_lshl_b32 s28, s23, 3")
    a("s_add_u32 s28, s28, s22")
    a("s_add_u32 s29, s23, 512")
    a("s_lshl_b32 s30, s28, 12")
    a("s_lshl_b32 s31, s29, 12")
    a(f"s_mul_i32 s32, s22, {HWV}")
    a("s_lshl_b32 s33, s28, 1")
    a("s_and_b32 s33, s33, 0xfffffffc")
    a("s_lshl_b32 s34, s29, 1")
    a("s_and_b32 s34, s34, 0xfffffffc")
    for s in range(4): a(f"v_lshl_add_u32 v{5+s}, v2, 4, {16 - 2*s}")
    a("s_lshr_b32 s35, s22, 1")
    a("s_lshl_b32 s36, s35, 1")
    a("v_subrev_u32 v9, s36, v5")
    a("s_and_b32 s37, s22, 1")
    a("s_lshl_b32 s37, s37, 11")
    a(f"s_mul_i32 s38, s35, {CSTR}")
    a("s_add_u32 s38, s38, s37")
    a(f"s_add_u32 s38, s38, {8*HWV + 32}")
    a("s_add_u32 s39, s31, s37")
    a("s_and_b32 s40, s22, 1")
    a("s_cmp_eq_u32 s35, 0")
    a("s_cselect_b32 s40, 1, s40")
    a("s_cmp_lg_u32 s40, 0")
    a("s_cselect_b64 s[40:41], -1, -2")
    a("v_lshlrev_b32 v10, 5, v4")
    a("v_lshlrev_b32 v11, 4, v3")
    a("v_sub_u32 v11, v11, v10")
    a("v_add_u32 v11, 480, v11")
    a("v_mov_b32 v15, 0x80000000")
    a("v_cmp_lt_u32 vcc, 511, v11")
    a("v_cndmask_b32 v12, v11, v15, vcc")
    a("s_lshl_b32 s42, s22, 6")
    a("v_add_u32 v13, s42, v11")
    a("v_cmp_lt_u32 vcc, 511, v13")
    a("v_cndmask_b32 v14, v13, v15, vcc")
    a("v_lshl_add_u32 v10, v3, 3, v10")
    a("v_sub_u32 v15, 504, v10")
    a("v_add_u32 v16, s32, v10")
    a("s_waitcnt lgkmcnt(0)")
    a("s_sub_u32 s8, s24, 16")
    a("s_subb_u32 s9, s25, 0")
    a("s_and_b32 s9, s9, 0xffff")
    a(f"s_mov_b32 s10, {576*4096 + 16}")
    a("s_mov_b32 s11, 0x00020000")
    a(f"s_add_u32 s12, s6, {WS_XR}")
    a("s_addc_u32 s13, s7, 0")
    a("s_and_b32 s13, s13, 0xffff")
    a(f"s_mov_b32 s14, {XR_BYTES}")
    a("s_mov_b32 s15, 0x00020000")
    a("s_load_dwordx4 s[44:47], s[24:25], s30")
    a("s_load_dwordx4 s[48:51], s[24:25], s31")
    a("s_load_dword s52, s[26:27], s33")
    a("s_load_dword s53, s[26:27], s34")
    CA = 32; AF = 64; BF = 96; B9 = 128; C9 = 160; KT = 192; ZT = 160
    for i in range(8):
        a(f"buffer_load_dwordx4 {vr(BF+4*i,4)}, v{12 if i == 0 else 11}, s[12:15], s30 offen offset:{3584 - 512*i}")
    for nt in range(8):
        a(f"buffer_load_dwordx2 {vr(KT+2*nt,2)}, v15, s[12:15], s30 offen offset:{3584 - 512*nt}")
    for s in range(4):
        a(f"s_add_u32 m0, s32, {s*CSTR + 32}")
        if s: a("s_mov_b64 exec, -2")
        else: a("s_nop 0")
        a(f"buffer_load_dwordx4 v{5+s}, s[8:11], s30 offen lds")
        if s: a("s_mov_b64 exec, -1")
        for b in range(1, 4): a(f"buffer_load_dwordx4 v{5+s}, s[8:11], s30 offen offset:{1024*b} lds")
    a("s_mov_b32 m0, s38")
    a("s_mov_b64 exec, s[40:41]")
    a("buffer_load_dwordx4 v9, s[8:11], s39 offen lds")
    a("s_mov_b64 exec, -1")
    a("buffer_load_dwordx4 v9, s[8:11], s39 offen offset:1024 lds")
    for i in range(8):
        a(f"buffer_load_dwordx4 {vr(B9+4*i,4)}, v{14 if i == 0 else 13}, s[12:15], s31 offen offset:{3584 - 512*i}")
    a("s_lshl_b32 s42, s22, 9")
    a("s_sub_u32 s42, s31, s42")
    a("s_add_u32 s42, s42, 3584")
    a(f"buffer_load_dwordx2 {vr(KT+16,2)}, v15, s[12:15], s42 offen")
    for k in range(4): a(f"v_mov_b32 v{24+k}, 0")
    a("v_and_b32 v17, 7, v2")
    a("v_lshrrev_b32 v18, 1, v17")
    a(f"v_mul_u32_u24 v18, {CSTR}, v18")
    a("v_and_b32 v17, 1, v17")
    a("v_lshl_add_u32 v17, v17, 4, v18")
    a("v_add_u32 v18, s32, v17")
    a("ds_write_b128 v18, v[24:27]")
    a(f"v_add_u32 v18, {8*HWV}, v17")
    a("ds_write_b128 v18, v[24:27]")
    a("v_sub_u32 v17, 3, v4")
    a("v_and_b32 v17, 3, v17")
    a(f"v_mul_u32_u24 v18, {CSTR + 2}, v17")
    a("v_lshl_add_u32 v18, v4, 1, v18")
    a("v_lshl_add_u32 v18, v3, 4, v18")
    a("v_add_u32 v18, 2, v18")
    a("v_add_u32 v20, s32, v18")
    a("v_add_u32 v21, 2048, v20")
    a("s_lshl_b32 s42, s22, 6")
    a(f"s_add_u32 s42, s42, {8*HWV}")
    a("v_add_u32 v22, s42, v18")
    a("v_add_u32 v23, 2048, v22")
    a(f"s_add_u32 s16, s6, {WS_Z}")
    a("s_addc_u32 s17, s7, 0")
    a("s_and_b32 s17, s17, 0xffff")
    a(f"s_mov_b32 s18, {PSLAB}")
    a("s_mov_b32 s19, 0x00020000")
    a("s_waitcnt lgkmcnt(0)")
    def fix(d, base_expr):
        a(f"s_lshl_b32 s56, s{d}, 16")
        for k in range(3):
            a(f"s_lshr_b32 s{57+k}, s{d+k}, 16")
            a(f"s_lshl_b32 s60, s{d+k+1}, 16")
            a(f"s_or_b32 s{57+k}, s{57+k}, s60")
        a(f"v_mov_b32 v17, {base_expr}")
        for k in range(4): a(f"v_mov_b32 v{25+k}, s{56+k}")
        a(f"ds_write_b128 v17, v[25:28] offset:{CSTR + 32}")
    def fix2(d, base_expr):
        a(f"s_lshl_b32 s56, s{d}, 16")
        for k in range(3):
            a(f"s_lshr_b32 s{57+k}, s{d+k}, 16")
            a(f"s_lshl_b32 s60, s{d+k+1}, 16")
            a(f"s_or_b32 s{57+k}, s{57+k}, s60")
        a(f"v_mov_b32 v17, {base_expr}")
        for k in range(4): a(f"v_mov_b32 v{28+k}, s{56+k}")
        a(f"ds_write_b128 v17, v[28:31] offset:{CSTR + 32}")
        for k in range(3): a(f"v_mov_b32 v{25+k}, s{d+k}")
        a(f"ds_write_b128 v17, v[24:27] offset:{2*CSTR + 32}")
        for k in range(3): a(f"v_mov_b32 v{CA+1+k}, s{56+k}")
        a(f"v_mov_b32 v{CA}, 0")
        a(f"ds_write_b128 v17, {vr(CA,4)} offset:{3*CSTR + 32}")
    a("s_mov_b64 exec, 1")
    fix2(44, "s32")
    a("s_waitcnt lgkmcnt(0)")
    fix2(48, f"{8*HWV}")
    a("s_mov_b64 exec, -1")
    for s, ch in ((52, 28), (53, 29)):
        a(f"s_and_b32 s56, s{ch}, 1")
        a("s_lshl_b32 s56, s56, 4")
        a(f"s_lshr_b32 s{s}, s{s}, s56")
        a(f"s_lshl_b32 s{s}, s{s}, 16")
    a("s_waitcnt vmcnt(27) lgkmcnt(0)")
    def kvinit(y, k0, sD):
        a(f"v_and_b32 v{y}, 0xffff0000, v{k0+1}")
        a(f"v_lshlrev_b32 v{y+1}, 16, v{k0+1}")
        a(f"v_and_b32 v{y+2}, 0xffff0000, v{k0}")
        a(f"v_lshlrev_b32 v{y+3}, 16, v{k0}")
        for r in range(4): a(f"v_mul_f32 v{y+r}, s{sD}, v{y+r}")
    for nt in range(8): kvinit(CA + 4 * nt, KT + 2 * nt, 52)
    def areads(r, va):
        return [f"ds_read2_b64 {vr(AF+4*i,4)}, v{va + (i>>2)} offset0:{64*(i&3) + 8*r} offset1:{64*(i&3) + 8*r + 1}" for i in range(8)]
    a("s_waitcnt vmcnt(9)")
    if stamp: a("s_memtime s[84:85]")
    for x in areads(0, 20): a(x)
    a("s_waitcnt lgkmcnt(0)")
    a("s_barrier")
    if pp:
        a("s_cmp_lt_u32 s22, 4")
        a(f"s_cbranch_scc1 {name}_ppx")
        a("s_barrier")
        a.label(f"{name}_ppx")
    def dpp_ops():
        o = []
        for i in range(7, -1, -1):
            for q in range(4):
                o.append(f"v_mov_b32_dpp v{BF+4*i+q}, v{BF+4*i+q} row_shr:2 row_mask:0xf bank_mask:0xf bound_ctrl:0")
            if i:
                for q in range(4):
                    o.append(f"v_mov_b32_dpp v{BF+4*i+q}, v{BF+4*(i-1)+q} row_shl:14 row_mask:0xf bank_mask:0xf")
        return o
    for st in range(9):
        acc, bf = (CA, BF) if st < 8 else (C9, B9)
        if st == 8: a("s_waitcnt vmcnt(0)")
        if pp: a("s_setprio 1")
        k = 0
        for aa in range(8):
            for nt in range(aa, 8):
                c = "0" if (st == 8 and aa == 0) else vr(acc + 4 * nt, 4)
                a(f"v_mfma_f32_16x16x32_bf16 {vr(acc+4*nt,4)}, {vr(AF+4*aa,4)}, {vr(bf+4*(nt-aa),4)}, {c}")
                k += 1
                if pp and k == 36 - AB:
                    a("s_setprio 3")
                    a("s_barrier")
        if pp: a("s_setprio 0")
        if st < 7:
            rd = areads(st + 1, 20); dp = dpp_ops()
            for j, x in enumerate(dp):
                if j % 6 == 0 and rd: a(rd.pop(0))
                a(x)
            for x in rd: a(x)
        elif st == 7:
            for x in areads(0, 22): a(x)
            a("s_nop 7")
            for nt in range(8):
                y = CA + 4 * nt
                a(f"v_cvt_pk_bf16_f32 v{KT+2*nt}, v{y}, v{y+1}")
                a(f"v_cvt_pk_bf16_f32 v{KT+2*nt+1}, v{y+2}, v{y+3}")
                a(f"ds_write_b64 v16, {vr(KT+2*nt,2)} offset:{512*nt}")
        else:
            a("v_lshl_add_u32 v17, v2, 4, s32")
            a("s_nop 7")
            a("s_nop 3")
            for nt in range(8): a(f"ds_write_b128 v17, {vr(C9+4*nt,4)} offset:{4096 + 1024*nt}")
        a("s_waitcnt lgkmcnt(0)")
        if pp:
            if st == 8:
                a("s_cmp_lt_u32 s22, 4")
                a(f"s_cbranch_scc0 {name}_ppy")
                a("s_barrier")
                a.label(f"{name}_ppy")
            else:
                a("s_barrier")
    a("s_barrier")
    if stamp: a("s_memtime s[74:75]")
    a("v_lshlrev_b32 v17, 3, v0")
    a(f"v_add_u32 v18, {4*HWV}, v17")
    for e in range(8): a(f"ds_read_b64 {vr(AF+2*e,2)}, v{17 + (e>>2)} offset:{(e&3)*HWV}")
    a("s_lshl_b32 s42, s22, 10")
    a("s_add_u32 s42, s42, 4096")
    a("v_lshl_add_u32 v19, v2, 4, s42")
    a(f"v_add_u32 v20, {4*HWV}, v19")
    for e in range(8): a(f"ds_read_b128 {vr(BF+4*e,4)}, v{19 + (e>>2)} offset:{(e&3)*HWV}")
    a("s_mov_b32 s56, 0x05040100")
    a("s_mov_b32 s57, 0x07060302")
    a("v_lshrrev_b32 v21, 2, v0")
    a(f"v_mul_u32_u24 v21, {18*1024}, v21")
    a("v_and_b32 v22, 3, v0")
    a("v_lshl_add_u32 v21, v22, 6, v21")
    a("s_lshl_b32 s58, s23, 8")
    kvinit(CA + 16, KT + 16, 53)
    a("s_waitcnt lgkmcnt(8)")
    for j in range(4):
        for p in range(4):
            a(f"v_perm_b32 v{CA+4*j+p}, v{AF+2*(2*p+1)+(j>>1)}, v{AF+2*(2*p)+(j>>1)}, s{57 if j&1 else 56}")
        a(f"buffer_store_dwordx4 {vr(CA+4*j,4)}, v21, s[16:19], s58 offen offset:{16*j}")
    a(f"v_mul_u32_u24 v21, {18*1024}, v4")
    a("v_lshl_add_u32 v21, v3, 6, v21")
    a(f"s_mul_i32 s58, s22, {16*18*1024}")
    a("s_lshr_b32 s59, s23, 3")
    a("s_lshl_b32 s59, s59, 8")
    a("s_add_u32 s58, s58, s59")
    a("s_and_b32 s59, s23, 7")
    a("s_lshl_b32 s59, s59, 1")
    a("s_add_u32 s58, s58, s59")
    a(f"s_add_u32 s58, s58, {16*1024}")
    a("s_waitcnt lgkmcnt(0)")
    for e in range(8):
        a(f"v_pk_add_f32 {vr(CA+16,2)}, {vr(CA+16,2)}, {vr(BF+4*e,2)}")
        a(f"v_pk_add_f32 {vr(CA+18,2)}, {vr(CA+18,2)}, {vr(BF+4*e+2,2)}")
    a(f"v_cvt_pk_bf16_f32 v{CA+20}, v{CA+16}, v{CA+17}")
    a(f"v_cvt_pk_bf16_f32 v{CA+21}, v{CA+18}, v{CA+19}")
    a(f"buffer_store_short v{CA+20}, v21, s[16:19], s58 offen")
    a(f"buffer_store_short_d16_hi v{CA+20}, v21, s[16:19], s58 offen offset:16")
    a(f"buffer_store_short v{CA+21}, v21, s[16:19], s58 offen offset:32")
    a(f"buffer_store_short_d16_hi v{CA+21}, v21, s[16:19], s58 offen offset:48")
    if stamp:
        a("s_waitcnt vmcnt(0)")
        a("s_memrealtime s[80:81]")
        a("s_memtime s[86:87]")
        a("s_waitcnt lgkmcnt(0)")
        for d, s in ((74, 70), (84, 70), (86, 70)): a(f"s_sub_u32 s{d}, s{d}, s{s}")
        a("s_add_u32 s92, s23, 1000")
        for kk, s in enumerate((72, 80, 84, 74, 86, 92, 84, 84)): a(f"v_mov_b32 v{24+kk}, s{s}")
        a("s_lshl_b32 s70, s2, 3")
        a("s_add_u32 s70, s70, s22")
        a("s_lshl_b32 s70, s70, 5")
        a("s_add_u32 s70, s70, 0x8000000")
        a("v_mov_b32 v32, s70")
        a("s_mov_b64 exec, 1")
        a("global_store_dwordx4 v32, v[24:27], s[6:7]")
        a("global_store_dwordx4 v32, v[28:31], s[6:7] offset:16")
    a("s_endpgm")

def prep_loads(a):
    for b, n in ((76, 2048 * 1152), (84, 2048 * 1152), (88, 576 * 8)):
        a(f"s_and_b32 s{b+1}, s{b+1}, 0xffff")
        a(f"s_mov_b32 s{b+2}, {n}")
        a(f"s_mov_b32 s{b+3}, 0x00020000")
    a("s_lshl_b32 s34, s30, 2")
    a("s_add_u32 s34, s34, s31")
    a("s_lshl_b32 s34, s34, 3")
    a("s_add_u32 s34, s34, s22")
    a("s_mul_i32 s35, s34, 7282")
    a("s_lshr_b32 s35, s35, 16")
    a("s_mul_i32 s3, s35, 9")
    a("s_sub_u32 s34, s34, s3")
    a("v_bfe_u32 v116, v0, 3, 3")
    a("v_and_b32 v117, 7, v0")
    a("s_lshl_b32 s3, s35, 3")
    a("v_add_u32 v116, s3, v116")
    a(f"v_mul_u32_u24 v115, {2*1152}, v116")
    a("s_lshl_b32 s3, s34, 7")
    a("v_lshl_add_u32 v118, v117, 4, s3")
    a("v_add_u32 v115, v115, v118")
    a("v_mov_b32 v119, 0x80000000")
    for j in range(3):
        a(f"v_subrev_u32 v{112+j}, {(3-j)*1152}, v115")
        a(f"v_cmp_gt_i32 vcc, 0, v{112+j}")
        a(f"v_cndmask_b32 v{112+j}, v{112+j}, v119, vcc")
    a("v_lshlrev_b32 v118, 2, v118")
    for i in range(4): a(f"buffer_load_dwordx4 {vr(148+4*i,4)}, v118, s[88:91], 0 offen offset:{16*i}")
    for j in range(3): a(f"buffer_load_dwordx4 {vr(120+4*j,4)}, v{112+j}, s[76:79], 0 offen")
    for j in range(2): a(f"buffer_load_dwordx4 {vr(132+4*j,4)}, v115, s[76:79], 0 offen offset:{1152*j}")
    for j in range(2): a(f"buffer_load_dwordx4 {vr(140+4*j,4)}, v115, s[84:87], 0 offen offset:{1152*j}")
    a("v_lshlrev_b32 v117, 15, v117")
    a("v_lshlrev_b32 v116, 2, v116")
    a("v_sub_u32 v117, v117, v116")
    a("v_add_u32 v117, 4092, v117")
    a("s_lshl_b32 s3, s34, 18")
    a(f"s_add_u32 s88, s6, {WS_XR}")
    a("s_addc_u32 s89, s7, 0")
    a("s_and_b32 s89, s89, 0xffff")
    a(f"s_mov_b32 s90, {XR_BYTES}")

def prep_compute(a):
    KR = 120; VR = 140; SKR = 148; TAP = 164; KW = 196; VU = 236; KV = 148; OUT = 244
    def unpack(dst, src):
        a(f"v_lshlrev_b32 v{dst}, 16, v{src}")
        a(f"v_and_b32 v{dst+1}, 0xffff0000, v{src}")
    a("s_waitcnt vmcnt(7)")
    for e in range(8):
        a(f"v_lshlrev_b32 v{TAP+e}, 16, v{SKR+2*e}")
        a(f"v_and_b32 v{TAP+8+e}, 0xffff0000, v{SKR+2*e}")
        a(f"v_lshlrev_b32 v{TAP+16+e}, 16, v{SKR+2*e+1}")
        a(f"v_and_b32 v{TAP+24+e}, 0xffff0000, v{SKR+2*e+1}")
    a("s_waitcnt vmcnt(2)")
    for j in range(5):
        for p in range(4): unpack(KW + 8 * j + 2 * p, KR + 4 * j + p)
    for j in range(2):
        kv = KV + 8 * j
        for p in range(4):
            a(f"v_pk_mul_f32 {vr(kv+2*p,2)}, {vr(KW+8*j+2*p,2)}, {vr(TAP+24+2*p,2)}")
        for d in (2, 1, 0):
            for p in range(4):
                a(f"v_pk_fma_f32 {vr(kv+2*p,2)}, {vr(KW+8*(j+3-d)+2*p,2)}, {vr(TAP+8*d+2*p,2)}, {vr(kv+2*p,2)}")
    a("s_waitcnt vmcnt(0)")
    for j in range(2):
        kv = KV + 8 * j
        for p in range(4): unpack(VU + 2 * p, VR + 4 * j + p)
        for p in range(4):
            a(f"v_pk_mul_f32 {vr(kv+2*p,2)}, {vr(kv+2*p,2)}, {vr(VU+2*p,2)}")
    for e in range(8):
        a(f"v_cvt_pk_bf16_f32 v{OUT+e}, v{KV+8+e}, v{KV+e}")
        a(f"buffer_store_dword v{OUT+e}, v117, s[88:91], s3 offen")
        if e < 7: a("s_add_u32 s3, s3, 4096")

def gate(a, name):
    a(f"s_load_dwordx2 s[4:5], s[0:1], {KA['q']}")
    a(f"s_load_dwordx2 s[30:31], s[0:1], {KA['gate_w']}")
    a(f"s_load_dwordx2 s[6:7], s[0:1], {KA['ws']}")
    a("v_lshrrev_b32 v1, 6, v0")
    a("v_and_b32 v2, 63, v0")
    a("v_readfirstlane_b32 s22, v1")
    a("v_and_b32 v3, 7, v2")
    a("v_lshrrev_b32 v4, 3, v2")
    a("s_sub_u32 s24, s28, 252")
    a("s_lshl_b32 s24, s24, 3")
    a("s_add_u32 s24, s24, s22")
    a(f"s_mul_i32 s25, s24, {64*1152}")
    a("v_mul_u32_u24 v5, 1152, v4")
    a("v_lshl_add_u32 v5, v3, 4, v5")
    a("v_lshlrev_b32 v6, 4, v3")
    a("s_waitcnt lgkmcnt(0)")
    srd(a, 8, 4, 5, 2048 * 1152)
    srd(a, 12, 30, 31, 1152)
    a(f"s_add_u32 s16, s6, {WS_G}")
    a("s_addc_u32 s17, s7, 0")
    a("s_and_b32 s17, s17, 0xffff")
    a("s_mov_b32 s18, 8192")
    a("s_mov_b32 s19, 0x00020000")
    GW = 16; QQ = 64
    for j in range(9): a(f"buffer_load_dwordx4 {vr(GW+4*j,4)}, v6, s[12:15], 0 offen offset:{128*j}")
    def qld(st):
        b = QQ + (st % 5) * 36
        for j in range(9): a(f"buffer_load_dwordx4 {vr(b+4*j,4)}, v5, s[8:11], s25 offen offset:{128*j}")
        a(f"s_add_u32 s25, s25, {8*1152}")
    for st in range(5): qld(st)
    a("v_mov_b32 v10, 0")
    for st in range(8):
        b = QQ + (st % 5) * 36
        a(f"s_waitcnt vmcnt({9 * (min(8, st + 5) - st - 1)})")
        a("v_mov_b32 v8, 0"); a("v_mov_b32 v9, 0")
        for k in range(36): a(f"v_dot2_f32_bf16 v{8+(k&1)}, v{b+k}, v{GW+k}, v{8+(k&1)}")
        a("s_nop 3")
        if st + 5 < 8: qld(st + 5)
        a("v_add_f32 v8, v8, v9")
        a("s_nop 1")
        a("v_add_f32_dpp v8, v8, v8 quad_perm:[1,0,3,2] row_mask:0xf bank_mask:0xf")
        a("s_nop 1")
        a("v_add_f32_dpp v8, v8, v8 quad_perm:[2,3,0,1] row_mask:0xf bank_mask:0xf")
        a("s_nop 1")
        a("v_add_f32_dpp v8, v8, v8 row_half_mirror row_mask:0xf bank_mask:0xf")
        a(f"v_cmp_eq_u32 vcc, {st}, v3")
        a("v_cndmask_b32 v10, v10, v8, vcc")
    a("v_cvt_pk_bf16_f32 v11, v10, v10")
    a("v_lshlrev_b32 v10, 16, v11")
    a("v_mul_f32 v10, 0xbfb8aa3b, v10")
    a("v_exp_f32 v10, v10")
    a("s_nop 0")
    a("v_add_f32 v10, 1.0, v10")
    a("v_rcp_f32 v10, v10")
    a("s_nop 0")
    a("v_cvt_pk_bf16_f32 v11, v10, v10")
    a("v_lshlrev_b32 v10, 16, v11")
    a("v_lshl_add_u32 v11, v3, 3, v4")
    a("v_lshlrev_b32 v11, 2, v11")
    a("s_lshl_b32 s24, s24, 8")
    a("buffer_store_dword v10, v11, s[16:19], s24 offen")
    a("s_endpgm")


def final4(a, name="final_kernel", NS=NSL):
    kernel_header(a, name)
    a("s_cmp_ge_u32 s2, 288")
    a(f"s_cbranch_scc1 {name}_done")
    a(f"s_load_dwordx2 s[4:5], s[0:1], {KA['q']}")
    a(f"s_load_dwordx2 s[22:23], s[0:1], {KA['out']}")
    a(f"s_load_dwordx2 s[6:7], s[0:1], {KA['ws']}")
    a("v_lshrrev_b32 v1, 6, v0")
    a("v_and_b32 v2, 63, v0")
    a("v_readfirstlane_b32 s24, v1")
    a("v_lshrrev_b32 v3, 4, v2")
    a("v_and_b32 v4, 15, v2")
    a("s_lshl_b32 s25, s2, 3")
    a("s_add_u32 s25, s25, s24")
    a("s_mul_i32 s26, s25, 3641")
    a("s_lshr_b32 s26, s26, 16")
    a("s_mul_i32 s27, s26, 18")
    a("s_sub_u32 s27, s25, s27")
    a("s_lshl_b32 s29, s25, 10")
    a("v_lshlrev_b32 v6, 4, v2")
    a("v_mul_u32_u24 v9, 1152, v4")
    a("v_lshl_add_u32 v9, v3, 4, v9")
    a(f"s_mul_i32 s30, s26, {16*1152}")
    a("s_lshl_b32 s31, s27, 6")
    a("s_add_u32 s30, s30, s31")
    a("v_lshlrev_b32 v10, 2, v4")
    a("s_lshl_b32 s32, s26, 6")
    a("s_waitcnt lgkmcnt(0)")
    srd(a, 8, 4, 5, 2048 * 1152)
    srd(a, 16, 22, 23, 2048 * 1152)
    a(f"s_add_u32 s36, s6, {WS_P}")
    a("s_addc_u32 s37, s7, 0")
    a("s_and_b32 s37, s37, 0xffff")
    a(f"s_mov_b32 s38, {(NS+1)*PSLAB}")
    a("s_mov_b32 s39, 0x00020000")
    a(f"s_add_u32 s40, s6, {WS_G}")
    a("s_addc_u32 s41, s7, 0")
    a("s_and_b32 s41, s41, 0xffff")
    a("s_mov_b32 s42, 8192")
    a("s_mov_b32 s43, 0x00020000")
    for ks in range(NS + 1):
        a(f"buffer_load_dwordx4 {vr(16+4*ks,4)}, v6, s[36:39], s29 offen")
        if ks < NS: a(f"s_add_u32 s29, s29, {PSLAB}")
    a("buffer_load_dwordx4 v[40:43], v9, s[8:11], s30 offen")
    a("buffer_load_dword v12, v10, s[40:43], s32 offen")
    B = 48; T = 56; Q = 64
    for ks in range(NS):
        a(f"s_waitcnt vmcnt({NS + 2 - ks})")
        d = B if ks == 0 else T
        for i in range(4):
            a(f"v_lshlrev_b32 v{d+2*i}, 16, v{16+4*ks+i}")
            a(f"v_and_b32 v{d+2*i+1}, 0xffff0000, v{16+4*ks+i}")
        if ks:
            for i in range(4): a(f"v_pk_add_f32 {vr(B+2*i,2)}, {vr(B+2*i,2)}, {vr(T+2*i,2)}")
    a("s_waitcnt vmcnt(0)")
    a("v_sub_f32 v13, 1.0, v12")
    for i in range(4):
        a(f"v_lshlrev_b32 v{T+2*i}, 16, v{16+4*NS+i}")
        a(f"v_and_b32 v{T+2*i+1}, 0xffff0000, v{16+4*NS+i}")
        a(f"v_lshlrev_b32 v{Q+2*i}, 16, v{40+i}")
        a(f"v_and_b32 v{Q+2*i+1}, 0xffff0000, v{40+i}")
    for i in range(4): a(f"v_pk_mul_f32 {vr(T+2*i,2)}, {vr(T+2*i,2)}, {vr(Q+2*i,2)}")
    for i in range(8):
        a(f"v_mul_f32 v{B+i}, v{B+i}, v13")
        a(f"v_fmac_f32 v{B+i}, v{T+i}, v12")
    for i in range(4): a(f"v_cvt_pk_bf16_f32 v{44+i}, v{B+2*i}, v{B+2*i+1}")
    a("buffer_store_dwordx4 v[44:47], v9, s[16:19], s30 offen")
    a.label(f"{name}_done")
    a("s_endpgm")
    kernel_desc(a, name, 72, 48)
```

```python
from gen_common import *
from gen_conv4 import prep_loads, prep_compute, gate

G1_LDS = 155648
WBUF = 32768
XA0 = 98304
XAS = 14336
SLOT = 18432
RSLOT = [0, 32768, 65536, 98304, 116736, 135168]
P = 7
RING = 6
vW0, vW1, vX0, vX1, vX2, vRW, vRX0, vRX1, vST = 1, 2, 3, 4, 5, 6, 7, 8, 9
TMP = 10
vRW2 = 22
vPF = 23
FR = 24
ACC = 48
WR = 112

def slot_addr(q): return RSLOT[(q - 9) % 6]

def gemm1e(a, name="gemm1_kernel", stamp=False, do_epi=True, AB=1, prio=1, pf=0, stmod="sc0 sc1", MV=144, rot=1, il=1, st4=1, w2pf=1, do_prep=1, PFP=12):
    kernel_header(a, name)
    a("s_cmp_ge_u32 s2, 256")
    a(f"s_cbranch_scc1 {name}_done")
    a("s_and_b32 s23, s2, 7")
    a("s_lshr_b32 s29, s2, 3")
    a("s_lshl_b32 s28, s23, 5")
    a("s_add_u32 s28, s28, s29")
    a("s_cmp_ge_u32 s28, 252")
    a(f"s_cbranch_scc1 {name}_side")
    if stamp:
        a("s_memtime s[70:71]")
        a("s_memrealtime s[72:73]")
    a(f"s_load_dwordx2 s[4:5], s[0:1], {KA['q']}")
    a(f"s_load_dwordx4 s[24:27], s[0:1], {KA['w1']}")
    a(f"s_load_dwordx2 s[6:7], s[0:1], {KA['ws']}")
    a(f"s_load_dwordx2 s[76:77], s[0:1], {KA['k']}")
    a(f"s_load_dwordx2 s[84:85], s[0:1], {KA['v']}")
    a(f"s_load_dwordx2 s[88:89], s[0:1], {KA['shift_k']}")
    a("v_lshrrev_b32 v10, 6, v0")
    a("v_and_b32 v11, 63, v0")
    a("v_readfirstlane_b32 s22, v10")
    a("s_mul_i32 s29, s28, 9363")
    a("s_lshr_b32 s30, s29, 16")
    a("s_mul_i32 s29, s30, 7")
    a("s_sub_u32 s31, s28, s29")
    a("s_mul_i32 s32, s31, 18")
    a("s_cmp_eq_u32 s31, 6")
    a("s_cselect_b32 s29, 1, 0")
    a("s_add_u32 s32, s32, s29")
    a("s_lshl_b32 s34, s31, 2")
    a("s_lshl_b32 s35, s30, 1")
    a("s_add_u32 s34, s34, s35")
    a("s_mul_i32 s35, s34, 7282")
    a("s_lshr_b32 s35, s35, 16")
    a("s_mul_i32 s35, s35, 9")
    a("s_sub_u32 s49, s34, s35")
    if not rot: a("s_mov_b32 s49, 0")
    for s in range(9):
        a(f"s_add_u32 s34, s49, {s}")
        a("s_sub_u32 s35, s34, 9")
        a("s_cmp_ge_u32 s34, 9")
        a("s_cselect_b32 s34, s35, s34")
        a(f"s_mul_i32 s{50+s}, s34, {64*9216}")
        a(f"s_lshl_b32 s{92+s}, s34, 7")
    a("v_lshrrev_b32 v12, 4, v11")
    a("v_and_b32 v13, 15, v11")
    a("s_and_b32 s33, s22, 3")
    a("s_lshl_b32 s33, s33, 4")
    a("v_add_u32 v14, s33, v12")
    a("v_mul_u32_u24 v14, 9216, v14")
    a("s_lshl_b32 s33, s30, 8")
    a("v_add_u32 v14, s33, v14")
    a("v_lshlrev_b32 v15, 1, v12")
    a("v_xor_b32 v15, v15, v13")
    a(f"v_lshl_add_u32 v{vW0}, v15, 4, v14")
    a("v_xor_b32 v15, 8, v15")
    a("v_lshl_add_u32 v14, v15, 4, v14")
    a(f"v_add_u32 v{vW1}, {8*9216 - 2048}, v14")
    a("v_lshrrev_b32 v14, 3, v11")
    a("v_and_b32 v15, 7, v11")
    a("v_xor_b32 v15, v15, v12")
    a("v_mul_u32_u24 v14, 1152, v14")
    a(f"v_lshl_add_u32 v{vX0}, v15, 4, v14")
    a("v_xor_b32 v15, 4, v15")
    a("v_lshl_add_u32 v14, v15, 4, v14")
    a(f"v_add_u32 v{vX1}, {8*1152 - 1024}, v14")
    a("s_lshr_b32 s33, s22, 2")
    a("s_and_b32 s34, s22, 3")
    a("s_lshl_b32 s34, s34, 12")
    a("s_lshl_b32 s40, s33, 14")
    a("s_add_u32 s40, s40, s34")
    a("s_xor_b32 s60, s40, 16384")
    a("s_add_u32 s34, s32, s22")
    a(f"s_mul_i32 s41, s34, {SLOT}")
    a("s_xor_b32 s35, s22, 4")
    a("s_add_u32 s34, s32, s35")
    a(f"s_mul_i32 s61, s34, {SLOT}")
    a("s_lshl_b32 s42, s22, 11")
    a("s_lshl_b32 s62, s35, 11")
    a("s_cmp_eq_u32 s22, 7")
    a("s_cselect_b64 s[64:65], 0, -1")
    a("s_cmp_eq_u32 s35, 7")
    a("s_cselect_b64 s[66:67], 0, -1")
    a("s_waitcnt lgkmcnt(0)")
    srd(a, 8, 4, 5, 2048 * 1152)
    a("s_cmp_eq_u32 s33, 0")
    a("s_cselect_b32 s12, s24, s26")
    a("s_cselect_b32 s13, s25, s27")
    a("s_cselect_b32 s36, s26, s24")
    a("s_cselect_b32 s37, s27, s25")
    a("s_and_b32 s13, s13, 0xffff")
    a("s_and_b32 s37, s37, 0xffff")
    a(f"s_mov_b32 s14, {576*9216}")
    a("s_mov_b32 s15, 0x00020000")
    a(f"s_mov_b32 s38, {576*9216}")
    a("s_mov_b32 s39, 0x00020000")
    a(f"s_load_dwordx2 s[24:25], s[0:1], {KA['w2']}")
    a(f"s_load_dwordx2 s[26:27], s[0:1], {KA['ssm_k']}")

    def stageA_dma(s, own=True):
        sr = "s[12:15]" if own else "s[36:39]"
        mW, sX, mX, ex = ("s40", "s41", "s42", "s[64:65]") if own else ("s60", "s61", "s62", "s[66:67]")
        g = []
        g.append([f"s_add_u32 m0, {mW}, {(s % 3) * WBUF}", f"s_add_u32 s21, s{50+s}, {4*9216 - 1024}",
                  f"buffer_load_dwordx4 v{vW0}, {sr}, s{50+s} offen lds"])
        g.append([f"buffer_load_dwordx4 v{vW0}, {sr}, s21 offen offset:1024 lds"])
        g.append([f"buffer_load_dwordx4 v{vW1}, {sr}, s{50+s} offen offset:2048 lds"])
        g.append([f"buffer_load_dwordx4 v{vW1}, {sr}, s21 offen offset:3072 lds"])
        g.append([f"s_add_u32 m0, {mX}, {XA0 + (s % 4) * XAS}", f"s_add_u32 s45, {sX}, s{92+s}", f"s_mov_b64 exec, {ex}",
                  f"buffer_load_dwordx4 v{vX0}, s[8:11], s45 offen lds"])
        g.append([f"buffer_load_dwordx4 v{vX1}, s[8:11], s45 offen offset:1024 lds", "s_mov_b64 exec, -1"])
        return g
    def subB_dma(q):
        sa = slot_addr(q); j = q - 2
        g = []
        g.append([f"s_add_u32 m0, s42, {sa}", f"s_add_u32 s45, s44, {j*SLOT}", f"buffer_load_dwordx4 v{vX0}, s[8:11], s45 offen lds"])
        g.append([f"buffer_load_dwordx4 v{vX1}, s[8:11], s45 offen offset:1024 lds"])
        g.append([f"s_add_u32 m0, s43, {sa}", f"s_add_u32 s45, s68, {j*SLOT}", "s_mov_b64 exec, 0xffff", f"buffer_load_dwordx4 v{vX2}, s[8:11], s45 offen lds", "s_mov_b64 exec, -1"])
        return g
    def emit(groups):
        for g in groups:
            for x in g: a(x)

    def rest_setup():
        a("v_bfe_u32 v14, v11, 3, 1")
        a("s_lshl_b32 s34, s22, 1")
        a("v_add_u32 v14, s34, v14")
        a("v_mul_u32_u24 v14, 1152, v14")
        a("v_and_b32 v15, 7, v11")
        a("v_xor_b32 v15, s22, v15")
        a("v_lshl_add_u32 v14, v15, 4, v14")
        a("s_add_u32 s34, s49, s22")
        a("s_sub_u32 s35, s34, 9")
        a("s_cmp_ge_u32 s34, 9")
        a("s_cselect_b32 s34, s35, s34")
        a("s_lshl_b32 s63, s34, 7")
        a(f"v_mov_b32 v{vX2}, v14")
        a("v_lshrrev_b32 v14, 2, v13")
        a("v_and_b32 v15, 1, v12")
        a("v_lshl_add_u32 v15, v15, 2, v14")
        a("v_xor_b32 v15, s22, v15")
        a("v_lshl_add_u32 v14, v12, 3, v14")
        a("v_lshlrev_b32 v14, 8, v14")
        a("v_lshl_add_u32 v14, v15, 5, v14")
        a("v_and_b32 v15, 3, v11")
        a(f"v_lshl_add_u32 v{vRW}, v15, 3, v14")
        a(f"v_add_u32 v{vRW2}, 0x10000, v{vRW}")
        a("v_lshrrev_b32 v14, 1, v13")
        a("v_xor_b32 v14, v14, v12")
        a("v_lshlrev_b32 v15, 7, v13")
        a("v_lshl_add_u32 v14, v14, 4, v15")
        a(f"v_add_u32 v{vRX0}, {XA0}, v14")
        a(f"v_xor_b32 v{vRX1}, 64, v{vRX0}")
        a("s_lshl_b32 s34, s30, 3")
        a("s_add_u32 s34, s34, s22")
        a("s_lshr_b32 s35, s34, 2")
        a("s_lshl_b32 s35, s35, 18")
        a("s_and_b32 s34, s34, 3")
        a("s_lshl_b32 s34, s34, 9")
        a("s_add_u32 s34, s34, s35")
        a("v_lshlrev_b32 v14, 5, v13")
        a("v_lshl_add_u32 v14, v12, 3, v14")
        a(f"v_add_u32 v{vST}, s34, v14")
        a("v_lshlrev_b32 v14, 5, v13")
        a("v_lshrrev_b32 v15, 1, v12")
        a("v_lshl_add_u32 v14, v15, 4, v14")
        a("v_and_b32 v15, 1, v12")
        a("v_lshl_add_u32 v14, v15, 11, v14")
        a(f"v_add_u32 v{vPF}, s34, v14")
        a("s_lshl_b32 s43, s22, 8")
        a("s_add_u32 s43, s43, 16384")
        a(f"s_mul_i32 s44, s32, {SLOT}")
        a("s_add_u32 s68, s44, s100")
        a("s_add_u32 s44, s44, s63")
        a("s_mov_b32 s46, 0xbfb8aa3b")
        a("s_lshl_b32 s47, s32, 11")
        srd(a, 16, 6, 7, H_BYTES)

    def prefetch():
        a("s_mul_i32 s50, s30, 7")
        a("s_lshl_b32 s51, s23, 5")
        a("s_max_u32 s52, s50, s51")
        a("s_add_u32 s50, s50, 7")
        a("s_add_u32 s51, s51, 32")
        a("s_min_u32 s50, s50, s51")
        a("s_sub_u32 s50, s50, s52")
        a("s_sub_u32 s52, s28, s52")
        a("v_subrev_u32 v14, 256, v0")
        a("v_mul_lo_u32 v15, v14, s50")
        a("v_add_u32 v15, s52, v15")
        a("s_lshl_b32 s51, s50, 8")
        a("s_lshl_b32 s53, s30, 8")
        a(f"s_add_u32 s53, s53, {192*9216}")
        n = 0
        for it in range(3):
            a("v_cmp_gt_u32 vcc, 768, v15")
            a("v_lshrrev_b32 v16, 1, v15")
            a("v_mul_u32_u24 v16, 9216, v16")
            a("v_and_b32 v17, 1, v15")
            a("v_lshl_add_u32 v16, v17, 7, v16")
            a("s_and_b64 exec, exec, vcc")
            a(f"buffer_load_dword v{vPF}, v16, s[12:15], s53 offen")
            a(f"buffer_load_dword v{vPF}, v16, s[36:39], s53 offen")
            n += 2
            if it < 2: a("v_add_u32 v15, s51, v15")
        a("s_mov_b64 exec, -1")
        a("s_and_b32 s50, s28, 31")
        a(f"s_mul_i32 s50, s50, {576*128}")
        a("v_lshlrev_b32 v16, 7, v14")
        a(f"buffer_load_dword v{vPF}, v16, s[8:11], s50 offen")
        a(f"s_add_u32 s50, s50, {256*128}")
        a(f"buffer_load_dword v{vPF}, v16, s[8:11], s50 offen")
        a(f"s_add_u32 s50, s50, {256*128}")
        a("v_cmp_gt_u32 vcc, 64, v14")
        a("s_and_b64 exec, exec, vcc")
        a(f"buffer_load_dword v{vPF}, v16, s[8:11], s50 offen")
        a("s_mov_b64 exec, -1")
        return n + 3

    a("s_cmp_eq_u32 s33, 0")
    a(f"s_cbranch_scc0 {name}_proY")
    def with_prep(tag, wait):
        if do_prep:
            a("s_cmp_ge_u32 s31, 4")
            a(f"s_cbranch_scc1 {name}_np{tag}")
            prep_loads(a)
            rest_setup()
            a(wait)
            prep_compute(a)
            a(f"s_branch {name}_npe{tag}")
            a.label(f"{name}_np{tag}")
        rest_setup()
        a(wait)
        a.label(f"{name}_npe{tag}")
    emit(stageA_dma(0, True)); emit(stageA_dma(0, False))
    with_prep("x", "s_waitcnt vmcnt(0) lgkmcnt(0)")
    a("s_barrier")
    a(f"s_branch {name}_pro_end")
    a.label(f"{name}_proY")
    emit(stageA_dma(1, True)); emit(stageA_dma(1, False))
    with_prep("y", "s_waitcnt lgkmcnt(0)")
    a("s_barrier")
    emit(stageA_dma(2, True)); emit(stageA_dma(2, False))
    a.label(f"{name}_pro_end")
    a("s_cmp_ge_u32 s31, 5")
    a(f"s_cbranch_scc1 {name}_v19")

    def body(NSUB):
        NPER = 9 + NSUB - P
        vm = dict(n=0)
        landed = {2: 0}
        lg = dict(n=0); lgidx = {}; waited = dict(lg=0)
        def wreg(mat, ks): return WR + (mat * 18 + ks) * 4
        def acc(sub, mat): return ACC + (sub % 8) * 8 + mat * 4
        def frags(p):
            if p < 9: return [(tt, sub, 2 * p + tt) for tt in range(2) for sub in range(P)]
            return [(ks & 1, p - 2, ks) for ks in range(18)]
        cur_base = dict(v=XA0)
        ring = dict(n=0)
        rslot = {}
        def emit_read(p, i):
            tt, sub, ks = frags(p)[i]
            if p < 9:
                off = XA0 + (p % 4) * XAS + sub * 2048
            else:
                sa = slot_addr(p)
                if i == 0 and not (sa >= cur_base['v'] and sa + SLOT - cur_base['v'] <= 65536):
                    d = sa - cur_base['v']
                    a(f"v_add_u32 v{vRX0}, {d & 0xffffffff}, v{vRX0}")
                    a(f"v_add_u32 v{vRX1}, {d & 0xffffffff}, v{vRX1}")
                    cur_base['v'] = sa
                off = sa + (ks >> 1) * 2048
            off -= cur_base['v']
            assert 0 <= off < 65536
            r = FR + (ring['n'] % RING) * 4; ring['n'] += 1
            rslot[(p, i)] = r
            a(f"ds_read_b128 {vr(r, 4)}, v{vRX1 if tt else vRX0} offset:{off}")
            lg['n'] += 1; lgidx[("X", p, i)] = lg['n']
        def emit_wread(s, tt, mat):
            b = s % 3
            base = f"v{vRW2}" if b == 2 else f"v{vRW}"
            off = ((b & 1) * WBUF if b < 2 else 0) + mat * 16384 + tt * 8192
            r = wreg(mat, 2 * s + tt)
            a(f"ds_read_b64_tr_b16 {vr(r,2)}, {base} offset:{off}")
            a(f"ds_read_b64_tr_b16 {vr(r+2,2)}, {base} offset:{off + 1024}")
            lg['n'] += 2; lgidx[("W", 2 * s + tt, mat)] = lg['n']
        def wait_lg(tag):
            need = lgidx[tag]
            if need <= waited['lg']: return
            n = lg['n'] - need
            a(f"s_waitcnt lgkmcnt({min(n, 15)})")
            waited['lg'] = need if n <= 15 else lg['n'] - 15
        def preload_list(p):
            o = []
            if p < 9:
                o += [lambda: emit_wread(p, 0, 0), lambda: emit_read(p, 0), lambda: emit_wread(p, 0, 1)]
                for i in range(1, RING): o.append(lambda i=i: emit_read(p, i))
                o += [lambda: emit_wread(p, 1, 0), lambda: emit_wread(p, 1, 1)]
            else:
                for i in range(RING): o.append(lambda i=i: emit_read(p, i))
            return o
        def preload(p):
            for f in preload_list(p): f()
        epq = []
        def add_epi(sub, avail):
            G = acc(sub, 0); U = acc(sub, 1); T = TMP; O = TMP + 8 + (sub & 1) * 2
            ops = []
            for r in range(4): ops.append((4, [f"v_mul_f32 v{T+r}, s46, v{G+r}"]))
            for r in range(4): ops.append((8, [f"v_exp_f32 v{T+r}, v{T+r}"]))
            for r in range(4): ops.append((4, [f"v_mul_f32 v{T+4+r}, v{G+r}, v{U+r}"]))
            for r in range(4): ops.append((4, [f"v_add_f32 v{T+r}, 1.0, v{T+r}"]))
            for r in range(4): ops.append((8, [f"v_rcp_f32 v{T+r}, v{T+r}"]))
            for r in range(4): ops.append((4, [f"v_mul_f32 v{T+4+r}, v{T+4+r}, v{T+r}"]))
            ops.append((4, [f"v_cvt_pk_bf16_f32 v{O}, v{T+4}, v{T+5}"]))
            ops.append((4, [f"v_cvt_pk_bf16_f32 v{O+1}, v{T+6}, v{T+7}"]))
            if st4 and (sub & 1):
                O0 = TMP + 8
                ops.append((8, ["s_nop 0", f"v_permlane16_swap_b32 v{O0}, v{O0+2}", f"v_permlane16_swap_b32 v{O0+1}, v{O0+3}"]))
                st = ["s_nop 0", f"buffer_store_dwordx4 {vr(O0,4)}, v{vPF}, s[16:19], s47 offen {stmod}", "s_add_u32 s47, s47, 4096"]
                ops.append((0, st, "vm"))
            elif st4 and sub < NSUB - 1:
                ops.append((0, [], "novm"))
            else:
                st = [f"buffer_store_dwordx2 {vr(O,2)}, v{vST}, s[16:19], s47 offen offset:{(sub&1)*2048} {stmod}"]
                if sub & 1: st.append("s_add_u32 s47, s47, 4096")
                ops.append((0, st, "vm"))
            for o in ops: epq.append((o[0], o[1], avail, len(o) > 2, sub))
        if do_epi:
            for sub in range(NSUB): add_epi(sub, max(8, sub + 2))
        done_sub = set()
        sched = {p: [] for p in range(NPER)}
        for p in range(NPER):
            if p + 3 <= 11: sched[p] = [p + 3]
        nq = 12
        for p in range(9, NPER):
            k = 0
            while nq < NPER and nq - 6 <= p - 1 and k < 2:
                sched[p].append(nq); nq += 1; k += 1
        preload(0)
        a(f"s_cmp_eq_u32 s33, 0")
        a(f"s_cbranch_scc1 {name}_skipY{NSUB}")
        a("s_waitcnt vmcnt(12) lgkmcnt(0)")
        a("s_barrier")
        a.label(f"{name}_skipY{NSUB}")
        for p in range(NPER):
            fr = frags(p); nf = len(fr); mcred = 0.0
            if prio: a("s_setprio 1")
            for i in range(nf):
                tt, sub, ks = fr[i]
                if ks == 0 and do_epi and sub >= 8: assert (sub - 8) in done_sub
                for mat in range(2):
                    wait_lg(("X", p, i))
                    if p < 9: wait_lg(("W", ks, mat))
                    c = "0" if ks == 0 else vr(acc(sub, mat), 4)
                    a(f"v_mfma_f32_16x16x32_bf16 {vr(acc(sub,mat),4)}, {vr(wreg(mat,ks),4)}, {vr(rslot[(p,i)],4)}, {c}")
                    if mat == 0 and p >= 9:
                        mcred = min(mcred + MV / 18.0, 12); u = 0
                        while epq and epq[0][2] <= p - 1 and not epq[0][3] and epq[0][0] <= mcred and u + epq[0][0] <= 8:
                            c_, ins, av, isvm, sb = epq.pop(0)
                            for x in ins: a(x)
                            mcred -= c_; u += c_
                if i + RING < nf: emit_read(p, i + RING)
                if i == nf - 1 - AB:
                    a("s_waitcnt lgkmcnt(0)"); waited['lg'] = lg['n']
                    if prio: a("s_setprio 3")
                    if p == NPER - 1:
                        a(f"s_cmp_eq_u32 s33, 0")
                        a(f"s_cbranch_scc0 {name}_skipA{NSUB}")
                        a("s_barrier")
                        a.label(f"{name}_skipA{NSUB}")
                    else:
                        a("s_barrier")
            if prio: a("s_setprio 0")
            if stamp and p == 8:
                a("s_memtime s[82:83]"); a("s_waitcnt lgkmcnt(0)")
            if p == NPER - 1: break
            pl = preload_list(p + 1)
            if not il:
                for f in pl: f()
                pl = []
            dq = []
            for q in sched[p]:
                gs = stageA_dma(q) if q < 9 else subB_dma(q)
                for k, gg in enumerate(gs): dq.append((gg, q if k == len(gs) - 1 else None))
            if w2pf and p == PFP:
                pfo = ["s_lshl_b32 s34, s28, 3", "s_add_u32 s34, s34, s22", "s_sub_u32 s35, s34, 648", f"s_mov_b32 s38, {576*4096}",
                       "s_cmp_lt_u32 s34, 648",
                       "s_cselect_b32 s34, s34, s35", "s_cselect_b32 s36, s24, s26", "s_cselect_b32 s37, s25, s27",
                       f"s_cselect_b32 s38, {4608*1152}, s38", "s_and_b32 s37, s37, 0xffff", "s_lshl_b32 s34, s34, 13",
                       "v_and_b32 v0, 63, v0", "v_lshlrev_b32 v0, 7, v0", "v_add_u32 v0, s34, v0",
                       "buffer_load_dword v0, v0, s[36:39], 0 offen"]
                dq.append((pfo, None))
            def pop_dma():
                gg, q = dq.pop(0)
                for x in gg: a(x)
                vm['n'] += 1
                if q is not None: landed[q] = vm['n']
            if p >= 8 and epq:
                rem = sum(o[0] for o in epq if o[4] < NSUB - 1)
                budget = rem / (NPER - 1 - p) - MV * 0.9
                used = 0
                step = budget / (len(dq) + 0.5) if dq else 1e9
                nxt_d = 0; nxt_p = 8
                while epq and epq[0][2] <= p and (used + epq[0][0] <= budget + 3 or epq[0][0] == 0):
                    if dq and used >= nxt_d:
                        pop_dma(); nxt_d += step
                    elif pl and used >= nxt_p:
                        pl.pop(0)(); nxt_p = used + 8
                    c, ins, av, isvm, sub = epq.pop(0)
                    for x in ins: a(x)
                    used += c
                    if isvm:
                        done_sub.add(sub)
                        if ins: vm['n'] += 1
            while dq:
                pop_dma()
                for k in range(2):
                    if pl: pl.pop(0)()
            for f in pl: f()
            if p + 2 < NPER:
                a(f"s_waitcnt vmcnt({min(63, vm['n'] - landed[p + 2])}) lgkmcnt(0)")
            else:
                a("s_waitcnt lgkmcnt(0)")
            waited['lg'] = lg['n']
            a("s_barrier")
        if stamp:
            a("s_memtime s[74:75]")
        a("s_nop 7")
        a("s_nop 3")
        while epq:
            c, ins, av, isvm, sub = epq.pop(0)
            for x in ins: a(x)
        if stamp:
            a("s_waitcnt vmcnt(0)")
            a("s_memrealtime s[80:81]")
            a("s_waitcnt lgkmcnt(0)")
            for d, s in ((74, 70), (82, 70)): a(f"s_sub_u32 s{d}, s{d}, s{s}")
            for k, s in enumerate((72, 80, 82, 82, 74, 28, 82, 82)): a(f"v_mov_b32 v{24+k}, s{s}")
            a("s_lshl_b32 s70, s2, 3")
            a("s_add_u32 s70, s70, s22")
            a("s_lshl_b32 s70, s70, 5")
            a("s_add_u32 s70, s70, 0x8000000")
            a("v_mov_b32 v32, s70")
            a("s_mov_b64 exec, 1")
            a("global_store_dwordx4 v32, v[24:27], s[6:7]")
            a("global_store_dwordx4 v32, v[28:31], s[6:7] offset:16")
        a("s_endpgm")
    body(18)
    a.label(f"{name}_v19")
    body(19)
    a.label(f"{name}_side")
    gate(a, name)
    a.label(f"{name}_done")
    a("s_endpgm")
    kernel_desc(a, name, 256, 102)

if __name__ == "__main__":
    import sys
    opts = sys.argv[2:]
    a = Asm()
    a.raw(f"; @launch kernel=gemm1_kernel grid=(256,1,1) block=(512,1,1) lds={G1_LDS}")
    a.raw('.amdgcn_target "amdgcn-amd-amdhsa--gfx950"')
    kw = {}
    for o in opts:
        if "=" in o:
            k, v = o.split("="); kw[k] = float(v) if "." in v else int(v)
    gemm1e(a, stamp="stamp" in opts, do_epi="noepi" not in opts, **kw)
    open(sys.argv[1], "w").write(a.text())
```

```python
from gen_common import *
from gen_conv4 import *

G2_STAGE = 40960
NSTG = 4
G2_LDS = NSTG * G2_STAGE
PB_BYTES = 4 * 2048 * 576 * 2
CW = 12928
C1OFF = 4160; XOFF = 8320

def gemm2d(a, name="gemm2_kernel", stamp=False, N1=18, do_conv=False, stmod="sc0 sc1", pp=1, AB=1, convonly=0, noconv=0):
    kernel_header(a, name)
    a("s_cmp_ge_u32 s2, 256")
    a(f"s_cbranch_scc1 {name}_done")
    a("s_and_b32 s28, s2, 7")
    a("s_lshr_b32 s29, s2, 3")
    a("s_cmp_lt_u32 s29, 8")
    a(f"s_cbranch_scc1 {name}_conv")
    if convonly: a(f"s_branch {name}_done")
    if stamp:
        a("s_memtime s[70:71]")
        a("s_memrealtime s[72:73]")
    a(f"s_load_dwordx2 s[4:5], s[0:1], {KA['w2']}")
    a(f"s_load_dwordx2 s[6:7], s[0:1], {KA['ws']}")
    a("v_lshrrev_b32 v1, 6, v0")
    a("v_and_b32 v2, 63, v0")
    a("v_readfirstlane_b32 s22, v1")
    a("s_mul_i32 s28, s28, 24")
    a("s_add_u32 s23, s28, s29")
    a("s_sub_u32 s23, s23, 8")
    a("s_mul_i32 s29, s23, 1366")
    a("s_lshr_b32 s30, s29, 16")
    a("s_mul_i32 s29, s30, 48")
    a("s_sub_u32 s28, s23, s29")
    a("s_mul_i32 s29, s28, 21846")
    a("s_lshr_b32 s31, s29, 16")
    a("s_mul_i32 s29, s31, 3")
    a("s_sub_u32 s34, s28, s29")
    a("s_and_b32 s47, s22, 3")
    a("s_and_b32 s32, s22, 1")
    a("s_lshr_b32 s33, s47, 1")
    a(f"s_mul_i32 s35, s30, {N1}")
    a("v_lshrrev_b32 v3, 4, v2")
    a("v_and_b32 v4, 15, v2")
    a("v_lshlrev_b32 v8, 4, v2")
    a("s_lshl_b32 s37, s47, 12")
    a("v_add_u32 v8, s37, v8")
    a("s_mul_i32 s37, s47, 384")
    a("s_movk_i32 s38, 2731")
    a("s_movk_i32 s39, 1152")
    a("s_mul_i32 s40, s34, 384")
    for j in range(6):
        d = 10 + j
        a(f"v_add_u32 v5, {64*j}, v2")
        a("v_add_u32 v5, s37, v5")
        a("v_mul_lo_u32 v6, v5, s38")
        a("v_lshrrev_b32 v6, 16, v6")
        a("v_mul_u32_u24 v7, 24, v6")
        a("v_sub_u32 v7, v5, v7")
        a("v_bfe_u32 v16, v6, 1, 1")
        a("v_bfe_u32 v17, v6, 3, 1")
        a("v_lshl_add_u32 v16, v17, 1, v16")
        a("v_lshlrev_b32 v16, 1, v16")
        a("v_xor_b32 v7, v7, v16")
        a("v_mul_lo_u32 v6, v6, s39")
        a("v_lshl_add_u32 v6, v7, 4, v6")
        a("v_add_u32 v6, s40, v6")
        a(f"v_subrev_u32 v{d}, {1024*(j%3)}, v6")
    a("s_lshl_b32 s20, s31, 14")
    a("s_lshl_b32 s41, s35, 18")
    a("s_add_u32 s20, s20, s41")
    a(f"s_mul_i32 s21, s35, {64*1152}")
    a("s_lshl_b32 s43, s47, 12")
    a("s_mul_i32 s44, s47, 6144")
    a("s_add_u32 s44, s44, 16384")
    a("s_waitcnt lgkmcnt(0)")
    srd(a, 8, 4, 5, 4608 * 1152)
    srd(a, 12, 6, 7, H_BYTES)

    def dma_ops(stage, adv=1):
        b = (stage % NSTG) * G2_STAGE
        ops = []
        ops.append([f"s_add_u32 m0, s43, {b}", "s_nop 0", "buffer_load_dwordx4 v8, s[12:15], s20 offen lds"])
        for j in range(1, 4):
            ops.append([f"buffer_load_dwordx4 v8, s[12:15], s20 offen offset:{1024*j} lds"])
        for hh in range(2):
            for j in range(3):
                o = []
                if j == 0:
                    o = [f"s_add_u32 m0, s44, {b + hh*3072}", "s_nop 0"]
                off = f" offset:{1024*j}" if j else ""
                o.append(f"buffer_load_dwordx4 v{10+hh*3+j}, s[8:11], s21 offen{off} lds")
                ops.append(o)
        ops[-1] += [f"s_add_u32 s20, s20, {262144*adv}", f"s_add_u32 s21, s21, {64*1152*adv}"]
        return ops
    def emit(ops):
        for o in ops:
            for x in o: a(x)

    a("s_cmp_ge_u32 s22, 4")
    a(f"s_cbranch_scc1 {name}_prod")
    emit(dma_ops(0))
    a("v_lshrrev_b32 v5, 1, v3")
    a("v_lshlrev_b32 v5, 9, v5")
    a("v_and_b32 v6, 1, v3")
    a("v_lshl_add_u32 v5, v6, 4, v5")
    a("s_lshl_b32 s41, s32, 13")
    a("v_lshl_add_u32 v7, v4, 5, v5")
    a("v_add_u32 v16, s41, v7")
    for b in range(1, NSTG):
        a(f"v_add_u32 v{16+b}, {b*G2_STAGE}, v16")
    a("v_lshrrev_b32 v5, 2, v4")
    a("v_lshl_add_u32 v6, v3, 3, v5")
    a("v_mul_u32_u24 v6, 384, v6")
    a("v_and_b32 v7, 1, v2")
    a("v_lshl_add_u32 v6, v7, 4, v6")
    a("v_add_u32 v6, 16384, v6")
    a("v_lshrrev_b32 v5, 1, v5")
    a("v_and_b32 v7, 1, v3")
    a("v_lshl_add_u32 v5, v7, 1, v5")
    a("v_bfe_u32 v9, v2, 1, 1")
    a("v_xor_b32 v5, v5, v9")
    for jj4 in range(4):
        a("s_mul_i32 s41, s33, 3")
        a(f"s_add_u32 s41, s41, {jj4>>1}")
        a("s_and_b32 s42, s41, 1")
        a("s_lshl_b32 s42, s42, 1")
        a("s_lshr_b32 s41, s41, 1")
        a("s_lshl_b32 s41, s41, 7")
        a("v_xor_b32 v7, s42, v5")
        a("v_lshl_add_u32 v7, v7, 5, v6")
        a(f"v_xor_b32 v36, {jj4&1}, v9")
        a("v_lshl_add_u32 v7, v36, 3, v7")
        a(f"v_add_u32 v{20+jj4}, s41, v7")
        for b in range(1, NSTG):
            a(f"v_add_u32 v{20+4*b+jj4}, {b*G2_STAGE}, v{20+jj4}")
    a(f"s_add_u32 s16, s6, {WS_P}")
    a("s_addc_u32 s17, s7, 0")
    a("s_and_b32 s17, s17, 0xffff")
    a(f"s_mov_b32 s18, {PB_BYTES}")
    a("s_mov_b32 s19, 0x00020000")
    FR = 40; ACC = 128
    def acc(mi, j): return ACC + (mi * 6 + j) * 4
    def fa(t, mi): return FR + (t & 1) * 40 + mi * 4
    def fb(t, j): return FR + (t & 1) * 40 + 16 + j * 4
    def read_ops(t):
        st = t >> 1; b = st % NSTG; tt = t & 1
        ops = []
        for mi in range(4):
            ops.append(f"ds_read_b128 {vr(fa(t,mi),4)}, v{16+b} offset:{tt*1024 + mi*2048}")
        for j in range(6):
            off = tt * 32 * 384 + (j >> 2) * 128
            ops.append(f"ds_read_b64_tr_b16 {vr(fb(t,j),2)}, v{20+4*b+(j&3)} offset:{off}")
            ops.append(f"ds_read_b64_tr_b16 {vr(fb(t,j)+2,2)}, v{20+4*b+(j&3)} offset:{off + 4*384}")
        A = ops[:4]; B = ops[4:]
        return [A[0], B[0], B[1], A[1], A[2], A[3]] + B[2:]
    a("s_setprio 1")
    a("s_waitcnt vmcnt(0)")
    a("s_barrier")
    if stamp: a("s_memtime s[84:85]")
    for x in read_ops(0): a(x)
    a("s_waitcnt lgkmcnt(0)")
    def cons(NST):
        NT = 2 * NST
        for t in range(NT):
            st = t >> 1
            if (t & 1) and st + 1 < NST:
                a("s_barrier")
            rd = read_ops(t + 1) if t + 1 < NT else []
            for j in range(6):
                for mi in range(4):
                    c = "0" if t == 0 else vr(acc(mi, j), 4)
                    a(f"v_mfma_f32_16x16x32_bf16 {vr(acc(mi,j),4)}, {vr(fb(t,j),4)}, {vr(fa(t,mi),4)}, {c}")
                    if rd: a(rd.pop(0))
            if t + 1 < NT:
                a("s_waitcnt lgkmcnt(0)")
    cons(N1)
    if stamp: a("s_memtime s[74:75]")
    a("s_lshl_b32 s45, s30, 7")
    a("s_lshl_b32 s46, s31, 3")
    a("s_add_u32 s45, s45, s46")
    a("s_lshl_b32 s46, s32, 2")
    a("s_add_u32 s45, s45, s46")
    a("s_mul_i32 s45, s45, 18")
    a("s_mul_i32 s46, s34, 6")
    a("s_add_u32 s45, s45, s46")
    a("s_mul_i32 s46, s33, 3")
    a("s_add_u32 s45, s45, s46")
    a("s_lshl_b32 s45, s45, 10")
    a("v_lshlrev_b32 v5, 4, v2")
    a("v_cmp_lt_u32 vcc, 31, v2")
    a("s_nop 3")
    k = 0
    for mi in range(4):
        for pq in range(3):
            t0 = acc(mi, 2 * pq); t1 = acc(mi, 2 * pq + 1)
            T = FR + (k % 4) * 8; k += 1
            a(f"v_cvt_pk_bf16_f32 v{T}, v{t0}, v{t0+1}")
            a(f"v_cvt_pk_bf16_f32 v{T+1}, v{t0+2}, v{t0+3}")
            a(f"v_cvt_pk_bf16_f32 v{T+2}, v{t1}, v{t1+1}")
            a(f"v_cvt_pk_bf16_f32 v{T+3}, v{t1+2}, v{t1+3}")
            a(f"v_cndmask_b32 v{T+4}, v{T}, v{T+2}, vcc")
            a(f"v_cndmask_b32 v{T+5}, v{T+1}, v{T+3}, vcc")
            a(f"v_cndmask_b32 v{T+6}, v{T+2}, v{T}, vcc")
            a(f"v_cndmask_b32 v{T+7}, v{T+3}, v{T+1}, vcc")
            a(f"buffer_store_dwordx4 {vr(T+4,4)}, v5, s[16:19], s45 offen offset:{pq*1024} {stmod}")
        if mi < 3: a(f"s_add_u32 s45, s45, {18*1024}")
    def stamp_out():
        a("s_waitcnt vmcnt(0)")
        a("s_memrealtime s[80:81]")
        a("s_memtime s[86:87]")
        a("s_waitcnt lgkmcnt(0)")
        for d, s in ((74, 70), (84, 70), (86, 70)): a(f"s_sub_u32 s{d}, s{d}, s{s}")
        for kk, s in enumerate((72, 80, 84, 74, 86, 23, 22, 22)): a(f"v_mov_b32 v{24+kk}, s{s}")
        a("s_lshl_b32 s70, s2, 3")
        a("s_add_u32 s70, s70, s22")
        a("s_lshl_b32 s70, s70, 5")
        a("s_add_u32 s70, s70, 0x8000000")
        a("v_mov_b32 v32, s70")
        a("s_mov_b64 exec, 1")
        a("global_store_dwordx4 v32, v[24:27], s[6:7]")
        a("global_store_dwordx4 v32, v[28:31], s[6:7] offset:16")
    if stamp: stamp_out()
    a("s_endpgm")

    a.label(f"{name}_prod")
    a("s_add_u32 s20, s20, 262144")
    a(f"s_add_u32 s21, s21, {64*1152}")
    emit(dma_ops(1))
    a("s_barrier")
    if stamp: a("s_memtime s[84:85]")
    emit(dma_ops(2)); emit(dma_ops(3))
    def prod(NST, conv):
        issued = 30
        landed = {1: 10, 2: 20, 3: 30}
        CB = ((NST - 4) % NSTG) * G2_STAGE
        for st in range(NST - 1):
            a(f"s_waitcnt vmcnt({issued - landed[st + 1]})")
            a("s_barrier")
            if st + NSTG < NST:
                emit(dma_ops(st + NSTG)); issued += 10; landed[st + NSTG] = issued
            if conv and st == NST - 3:
                a(f"s_mul_i32 s68, s47, {CW}")
                a(f"s_add_u32 s68, s68, {CB}")
                a("v_lshlrev_b32 v5, 4, v2")
                a("s_add_u32 m0, s68, 32")
                a("s_nop 0")
                for i in range(4): a(f"buffer_load_dwordx4 v5, s[56:59], s49 offen offset:{1024*i} lds")
                a(f"s_add_u32 m0, s68, {C1OFF + 32}")
                a("s_mov_b64 exec, -2")
                a("buffer_load_dwordx4 v5, s[60:63], s49 offen lds")
                a("s_mov_b64 exec, -1")
                for i in range(1, 4): a(f"buffer_load_dwordx4 v5, s[60:63], s49 offen offset:{1024*i} lds")
                a(f"s_add_u32 m0, s68, {XOFF}")
                a("s_nop 0")
                for i in range(4): a(f"buffer_load_dwordx4 v5, s[64:67], s49 offen offset:{1024*i} lds")
                issued += 12
                a("v_mov_b32 v32, 0"); a("v_mov_b32 v33, 0")
                a("v_and_b32 v6, 3, v2")
                a("v_lshl_add_u32 v6, v6, 3, s68")
                a("ds_write_b64 v6, v[32:33]")
                a(f"ds_write_b64 v6, v[32:33] offset:{C1OFF}")
                a("v_lshl_add_u32 v6, v2, 3, s68")
                a(f"ds_write_b64 v6, v[32:33] offset:{XOFF + 4096}")
                a("s_waitcnt lgkmcnt(0)")
                a("s_lshl_b32 s76, s52, 16")
                for k in range(3):
                    a(f"s_lshr_b32 s{77+k}, s{52+k}, 16")
                    a(f"s_lshl_b32 s69, s{53+k}, 16")
                    a(f"s_or_b32 s{77+k}, s{77+k}, s69")
                for k in range(4): a(f"v_mov_b32 v{32+k}, s{76+k}")
                a("v_mov_b32 v6, s68")
                a(f"ds_write_b128 v6, v[32:35] offset:{C1OFF + 32}")
        if not conv:
            if stamp:
                a("s_memtime s[74:75]"); stamp_out()
            a("s_endpgm"); return
        a("v_lshrrev_b32 v5, 1, v4")
        a("v_lshl_add_u32 v5, v3, 2, v5")
        a("v_lshlrev_b32 v5, 2, v5")
        a("v_and_b32 v6, 1, v4")
        a("v_xor_b32 v6, 1, v6")
        a(f"v_mul_u32_u24 v6, {C1OFF}, v6")
        a("v_add3_u32 v5, v5, v6, 4")
        a("v_add_u32 v16, s68, v5")
        for k in range(1, 4): a(f"v_add_u32 v{16+k}, {1024*k}, v16")
        a("v_lshlrev_b32 v7, 5, v4")
        a("v_lshlrev_b32 v6, 4, v3")
        a("v_sub_u32 v7, v6, v7")
        a(f"s_add_u32 s69, s68, {XOFF + 480}")
        a("v_add_u32 v20, s69, v7")
        a("v_lshlrev_b32 v7, 5, v4")
        a("v_lshl_add_u32 v7, v3, 3, v7")
        a(f"s_add_u32 s69, s68, {XOFF + 504}")
        a("v_sub_u32 v21, s69, v7")
        a("v_add_u32 v22, s68, v7")
        a("s_and_b32 s50, s48, 1")
        a("s_lshl_b32 s50, s50, 4")
        a("s_lshr_b32 s51, s51, s50")
        a("s_lshl_b32 s51, s51, 16")
        CA = 32; CF = 64
        def cfa(r, i): return CF + (r & 1) * 64 + i * 4
        def cfb(r, i): return CF + (r & 1) * 64 + 32 + i * 4
        def creads(r):
            o = []
            for i in range(8):
                d = 128 * (i & 1) + 16 * r
                o.append(f"ds_read2_b32 {vr(cfa(r,i),2)}, v{16 + (i>>1)} offset0:{d} offset1:{d+1}")
                o.append(f"ds_read2_b32 {vr(cfa(r,i)+2,2)}, v{16 + (i>>1)} offset0:{d+2} offset1:{d+3}")
                o.append(f"ds_read_b128 {vr(cfb(r,i),4)}, v20 offset:{3584 - 512*i + 64*r}")
            return o
        a("s_waitcnt vmcnt(0) lgkmcnt(0)")
        if stamp: a("s_memtime s[74:75]")
        for nt in range(8): a(f"ds_read_b64 {vr(192+2*nt,2)}, v21 offset:{3584 - 512*nt}")
        for x in creads(0): a(x)
        a("s_waitcnt lgkmcnt(15)")
        a("s_waitcnt lgkmcnt(0)")
        for nt in range(8):
            k0 = 192 + 2 * nt; y = CA + 4 * nt
            a(f"v_and_b32 v{y}, 0xffff0000, v{k0+1}")
            a(f"v_lshlrev_b32 v{y+1}, 16, v{k0+1}")
            a(f"v_and_b32 v{y+2}, 0xffff0000, v{k0}")
            a(f"v_lshlrev_b32 v{y+3}, 16, v{k0}")
            for r in range(4): a(f"v_mul_f32 v{y+r}, s51, v{y+r}")
        a("s_nop 1")
        for r in range(8):
            rd = creads(r + 1) if r < 7 else []
            for aa in range(8):
                for nt in range(aa, 8):
                    a(f"v_mfma_f32_16x16x32_bf16 {vr(CA+4*nt,4)}, {vr(cfa(r,aa),4)}, {vr(cfb(r,nt-aa),4)}, {vr(CA+4*nt,4)}")
                    if rd: a(rd.pop(0))
            if r < 7: a("s_waitcnt lgkmcnt(0)")
        a("s_nop 7")
        a("s_nop 3")
        for nt in range(8):
            y = CA + 4 * nt
            a(f"v_cvt_pk_bf16_f32 v{CF+2*nt}, v{y}, v{y+1}")
            a(f"v_cvt_pk_bf16_f32 v{CF+2*nt+1}, v{y+2}, v{y+3}")
            a(f"ds_write_b64 v22, {vr(CF+2*nt,2)} offset:{512*nt}")
        a("s_waitcnt lgkmcnt(0)")
        a("s_barrier")
        a("v_subrev_u32 v5, 256, v0")
        a("v_lshlrev_b32 v9, 2, v5")
        a(f"v_add_u32 v9, {CB}, v9")
        a("v_lshlrev_b32 v10, 4, v5")
        a("s_lshl_b32 s30, s23, 14")
        a("s_mov_b32 s31, 0x05040100")
        a("s_mov_b32 s32, 0x07060302")
        for i in range(4):
            for ch in range(4):
                a(f"ds_read_b32 v{96+4*i+ch}, v9 offset:{ch*CW + 1024*i}")
        for i in range(4):
            a(f"s_waitcnt lgkmcnt({12-4*i})")
            s = 96 + 4 * i; d = 128 + 4 * i
            a(f"v_perm_b32 v{d}, v{s+1}, v{s}, s31")
            a(f"v_perm_b32 v{d+1}, v{s+3}, v{s+2}, s31")
            a(f"v_perm_b32 v{d+2}, v{s+1}, v{s}, s32")
            a(f"v_perm_b32 v{d+3}, v{s+3}, v{s+2}, s32")
            if i: a("v_add_u32 v10, 4096, v10")
            a(f"buffer_store_dwordx4 {vr(d,4)}, v10, s[16:19], s30 offen {stmod}")
        if stamp: stamp_out()
        a("s_endpgm")
    prod(N1, False)
    a.label(f"{name}_conv")
    if not noconv:
        a("s_lshl_b32 s23, s28, 3")
        a("s_add_u32 s23, s23, s29")
        conv4(a, name, stamp=stamp, pp=pp, AB=AB)
    a.label(f"{name}_done")
    a("s_endpgm")
    kernel_desc(a, name, 224, 96)
```

```python
import sys
from gen_common import *
from gen_gemm1e import gemm1e, G1_LDS
from gen_gemm2d import gemm2d, G2_LDS
from gen_conv4 import *
opts = sys.argv[2:]
kw = {}
for o in opts:
    if "=" in o:
        k, v = o.split("="); kw[k] = int(v)
hdr = open('gated_mix__ssm_conv_h3__glu_gated_swiglu__prompt.s.ref').read().split('\n')
hdr = [l for l in hdr if l.startswith(';') and '@launch' not in l]
a = Asm()
for l in hdr: a.raw(l)
a.raw(f"; @launch kernel=gemm1_kernel grid=(256,1,1) block=(512,1,1) lds={G1_LDS}")
a.raw(f"; @launch kernel=gemm2_kernel grid=(256,1,1) block=(512,1,1) lds={G2_LDS}")
a.raw(f"; @launch kernel=final_kernel grid=(288,1,1) block=(512,1,1) lds=0")
a.raw('.amdgcn_target "amdgcn-amd-amdhsa--gfx950"')
kw1 = {k[2:]: v for k, v in kw.items() if k.startswith("1_")}
kw2 = {k[2:]: v for k, v in kw.items() if k.startswith("2_")}
gemm1e(a, stamp="stamp1" in opts, **kw1)
gemm2d(a, stamp="stamp2" in opts, **kw2)
final4(a)
open(sys.argv[1], "w").write(a.text())
```

```python
class Asm:
    def __init__(self):
        self.lines = []
    def __call__(self, s):
        self.lines.append("    " + s)
    def label(self, s):
        self.lines.append(s + ":")
    def raw(self, s):
        self.lines.append(s)
    def text(self):
        out = []
        L = self.lines
        for i, l in enumerate(L):
            out.append(l)
            t = l.strip()
            if t.startswith("v_cmp"):
                n1 = L[i+1].strip() if i + 1 < len(L) else ""
                n2 = L[i+2].strip() if i + 2 < len(L) else ""
                if n1.startswith("v_cndmask"): out.append("    s_nop 1")
                elif n2.startswith("v_cndmask") and not n1.startswith("s_nop"): out.append("    s_nop 0")
            if t.startswith("v_") and i + 1 < len(L) and L[i+1].strip().startswith("v_readfirstlane"):
                if t.split()[1].rstrip(",") == L[i+1].strip().split()[-1]: out.append("    s_nop 0")
        return "\n".join(out) + "\n"

def kernel_header(a, name):
    a.raw(".text")
    a.raw(f".globl {name}")
    a.raw(".p2align 8")
    a.raw(f".type {name},@function")
    a.label(name)

def kernel_desc(a, name, vgpr, sgpr, accum=None):
    if accum is None:
        accum = (vgpr + 3) // 4 * 4
    a.raw('.section .rodata,"a"')
    a.raw(".p2align 6")
    a.raw(f".amdhsa_kernel {name}")
    a.raw(f"  .amdhsa_next_free_vgpr {vgpr}")
    a.raw(f"  .amdhsa_next_free_sgpr {sgpr}")
    a.raw(f"  .amdhsa_accum_offset {accum}")
    a.raw("  .amdhsa_group_segment_fixed_size 0")
    a.raw("  .amdhsa_kernarg_size 112")
    a.raw("  .amdhsa_user_sgpr_count 2")
    a.raw("  .amdhsa_user_sgpr_kernarg_segment_ptr 1")
    a.raw("  .amdhsa_system_sgpr_workgroup_id_x 1")
    a.raw("  .amdhsa_float_denorm_mode_32 3")
    a.raw("  .amdhsa_float_denorm_mode_16_64 3")
    a.raw(".end_amdhsa_kernel")

def srd(a, d, base_lo, base_hi, nbytes):
    a(f"s_mov_b32 s{d}, s{base_lo}")
    a(f"s_and_b32 s{d+1}, s{base_hi}, 0xffff")
    a(f"s_mov_b32 s{d+2}, {nbytes}")
    a(f"s_mov_b32 s{d+3}, 0x00020000")

def vr(lo, n):
    return f"v[{lo}:{lo+n-1}]" if n > 1 else f"v{lo}"

KA = dict(q=0, k=8, v=16, shift_k=24, ssm_k=32, ssm_D=40, x=48, w1=56, w3=64, w2=72, gate_w=80, out=88, dbg=96, ws=104)
WS_H = 0
H_BYTES = 2048 * 4608 * 2
WS_P = 0x1400000
P_BYTES = 5 * 2048 * 576 * 4
WS_KVT = 0x3000000
```

```python
from gen_common import *

PSLAB = 2048 * 576 * 2
NSL = 4
WS_Z = WS_P + NSL * PSLAB
WS_G = 0x3800000
WS_XR = 0x3000000
XR_BYTES = 576 * 4096
CSTR = 4128; HWV = 4 * CSTR
CONV_LDS = 9 * HWV

def conv4(a, name, stamp=False, pp=1, AB=1):
    if stamp:
        a("s_memtime s[70:71]")
        a("s_memrealtime s[72:73]")
    a(f"s_load_dwordx4 s[24:27], s[0:1], {KA['ssm_k']}")
    a(f"s_load_dwordx2 s[6:7], s[0:1], {KA['ws']}")
    a("v_lshrrev_b32 v1, 6, v0")
    a("v_and_b32 v2, 63, v0")
    a("v_readfirstlane_b32 s22, v1")
    a("v_lshrrev_b32 v3, 4, v2")
    a("v_and_b32 v4, 15, v2")
    a("s_lshl_b32 s28, s23, 3")
    a("s_add_u32 s28, s28, s22")
    a("s_add_u32 s29, s23, 512")
    a("s_lshl_b32 s30, s28, 12")
    a("s_lshl_b32 s31, s29, 12")
    a(f"s_mul_i32 s32, s22, {HWV}")
    a("s_lshl_b32 s33, s28, 1")
    a("s_and_b32 s33, s33, 0xfffffffc")
    a("s_lshl_b32 s34, s29, 1")
    a("s_and_b32 s34, s34, 0xfffffffc")
    for s in range(4): a(f"v_lshl_add_u32 v{5+s}, v2, 4, {16 - 2*s}")
    a("s_lshr_b32 s35, s22, 1")
    a("s_lshl_b32 s36, s35, 1")
    a("v_subrev_u32 v9, s36, v5")
    a("s_and_b32 s37, s22, 1")
    a("s_lshl_b32 s37, s37, 11")
    a(f"s_mul_i32 s38, s35, {CSTR}")
    a("s_add_u32 s38, s38, s37")
    a(f"s_add_u32 s38, s38, {8*HWV + 32}")
    a("s_add_u32 s39, s31, s37")
    a("s_and_b32 s40, s22, 1")
    a("s_cmp_eq_u32 s35, 0")
    a("s_cselect_b32 s40, 1, s40")
    a("s_cmp_lg_u32 s40, 0")
    a("s_cselect_b64 s[40:41], -1, -2")
    a("v_lshlrev_b32 v10, 5, v4")
    a("v_lshlrev_b32 v11, 4, v3")
    a("v_sub_u32 v11, v11, v10")
    a("v_add_u32 v11, 480, v11")
    a("v_mov_b32 v15, 0x80000000")
    a("v_cmp_lt_u32 vcc, 511, v11")
    a("v_cndmask_b32 v12, v11, v15, vcc")
    a("s_lshl_b32 s42, s22, 6")
    a("v_add_u32 v13, s42, v11")
    a("v_cmp_lt_u32 vcc, 511, v13")
    a("v_cndmask_b32 v14, v13, v15, vcc")
    a("v_lshl_add_u32 v10, v3, 3, v10")
    a("v_sub_u32 v15, 504, v10")
    a("v_add_u32 v16, s32, v10")
    a("s_waitcnt lgkmcnt(0)")
    a("s_sub_u32 s8, s24, 16")
    a("s_subb_u32 s9, s25, 0")
    a("s_and_b32 s9, s9, 0xffff")
    a(f"s_mov_b32 s10, {576*4096 + 16}")
    a("s_mov_b32 s11, 0x00020000")
    a(f"s_add_u32 s12, s6, {WS_XR}")
    a("s_addc_u32 s13, s7, 0")
    a("s_and_b32 s13, s13, 0xffff")
    a(f"s_mov_b32 s14, {XR_BYTES}")
    a("s_mov_b32 s15, 0x00020000")
    a("s_load_dwordx4 s[44:47], s[24:25], s30")
    a("s_load_dwordx4 s[48:51], s[24:25], s31")
    a("s_load_dword s52, s[26:27], s33")
    a("s_load_dword s53, s[26:27], s34")
    CA = 32; AF = 64; BF = 96; B9 = 128; C9 = 160; KT = 192; ZT = 160
    for i in range(8):
        a(f"buffer_load_dwordx4 {vr(BF+4*i,4)}, v{12 if i == 0 else 11}, s[12:15], s30 offen offset:{3584 - 512*i}")
    for nt in range(8):
        a(f"buffer_load_dwordx2 {vr(KT+2*nt,2)}, v15, s[12:15], s30 offen offset:{3584 - 512*nt}")
    for s in range(4):
        a(f"s_add_u32 m0, s32, {s*CSTR + 32}")
        if s: a("s_mov_b64 exec, -2")
        else: a("s_nop 0")
        a(f"buffer_load_dwordx4 v{5+s}, s[8:11], s30 offen lds")
        if s: a("s_mov_b64 exec, -1")
        for b in range(1, 4): a(f"buffer_load_dwordx4 v{5+s}, s[8:11], s30 offen offset:{1024*b} lds")
    a("s_mov_b32 m0, s38")
    a("s_mov_b64 exec, s[40:41]")
    a("buffer_load_dwordx4 v9, s[8:11], s39 offen lds")
    a("s_mov_b64 exec, -1")
    a("buffer_load_dwordx4 v9, s[8:11], s39 offen offset:1024 lds")
    for i in range(8):
        a(f"buffer_load_dwordx4 {vr(B9+4*i,4)}, v{14 if i == 0 else 13}, s[12:15], s31 offen offset:{3584 - 512*i}")
    a("s_lshl_b32 s42, s22, 9")
    a("s_sub_u32 s42, s31, s42")
    a("s_add_u32 s42, s42, 3584")
    a(f"buffer_load_dwordx2 {vr(KT+16,2)}, v15, s[12:15], s42 offen")
    for k in range(4): a(f"v_mov_b32 v{24+k}, 0")
    a("v_and_b32 v17, 7, v2")
    a("v_lshrrev_b32 v18, 1, v17")
    a(f"v_mul_u32_u24 v18, {CSTR}, v18")
    a("v_and_b32 v17, 1, v17")
    a("v_lshl_add_u32 v17, v17, 4, v18")
    a("v_add_u32 v18, s32, v17")
    a("ds_write_b128 v18, v[24:27]")
    a(f"v_add_u32 v18, {8*HWV}, v17")
    a("ds_write_b128 v18, v[24:27]")
    a("v_sub_u32 v17, 3, v4")
    a("v_and_b32 v17, 3, v17")
    a(f"v_mul_u32_u24 v18, {CSTR + 2}, v17")
    a("v_lshl_add_u32 v18, v4, 1, v18")
    a("v_lshl_add_u32 v18, v3, 4, v18")
    a("v_add_u32 v18, 2, v18")
    a("v_add_u32 v20, s32, v18")
    a("v_add_u32 v21, 2048, v20")
    a("s_lshl_b32 s42, s22, 6")
    a(f"s_add_u32 s42, s42, {8*HWV}")
    a("v_add_u32 v22, s42, v18")
    a("v_add_u32 v23, 2048, v22")
    a(f"s_add_u32 s16, s6, {WS_Z}")
    a("s_addc_u32 s17, s7, 0")
    a("s_and_b32 s17, s17, 0xffff")
    a(f"s_mov_b32 s18, {PSLAB}")
    a("s_mov_b32 s19, 0x00020000")
    a("s_waitcnt lgkmcnt(0)")
    def fix(d, base_expr):
        a(f"s_lshl_b32 s56, s{d}, 16")
        for k in range(3):
            a(f"s_lshr_b32 s{57+k}, s{d+k}, 16")
            a(f"s_lshl_b32 s60, s{d+k+1}, 16")
            a(f"s_or_b32 s{57+k}, s{57+k}, s60")
        a(f"v_mov_b32 v17, {base_expr}")
        for k in range(4): a(f"v_mov_b32 v{25+k}, s{56+k}")
        a(f"ds_write_b128 v17, v[25:28] offset:{CSTR + 32}")
    def fix2(d, base_expr):
        a(f"s_lshl_b32 s56, s{d}, 16")
        for k in range(3):
            a(f"s_lshr_b32 s{57+k}, s{d+k}, 16")
            a(f"s_lshl_b32 s60, s{d+k+1}, 16")
            a(f"s_or_b32 s{57+k}, s{57+k}, s60")
        a(f"v_mov_b32 v17, {base_expr}")
        for k in range(4): a(f"v_mov_b32 v{28+k}, s{56+k}")
        a(f"ds_write_b128 v17, v[28:31] offset:{CSTR + 32}")
        for k in range(3): a(f"v_mov_b32 v{25+k}, s{d+k}")
        a(f"ds_write_b128 v17, v[24:27] offset:{2*CSTR + 32}")
        for k in range(3): a(f"v_mov_b32 v{CA+1+k}, s{56+k}")
        a(f"v_mov_b32 v{CA}, 0")
        a(f"ds_write_b128 v17, {vr(CA,4)} offset:{3*CSTR + 32}")
    a("s_mov_b64 exec, 1")
    fix2(44, "s32")
    a("s_waitcnt lgkmcnt(0)")
    fix2(48, f"{8*HWV}")
    a("s_mov_b64 exec, -1")
    for s, ch in ((52, 28), (53, 29)):
        a(f"s_and_b32 s56, s{ch}, 1")
        a("s_lshl_b32 s56, s56, 4")
        a(f"s_lshr_b32 s{s}, s{s}, s56")
        a(f"s_lshl_b32 s{s}, s{s}, 16")
    a("s_waitcnt vmcnt(27) lgkmcnt(0)")
    def kvinit(y, k0, sD):
        a(f"v_and_b32 v{y}, 0xffff0000, v{k0+1}")
        a(f"v_lshlrev_b32 v{y+1}, 16, v{k0+1}")
        a(f"v_and_b32 v{y+2}, 0xffff0000, v{k0}")
        a(f"v_lshlrev_b32 v{y+3}, 16, v{k0}")
        for r in range(4): a(f"v_mul_f32 v{y+r}, s{sD}, v{y+r}")
    for nt in range(8): kvinit(CA + 4 * nt, KT + 2 * nt, 52)
    def areads(r, va):
        return [f"ds_read2_b64 {vr(AF+4*i,4)}, v{va + (i>>2)} offset0:{64*(i&3) + 8*r} offset1:{64*(i&3) + 8*r + 1}" for i in range(8)]
    a("s_waitcnt vmcnt(9)")
    if stamp: a("s_memtime s[84:85]")
    for x in areads(0, 20): a(x)
    a("s_waitcnt lgkmcnt(0)")
    a("s_barrier")
    if pp:
        a("s_cmp_lt_u32 s22, 4")
        a(f"s_cbranch_scc1 {name}_ppx")
        a("s_barrier")
        a.label(f"{name}_ppx")
    def dpp_ops():
        o = []
        for i in range(7, -1, -1):
            for q in range(4):
                o.append(f"v_mov_b32_dpp v{BF+4*i+q}, v{BF+4*i+q} row_shr:2 row_mask:0xf bank_mask:0xf bound_ctrl:0")
            if i:
                for q in range(4):
                    o.append(f"v_mov_b32_dpp v{BF+4*i+q}, v{BF+4*(i-1)+q} row_shl:14 row_mask:0xf bank_mask:0xf")
        return o
    for st in range(9):
        acc, bf = (CA, BF) if st < 8 else (C9, B9)
        if st == 8: a("s_waitcnt vmcnt(0)")
        if pp: a("s_setprio 1")
        k = 0
        for aa in range(8):
            for nt in range(aa, 8):
                c = "0" if (st == 8 and aa == 0) else vr(acc + 4 * nt, 4)
                a(f"v_mfma_f32_16x16x32_bf16 {vr(acc+4*nt,4)}, {vr(AF+4*aa,4)}, {vr(bf+4*(nt-aa),4)}, {c}")
                k += 1
                if pp and k == 36 - AB:
                    a("s_setprio 3")
                    a("s_barrier")
        if pp: a("s_setprio 0")
        if st < 7:
            rd = areads(st + 1, 20); dp = dpp_ops()
            for j, x in enumerate(dp):
                if j % 6 == 0 and rd: a(rd.pop(0))
                a(x)
            for x in rd: a(x)
        elif st == 7:
            for x in areads(0, 22): a(x)
            a("s_nop 7")
            for nt in range(8):
                y = CA + 4 * nt
                a(f"v_cvt_pk_bf16_f32 v{KT+2*nt}, v{y}, v{y+1}")
                a(f"v_cvt_pk_bf16_f32 v{KT+2*nt+1}, v{y+2}, v{y+3}")
                a(f"ds_write_b64 v16, {vr(KT+2*nt,2)} offset:{512*nt}")
        else:
            a("v_lshl_add_u32 v17, v2, 4, s32")
            a("s_nop 7")
            a("s_nop 3")
            for nt in range(8): a(f"ds_write_b128 v17, {vr(C9+4*nt,4)} offset:{4096 + 1024*nt}")
        a("s_waitcnt lgkmcnt(0)")
        if pp:
            if st == 8:
                a("s_cmp_lt_u32 s22, 4")
                a(f"s_cbranch_scc0 {name}_ppy")
                a("s_barrier")
                a.label(f"{name}_ppy")
            else:
                a("s_barrier")
    a("s_barrier")
    if stamp: a("s_memtime s[74:75]")
    a("v_lshlrev_b32 v17, 3, v0")
    a(f"v_add_u32 v18, {4*HWV}, v17")
    for e in range(8): a(f"ds_read_b64 {vr(AF+2*e,2)}, v{17 + (e>>2)} offset:{(e&3)*HWV}")
    a("s_lshl_b32 s42, s22, 10")
    a("s_add_u32 s42, s42, 4096")
    a("v_lshl_add_u32 v19, v2, 4, s42")
    a(f"v_add_u32 v20, {4*HWV}, v19")
    for e in range(8): a(f"ds_read_b128 {vr(BF+4*e,4)}, v{19 + (e>>2)} offset:{(e&3)*HWV}")
    a("s_mov_b32 s56, 0x05040100")
    a("s_mov_b32 s57, 0x07060302")
    a("v_lshrrev_b32 v21, 2, v0")
    a(f"v_mul_u32_u24 v21, {18*1024}, v21")
    a("v_and_b32 v22, 3, v0")
    a("v_lshl_add_u32 v21, v22, 6, v21")
    a("s_lshl_b32 s58, s23, 8")
    kvinit(CA + 16, KT + 16, 53)
    a("s_waitcnt lgkmcnt(8)")
    for j in range(4):
        for p in range(4):
            a(f"v_perm_b32 v{CA+4*j+p}, v{AF+2*(2*p+1)+(j>>1)}, v{AF+2*(2*p)+(j>>1)}, s{57 if j&1 else 56}")
        a(f"buffer_store_dwordx4 {vr(CA+4*j,4)}, v21, s[16:19], s58 offen offset:{16*j}")
    a(f"v_mul_u32_u24 v21, {18*1024}, v4")
    a("v_lshl_add_u32 v21, v3, 6, v21")
    a(f"s_mul_i32 s58, s22, {16*18*1024}")
    a("s_lshr_b32 s59, s23, 3")
    a("s_lshl_b32 s59, s59, 8")
    a("s_add_u32 s58, s58, s59")
    a("s_and_b32 s59, s23, 7")
    a("s_lshl_b32 s59, s59, 1")
    a("s_add_u32 s58, s58, s59")
    a(f"s_add_u32 s58, s58, {16*1024}")
    a("s_waitcnt lgkmcnt(0)")
    for e in range(8):
        a(f"v_pk_add_f32 {vr(CA+16,2)}, {vr(CA+16,2)}, {vr(BF+4*e,2)}")
        a(f"v_pk_add_f32 {vr(CA+18,2)}, {vr(CA+18,2)}, {vr(BF+4*e+2,2)}")
    a(f"v_cvt_pk_bf16_f32 v{CA+20}, v{CA+16}, v{CA+17}")
    a(f"v_cvt_pk_bf16_f32 v{CA+21}, v{CA+18}, v{CA+19}")
    a(f"buffer_store_short v{CA+20}, v21, s[16:19], s58 offen")
    a(f"buffer_store_short_d16_hi v{CA+20}, v21, s[16:19], s58 offen offset:16")
    a(f"buffer_store_short v{CA+21}, v21, s[16:19], s58 offen offset:32")
    a(f"buffer_store_short_d16_hi v{CA+21}, v21, s[16:19], s58 offen offset:48")
    if stamp:
        a("s_waitcnt vmcnt(0)")
        a("s_memrealtime s[80:81]")
        a("s_memtime s[86:87]")
        a("s_waitcnt lgkmcnt(0)")
        for d, s in ((74, 70), (84, 70), (86, 70)): a(f"s_sub_u32 s{d}, s{d}, s{s}")
        a("s_add_u32 s92, s23, 1000")
        for kk, s in enumerate((72, 80, 84, 74, 86, 92, 84, 84)): a(f"v_mov_b32 v{24+kk}, s{s}")
        a("s_lshl_b32 s70, s2, 3")
        a("s_add_u32 s70, s70, s22")
        a("s_lshl_b32 s70, s70, 5")
        a("s_add_u32 s70, s70, 0x8000000")
        a("v_mov_b32 v32, s70")
        a("s_mov_b64 exec, 1")
        a("global_store_dwordx4 v32, v[24:27], s[6:7]")
        a("global_store_dwordx4 v32, v[28:31], s[6:7] offset:16")
    a("s_endpgm")

def prep_loads(a):
    for b, n in ((76, 2048 * 1152), (84, 2048 * 1152), (88, 576 * 8)):
        a(f"s_and_b32 s{b+1}, s{b+1}, 0xffff")
        a(f"s_mov_b32 s{b+2}, {n}")
        a(f"s_mov_b32 s{b+3}, 0x00020000")
    a("s_lshl_b32 s34, s30, 2")
    a("s_add_u32 s34, s34, s31")
    a("s_lshl_b32 s34, s34, 3")
    a("s_add_u32 s34, s34, s22")
    a("s_mul_i32 s35, s34, 7282")
    a("s_lshr_b32 s35, s35, 16")
    a("s_mul_i32 s3, s35, 9")
    a("s_sub_u32 s34, s34, s3")
    a("v_bfe_u32 v116, v0, 3, 3")
    a("v_and_b32 v117, 7, v0")
    a("s_lshl_b32 s3, s35, 3")
    a("v_add_u32 v116, s3, v116")
    a(f"v_mul_u32_u24 v115, {2*1152}, v116")
    a("s_lshl_b32 s3, s34, 7")
    a("v_lshl_add_u32 v118, v117, 4, s3")
    a("v_add_u32 v115, v115, v118")
    a("v_mov_b32 v119, 0x80000000")
    for j in range(3):
        a(f"v_subrev_u32 v{112+j}, {(3-j)*1152}, v115")
        a(f"v_cmp_gt_i32 vcc, 0, v{112+j}")
        a(f"v_cndmask_b32 v{112+j}, v{112+j}, v119, vcc")
    a("v_lshlrev_b32 v118, 2, v118")
    for i in range(4): a(f"buffer_load_dwordx4 {vr(148+4*i,4)}, v118, s[88:91], 0 offen offset:{16*i}")
    for j in range(3): a(f"buffer_load_dwordx4 {vr(120+4*j,4)}, v{112+j}, s[76:79], 0 offen")
    for j in range(2): a(f"buffer_load_dwordx4 {vr(132+4*j,4)}, v115, s[76:79], 0 offen offset:{1152*j}")
    for j in range(2): a(f"buffer_load_dwordx4 {vr(140+4*j,4)}, v115, s[84:87], 0 offen offset:{1152*j}")
    a("v_lshlrev_b32 v117, 15, v117")
    a("v_lshlrev_b32 v116, 2, v116")
    a("v_sub_u32 v117, v117, v116")
    a("v_add_u32 v117, 4092, v117")
    a("s_lshl_b32 s3, s34, 18")
    a(f"s_add_u32 s88, s6, {WS_XR}")
    a("s_addc_u32 s89, s7, 0")
    a("s_and_b32 s89, s89, 0xffff")
    a(f"s_mov_b32 s90, {XR_BYTES}")

def prep_compute(a):
    KR = 120; VR = 140; SKR = 148; TAP = 164; KW = 196; VU = 236; KV = 148; OUT = 244
    def unpack(dst, src):
        a(f"v_lshlrev_b32 v{dst}, 16, v{src}")
        a(f"v_and_b32 v{dst+1}, 0xffff0000, v{src}")
    a("s_waitcnt vmcnt(7)")
    for e in range(8):
        a(f"v_lshlrev_b32 v{TAP+e}, 16, v{SKR+2*e}")
        a(f"v_and_b32 v{TAP+8+e}, 0xffff0000, v{SKR+2*e}")
        a(f"v_lshlrev_b32 v{TAP+16+e}, 16, v{SKR+2*e+1}")
        a(f"v_and_b32 v{TAP+24+e}, 0xffff0000, v{SKR+2*e+1}")
    a("s_waitcnt vmcnt(2)")
    for j in range(5):
        for p in range(4): unpack(KW + 8 * j + 2 * p, KR + 4 * j + p)
    for j in range(2):
        kv = KV + 8 * j
        for p in range(4):
            a(f"v_pk_mul_f32 {vr(kv+2*p,2)}, {vr(KW+8*j+2*p,2)}, {vr(TAP+24+2*p,2)}")
        for d in (2, 1, 0):
            for p in range(4):
                a(f"v_pk_fma_f32 {vr(kv+2*p,2)}, {vr(KW+8*(j+3-d)+2*p,2)}, {vr(TAP+8*d+2*p,2)}, {vr(kv+2*p,2)}")
    a("s_waitcnt vmcnt(0)")
    for j in range(2):
        kv = KV + 8 * j
        for p in range(4): unpack(VU + 2 * p, VR + 4 * j + p)
        for p in range(4):
            a(f"v_pk_mul_f32 {vr(kv+2*p,2)}, {vr(kv+2*p,2)}, {vr(VU+2*p,2)}")
    for e in range(8):
        a(f"v_cvt_pk_bf16_f32 v{OUT+e}, v{KV+8+e}, v{KV+e}")
        a(f"buffer_store_dword v{OUT+e}, v117, s[88:91], s3 offen")
        if e < 7: a("s_add_u32 s3, s3, 4096")

def gate(a, name):
    a(f"s_load_dwordx2 s[4:5], s[0:1], {KA['q']}")
    a(f"s_load_dwordx2 s[30:31], s[0:1], {KA['gate_w']}")
    a(f"s_load_dwordx2 s[6:7], s[0:1], {KA['ws']}")
    a("v_lshrrev_b32 v1, 6, v0")
    a("v_and_b32 v2, 63, v0")
    a("v_readfirstlane_b32 s22, v1")
    a("v_and_b32 v3, 7, v2")
    a("v_lshrrev_b32 v4, 3, v2")
    a("s_sub_u32 s24, s28, 252")
    a("s_lshl_b32 s24, s24, 3")
    a("s_add_u32 s24, s24, s22")
    a(f"s_mul_i32 s25, s24, {64*1152}")
    a("v_mul_u32_u24 v5, 1152, v4")
    a("v_lshl_add_u32 v5, v3, 4, v5")
    a("v_lshlrev_b32 v6, 4, v3")
    a("s_waitcnt lgkmcnt(0)")
    srd(a, 8, 4, 5, 2048 * 1152)
    srd(a, 12, 30, 31, 1152)
    a(f"s_add_u32 s16, s6, {WS_G}")
    a("s_addc_u32 s17, s7, 0")
    a("s_and_b32 s17, s17, 0xffff")
    a("s_mov_b32 s18, 8192")
    a("s_mov_b32 s19, 0x00020000")
    GW = 16; QQ = 64
    for j in range(9): a(f"buffer_load_dwordx4 {vr(GW+4*j,4)}, v6, s[12:15], 0 offen offset:{128*j}")
    def qld(st):
        b = QQ + (st % 5) * 36
        for j in range(9): a(f"buffer_load_dwordx4 {vr(b+4*j,4)}, v5, s[8:11], s25 offen offset:{128*j}")
        a(f"s_add_u32 s25, s25, {8*1152}")
    for st in range(5): qld(st)
    a("v_mov_b32 v10, 0")
    for st in range(8):
        b = QQ + (st % 5) * 36
        a(f"s_waitcnt vmcnt({9 * (min(8, st + 5) - st - 1)})")
        a("v_mov_b32 v8, 0"); a("v_mov_b32 v9, 0")
        for k in range(36): a(f"v_dot2_f32_bf16 v{8+(k&1)}, v{b+k}, v{GW+k}, v{8+(k&1)}")
        a("s_nop 3")
        if st + 5 < 8: qld(st + 5)
        a("v_add_f32 v8, v8, v9")
        a("s_nop 1")
        a("v_add_f32_dpp v8, v8, v8 quad_perm:[1,0,3,2] row_mask:0xf bank_mask:0xf")
        a("s_nop 1")
        a("v_add_f32_dpp v8, v8, v8 quad_perm:[2,3,0,1] row_mask:0xf bank_mask:0xf")
        a("s_nop 1")
        a("v_add_f32_dpp v8, v8, v8 row_half_mirror row_mask:0xf bank_mask:0xf")
        a(f"v_cmp_eq_u32 vcc, {st}, v3")
        a("v_cndmask_b32 v10, v10, v8, vcc")
    a("v_cvt_pk_bf16_f32 v11, v10, v10")
    a("v_lshlrev_b32 v10, 16, v11")
    a("v_mul_f32 v10, 0xbfb8aa3b, v10")
    a("v_exp_f32 v10, v10")
    a("s_nop 0")
    a("v_add_f32 v10, 1.0, v10")
    a("v_rcp_f32 v10, v10")
    a("s_nop 0")
    a("v_cvt_pk_bf16_f32 v11, v10, v10")
    a("v_lshlrev_b32 v10, 16, v11")
    a("v_lshl_add_u32 v11, v3, 3, v4")
    a("v_lshlrev_b32 v11, 2, v11")
    a("s_lshl_b32 s24, s24, 8")
    a("buffer_store_dword v10, v11, s[16:19], s24 offen")
    a("s_endpgm")


def final4(a, name="final_kernel", NS=NSL, stamp=False, NW=8, fm=0, om=0):
    MODS = ['', 'sc0 sc1', 'nt', 'sc1', 'sc0 sc1 nt', 'sc1 nt', 'sc0', 'sc0 nt']
    kernel_header(a, name)
    a(f"s_cmp_ge_u32 s2, {2304 // NW}")
    a(f"s_cbranch_scc1 {name}_done")
    if stamp:
        a("s_memtime s[50:51]")
        a("s_memrealtime s[52:53]")
    a(f"s_load_dwordx2 s[4:5], s[0:1], {KA['q']}")
    a(f"s_load_dwordx2 s[22:23], s[0:1], {KA['out']}")
    a(f"s_load_dwordx2 s[6:7], s[0:1], {KA['ws']}")
    a("v_lshrrev_b32 v1, 6, v0")
    a("v_and_b32 v2, 63, v0")
    a("v_readfirstlane_b32 s24, v1")
    a("v_lshrrev_b32 v3, 4, v2")
    a("v_and_b32 v4, 15, v2")
    a(f"s_mul_i32 s25, s2, {NW}")
    a("s_add_u32 s25, s25, s24")
    a("s_mul_i32 s26, s25, 3641")
    a("s_lshr_b32 s26, s26, 16")
    a("s_mul_i32 s27, s26, 18")
    a("s_sub_u32 s27, s25, s27")
    a("s_lshl_b32 s29, s25, 10")
    a("v_lshlrev_b32 v6, 4, v2")
    a("v_mul_u32_u24 v9, 1152, v4")
    a("v_lshl_add_u32 v9, v3, 4, v9")
    a(f"s_mul_i32 s30, s26, {16*1152}")
    a("s_lshl_b32 s31, s27, 6")
    a("s_add_u32 s30, s30, s31")
    a("v_lshlrev_b32 v10, 2, v4")
    a("s_lshl_b32 s32, s26, 6")
    a("s_waitcnt lgkmcnt(0)")
    srd(a, 8, 4, 5, 2048 * 1152)
    srd(a, 16, 22, 23, 2048 * 1152)
    a(f"s_add_u32 s36, s6, {WS_P}")
    a("s_addc_u32 s37, s7, 0")
    a("s_and_b32 s37, s37, 0xffff")
    a(f"s_mov_b32 s38, {(NS+1)*PSLAB}")
    a("s_mov_b32 s39, 0x00020000")
    a(f"s_add_u32 s40, s6, {WS_G}")
    a("s_addc_u32 s41, s7, 0")
    a("s_and_b32 s41, s41, 0xffff")
    a("s_mov_b32 s42, 8192")
    a("s_mov_b32 s43, 0x00020000")
    for ks in range(NS + 1):
        a(f"buffer_load_dwordx4 {vr(16+4*ks,4)}, v6, s[36:39], s29 offen {MODS[fm]}")
        if ks < NS: a(f"s_add_u32 s29, s29, {PSLAB}")
    a("buffer_load_dwordx4 v[40:43], v9, s[8:11], s30 offen")
    a("buffer_load_dword v12, v10, s[40:43], s32 offen")
    B = 48; T = 56; Q = 64
    for ks in range(NS):
        a(f"s_waitcnt vmcnt({NS + 2 - ks})")
        d = B if ks == 0 else T
        for i in range(4):
            a(f"v_lshlrev_b32 v{d+2*i}, 16, v{16+4*ks+i}")
            a(f"v_and_b32 v{d+2*i+1}, 0xffff0000, v{16+4*ks+i}")
        if ks:
            for i in range(4): a(f"v_pk_add_f32 {vr(B+2*i,2)}, {vr(B+2*i,2)}, {vr(T+2*i,2)}")
    a("s_waitcnt vmcnt(0)")
    if stamp: a("s_memtime s[54:55]")
    a("v_sub_f32 v13, 1.0, v12")
    for i in range(4):
        a(f"v_lshlrev_b32 v{T+2*i}, 16, v{16+4*NS+i}")
        a(f"v_and_b32 v{T+2*i+1}, 0xffff0000, v{16+4*NS+i}")
        a(f"v_lshlrev_b32 v{Q+2*i}, 16, v{40+i}")
        a(f"v_and_b32 v{Q+2*i+1}, 0xffff0000, v{40+i}")
    for i in range(4): a(f"v_pk_mul_f32 {vr(T+2*i,2)}, {vr(T+2*i,2)}, {vr(Q+2*i,2)}")
    for i in range(8):
        a(f"v_mul_f32 v{B+i}, v{B+i}, v13")
        a(f"v_fmac_f32 v{B+i}, v{T+i}, v12")
    for i in range(4): a(f"v_cvt_pk_bf16_f32 v{44+i}, v{B+2*i}, v{B+2*i+1}")
    a(f"buffer_store_dwordx4 v[44:47], v9, s[16:19], s30 offen {MODS[om]}")
    if stamp:
        a("s_waitcnt vmcnt(0)")
        a("s_memrealtime s[56:57]")
        a("s_memtime s[58:59]")
        a("s_waitcnt lgkmcnt(0)")
        for d in (54, 58): a(f"s_sub_u32 s{d}, s{d}, s50")
        for kk, sr in enumerate((52, 56, 54, 54, 58, 2, 54, 54)): a(f"v_mov_b32 v{24+kk}, s{sr}")
        a("s_lshl_b32 s60, s25, 5")
        a("s_add_u32 s60, s60, 0x8000000")
        a("v_mov_b32 v32, s60")
        a("s_mov_b64 exec, 1")
        a("global_store_dwordx4 v32, v[24:27], s[6:7]")
        a("global_store_dwordx4 v32, v[28:31], s[6:7] offset:16")
    a.label(f"{name}_done")
    a("s_endpgm")
    kernel_desc(a, name, 72, 64)
```

```python
from gen_common import *
from gen_conv4 import PSLAB, NSL, WS_Z, WS_G, WS_XR, XR_BYTES, CSTR, HWV, gate, final4

X9 = 9 * HWV
CONV_LDS = X9 + 4096 + 512

def conv5(a, name, stamp=False, pp=1, AB=1, zmod=""):
    if stamp:
        a("s_memtime s[70:71]")
        a("s_memrealtime s[72:73]")
    a(f"s_load_dwordx4 s[24:27], s[0:1], {KA['ssm_k']}")
    a(f"s_load_dwordx2 s[6:7], s[0:1], {KA['ws']}")
    a("v_lshrrev_b32 v1, 6, v0")
    a("v_and_b32 v2, 63, v0")
    a("v_readfirstlane_b32 s22, v1")
    a("v_lshrrev_b32 v3, 4, v2")
    a("v_and_b32 v4, 15, v2")
    a("s_lshl_b32 s28, s23, 3")
    a("s_add_u32 s28, s28, s22")
    a("s_add_u32 s29, s23, 512")
    a("s_lshl_b32 s30, s28, 12")
    a("s_lshl_b32 s31, s29, 12")
    a("s_lshl_b32 s35, s22, 9")
    a("s_add_u32 s31, s31, s35")
    a(f"s_mul_i32 s32, s22, {HWV}")
    a("s_lshl_b32 s33, s28, 1")
    a("s_and_b32 s33, s33, 0xfffffffc")
    a("s_lshl_b32 s34, s29, 1")
    a("s_and_b32 s34, s34, 0xfffffffc")
    a("v_lshlrev_b32 v5, 4, v2")
    CA = 32; AF = 64; BF = 96; C9 = 128; AD = 160; AD9 = 164; HL = 168; H9 = 192
    a(f"v_mov_b32 v{HL}, 0"); a(f"v_mov_b32 v{HL+1}, 0")
    a(f"v_mov_b32 v{H9}, 0"); a(f"v_mov_b32 v{H9+1}, 0")
    a("s_mov_b32 s41, 0")
    a("s_cmp_eq_u32 s22, 0")
    a("s_cselect_b32 s40, -2, -1")
    a("s_waitcnt lgkmcnt(0)")
    a("s_sub_u32 s8, s24, 16")
    a("s_subb_u32 s9, s25, 0")
    a("s_and_b32 s9, s9, 0xffff")
    a(f"s_mov_b32 s10, {576*4096 + 16}")
    a("s_mov_b32 s11, 0x00020000")
    a(f"s_add_u32 s12, s6, {WS_XR}")
    a("s_addc_u32 s13, s7, 0")
    a("s_and_b32 s13, s13, 0xffff")
    a(f"s_mov_b32 s14, {XR_BYTES}")
    a("s_mov_b32 s15, 0x00020000")
    a(f"s_add_u32 m0, s32, {2*CSTR + 32}")
    a("s_load_dword s52, s[26:27], s33")
    for b in range(4): a(f"buffer_load_dwordx4 v5, s[12:15], s30 offen offset:{1024*b} lds")
    a("s_load_dword s53, s[26:27], s34")
    for b in range(4):
        a(f"buffer_load_dwordx4 {vr(HL+6*b+2,4)}, v5, s[8:11], s30 offen offset:{1024*b + 16}")
        if b == 0: a("s_mov_b64 exec, -2")
        a(f"buffer_load_dwordx2 {vr(HL+6*b,2)}, v5, s[8:11], s30 offen offset:{1024*b + 8}")
        if b == 0: a("s_mov_b64 exec, -1")
    a(f"s_add_u32 m0, s35, {X9}")
    a("s_mov_b32 exec_hi, 0")
    a("buffer_load_dwordx4 v5, s[12:15], s31 offen lds")
    a(f"buffer_load_dwordx4 {vr(H9+2,4)}, v5, s[8:11], s31 offen offset:16")
    a("s_mov_b64 exec, s[40:41]")
    a(f"buffer_load_dwordx2 {vr(H9,2)}, v5, s[8:11], s31 offen offset:8")
    a("s_mov_b64 exec, -1")
    for k in range(4): a(f"v_mov_b32 v{24+k}, 0")
    a("v_and_b32 v17, 7, v2")
    a("v_lshrrev_b32 v18, 1, v17")
    a(f"v_mul_u32_u24 v18, {CSTR}, v18")
    a("v_and_b32 v17, 1, v17")
    a("v_lshl_add_u32 v17, v17, 4, v18")
    a("v_add_u32 v18, s32, v17")
    a("ds_write_b128 v18, v[24:27]")
    a(f"v_add_u32 v18, {8*HWV}, v17")
    a("ds_write_b128 v18, v[24:27]")
    a("v_lshlrev_b32 v16, 3, v2")
    a(f"v_add_u32 v18, {X9 + 4096}, v16")
    a("ds_write_b64 v18, v[24:25]")
    a("v_add_u32 v16, s32, v16")
    a("v_lshlrev_b32 v10, 5, v4")
    a("v_lshlrev_b32 v11, 4, v3")
    a("v_sub_u32 v11, v11, v10")
    a(f"s_add_u32 s42, s32, {2*CSTR + 32 + 480}")
    a("v_add_u32 v12, s42, v11")
    a("s_lshl_b32 s42, s22, 6")
    a(f"s_add_u32 s42, s42, {X9 + 480}")
    a("v_add_u32 v13, s42, v11")
    a("s_add_u32 s42, s32, 32")
    a("v_add_u32 v14, s42, v5")
    a(f"s_add_u32 s42, s35, {8*HWV + 32}")
    a("v_add_u32 v15, s42, v5")
    a("v_sub_u32 v17, 3, v4")
    a("v_and_b32 v17, 3, v17")
    a(f"v_mul_u32_u24 v18, {CSTR + 2}, v17")
    a("v_lshl_add_u32 v18, v4, 1, v18")
    a("v_lshl_add_u32 v18, v3, 4, v18")
    a("v_add_u32 v18, 2, v18")
    a("v_add_u32 v20, s32, v18")
    a("v_add_u32 v21, 2048, v20")
    a("s_lshl_b32 s42, s22, 6")
    a(f"s_add_u32 s42, s42, {8*HWV}")
    a("v_add_u32 v22, s42, v18")
    a("v_add_u32 v23, 2048, v22")
    a(f"s_add_u32 s16, s6, {WS_Z}")
    a("s_addc_u32 s17, s7, 0")
    a("s_and_b32 s17, s17, 0xffff")
    a(f"s_mov_b32 s18, {PSLAB}")
    a("s_mov_b32 s19, 0x00020000")
    a("v_lshl_add_u32 v17, v3, 3, v4")
    a("v_sub_u32 v17, 15, v17")
    a("v_and_b32 v18, 1, v17")
    a("v_lshlrev_b32 v18, 4, v18")
    a("v_lshrrev_b32 v17, 1, v17")
    a("s_waitcnt lgkmcnt(0)")
    for s, ch in ((52, 28), (53, 29)):
        a(f"s_and_b32 s56, s{ch}, 1")
        a("s_lshl_b32 s56, s56, 4")
        a(f"s_lshr_b32 s{s}, s{s}, s56")
        a(f"s_and_b32 s{s}, s{s}, 0xffff")
    a("s_cmp_eq_u32 s22, 0")
    a("s_cselect_b32 s53, s53, 0")
    a("v_lshlrev_b32 v19, v18, s52")
    a("v_lshlrev_b32 v18, v18, s53")
    for q in range(4):
        a(f"v_cmp_eq_u32 vcc, {q}, v17")
        a(f"v_cndmask_b32 v{AD+q}, 0, v19, vcc")
        a(f"v_cndmask_b32 v{AD9+q}, 0, v18, vcc")
    a("s_waitcnt vmcnt(11)")
    for i in range(8): a(f"ds_read_b128 {vr(BF+4*i,4)}, v12 offset:{3584 - 512*i}")
    def copies(h, t, va, off):
        p2, p3, r = h, h + 1, h + 2
        src = [p2, p3, r, r + 1, r + 2, r + 3]
        a(f"ds_write_b128 v{va}, {vr(r,4)} offset:{off}")
        for k in range(4): a(f"v_alignbit_b32 v{t+k}, v{src[k+2]}, v{src[k+1]}, 16")
        a(f"ds_write_b128 v{va}, {vr(t,4)} offset:{off + CSTR}")
        for k in range(4): a(f"v_mov_b32 v{t+4+k}, v{src[k+1]}")
        a(f"ds_write_b128 v{va}, {vr(t+4,4)} offset:{off + 2*CSTR}")
        for k in range(4): a(f"v_alignbit_b32 v{t+8+k}, v{src[k+1]}, v{src[k]}, 16")
        a(f"ds_write_b128 v{va}, {vr(t+8,4)} offset:{off + 3*CSTR}")
    for b in range(4):
        a(f"s_waitcnt vmcnt({3 + 2*(3-b)})")
        copies(HL + 6 * b, CA + 12 * b, 14, 1024 * b)
    a("s_waitcnt vmcnt(0)")
    a("s_mov_b32 exec_hi, 0")
    copies(H9, C9, 15, 0)
    a("s_mov_b64 exec, -1")
    def areads(r, va):
        return [f"ds_read2_b64 {vr(AF+4*i,4)}, v{va + (i>>2)} offset0:{64*(i&3) + 8*r} offset1:{64*(i&3) + 8*r + 1}" for i in range(8)]
    if stamp: a("s_memtime s[84:85]")
    for x in areads(0, 20): a(x)
    a("s_waitcnt lgkmcnt(0)")
    a("s_barrier")
    if pp:
        a("s_cmp_lt_u32 s22, 4")
        a(f"s_cbranch_scc1 {name}_ppx")
        a("s_barrier")
        a.label(f"{name}_ppx")
    def dpp_ops():
        o = []
        for i in range(7, -1, -1):
            for q in range(4):
                o.append(f"v_mov_b32_dpp v{BF+4*i+q}, v{BF+4*i+q} row_shr:2 row_mask:0xf bank_mask:0xf bound_ctrl:0")
            if i:
                for q in range(4):
                    o.append(f"v_mov_b32_dpp v{BF+4*i+q}, v{BF+4*(i-1)+q} row_shl:14 row_mask:0xf bank_mask:0xf")
        return o
    for st in range(9):
        acc = CA if st < 8 else C9
        if pp: a("s_setprio 1")
        ms = []
        if st in (0, 8):
            for nt in range(8): ms.append((nt, AD if st == 0 else AD9, nt, True))
        for aa in range(8):
            for nt in range(aa, 8): ms.append((nt, AF + 4 * aa, nt - aa, False))
        for k, (nt, af, bi, zero) in enumerate(ms):
            c = "0" if zero else vr(acc + 4 * nt, 4)
            a(f"v_mfma_f32_16x16x32_bf16 {vr(acc+4*nt,4)}, {vr(BF+4*bi,4)}, {vr(af,4)}, {c}")
            if pp and k + 1 == len(ms) - AB:
                a("s_setprio 3")
                a("s_barrier")
        if pp: a("s_setprio 0")
        if st < 7:
            rd = areads(st + 1, 20); dp = dpp_ops()
            for j, x in enumerate(dp):
                if j % 6 == 0 and rd: a(rd.pop(0))
                a(x)
            for x in rd: a(x)
        elif st == 7:
            for x in areads(0, 22): a(x)
            for i in range(8): a(f"ds_read_b128 {vr(BF+4*i,4)}, v13 offset:{3584 - 512*i}")
            for nt in range(8):
                y = CA + 4 * nt
                a(f"v_cvt_pk_bf16_f32 v{HL+2*nt}, v{y}, v{y+1}")
                a(f"v_cvt_pk_bf16_f32 v{HL+2*nt+1}, v{y+2}, v{y+3}")
                a(f"ds_write_b64 v16, {vr(HL+2*nt,2)} offset:{512*nt}")
        else:
            a("v_add_u32 v17, s32, v5")
            a("s_nop 7")
            a("s_nop 3")
            for nt in range(8): a(f"ds_write_b128 v17, {vr(C9+4*nt,4)} offset:{4096 + 1024*nt}")
        a("s_waitcnt lgkmcnt(0)")
        if pp:
            if st == 8:
                a("s_cmp_lt_u32 s22, 4")
                a(f"s_cbranch_scc0 {name}_ppy")
                a("s_barrier")
                a.label(f"{name}_ppy")
            else:
                a("s_barrier")
    a("s_barrier")
    if stamp: a("s_memtime s[74:75]")
    a("v_lshlrev_b32 v17, 3, v0")
    a(f"v_add_u32 v18, {4*HWV}, v17")
    for e in range(8): a(f"ds_read_b64 {vr(AF+2*e,2)}, v{17 + (e>>2)} offset:{(e&3)*HWV}")
    a("s_lshl_b32 s42, s22, 10")
    a("s_add_u32 s42, s42, 4096")
    a("v_add_u32 v19, s42, v5")
    a(f"v_add_u32 v20, {4*HWV}, v19")
    for e in range(8): a(f"ds_read_b128 {vr(BF+4*e,4)}, v{19 + (e>>2)} offset:{(e&3)*HWV}")
    a("s_mov_b32 s56, 0x05040100")
    a("s_mov_b32 s57, 0x07060302")
    a(f"v_mul_u32_u24 v21, {4*18*1024}, v3")
    a("v_lshl_add_u32 v21, v4, 4, v21")
    a(f"s_mul_i32 s59, s22, {16*18*1024}")
    a("s_lshl_b32 s58, s23, 8")
    a("s_add_u32 s58, s58, s59")
    a("s_lshr_b32 s60, s23, 3")
    a("s_lshl_b32 s60, s60, 8")
    a("s_add_u32 s59, s59, s60")
    a("s_and_b32 s60, s23, 7")
    a("s_lshl_b32 s60, s60, 1")
    a("s_add_u32 s59, s59, s60")
    a(f"s_add_u32 s59, s59, {16*1024}")
    a("s_waitcnt lgkmcnt(8)")
    for j in range(4):
        for p in range(4):
            a(f"v_perm_b32 v{CA+4*j+p}, v{AF+2*(2*p+1)+(j>>1)}, v{AF+2*(2*p)+(j>>1)}, s{57 if j&1 else 56}")
        a(f"buffer_store_dwordx4 {vr(CA+4*j,4)}, v21, s[16:19], s58 offen {zmod}")
        if j < 3: a(f"s_add_u32 s58, s58, {18*1024}")
    a("s_waitcnt lgkmcnt(0)")
    for e in range(1, 8):
        a(f"v_pk_add_f32 {vr(BF,2)}, {vr(BF,2)}, {vr(BF+4*e,2)}")
        a(f"v_pk_add_f32 {vr(BF+2,2)}, {vr(BF+2,2)}, {vr(BF+4*e+2,2)}")
    a(f"v_cvt_pk_bf16_f32 v{CA+20}, v{BF}, v{BF+1}")
    a(f"v_cvt_pk_bf16_f32 v{CA+21}, v{BF+2}, v{BF+3}")
    for r in range(4):
        a(f"buffer_store_short{'_d16_hi' if r&1 else ''} v{CA+20+(r>>1)}, v21, s[16:19], s59 offen {zmod}")
        if r < 3: a(f"s_add_u32 s59, s59, {18*1024}")
    if stamp:
        a("s_waitcnt vmcnt(0)")
        a("s_memrealtime s[80:81]")
        a("s_memtime s[86:87]")
        a("s_waitcnt lgkmcnt(0)")
        for d, s in ((74, 70), (84, 70), (86, 70)): a(f"s_sub_u32 s{d}, s{d}, s{s}")
        a("s_add_u32 s92, s23, 1000")
        for kk, s in enumerate((72, 80, 84, 74, 86, 92, 84, 84)): a(f"v_mov_b32 v{24+kk}, s{s}")
        a("s_lshl_b32 s70, s2, 3")
        a("s_add_u32 s70, s70, s22")
        a("s_lshl_b32 s70, s70, 5")
        a("s_add_u32 s70, s70, 0x8000000")
        a("v_mov_b32 v32, s70")
        a("s_mov_b64 exec, 1")
        a("global_store_dwordx4 v32, v[24:27], s[6:7]")
        a("global_store_dwordx4 v32, v[28:31], s[6:7] offset:16")
    a("s_endpgm")

SKR = 160; KR = 232; VR = 176; TAPR = 104; KT_ = 10; KV_ = 252; vOUT = 21
def prep2_loads():
    o = []
    o.append("s_cmp_lt_u32 s31, 4")
    for b, n in ((76, 2048 * 1152), (84, 2048 * 1152), (88, 576 * 8)):
        o.append(f"s_cselect_b32 s{b+2}, {n}, 0")
    o.append(f"s_cselect_b32 s20, {XR_BYTES}, 0")
    for b in (76, 84, 88):
        o.append(f"s_and_b32 s{b+1}, s{b+1}, 0xffff")
        o.append(f"s_mov_b32 s{b+3}, 0x00020000")
    o += ["s_lshl_b32 s34, s30, 2", "s_add_u32 s34, s34, s31", "s_lshl_b32 s34, s34, 3", "s_add_u32 s34, s34, s22",
          "s_mul_i32 s35, s34, 7282", "s_lshr_b32 s35, s35, 16", "s_mul_i32 s3, s35, 9", "s_sub_u32 s34, s34, s3",
          "v_bfe_u32 v16, v0, 3, 3", "v_and_b32 v17, 7, v0", "s_lshl_b32 s3, s35, 3", "v_add_u32 v16, s3, v16",
          f"v_mul_u32_u24 v15, {2*1152}, v16", "s_lshl_b32 s3, s34, 7", "v_lshl_add_u32 v18, v17, 4, s3",
          "v_add_u32 v15, v15, v18", "v_mov_b32 v19, 0x80000000"]
    for j in range(3):
        o += [f"v_subrev_u32 v{12+j}, {(3-j)*1152}, v15", f"v_cmp_gt_i32 vcc, 0, v{12+j}", f"v_cndmask_b32 v{12+j}, v{12+j}, v19, vcc"]
    o.append("v_lshlrev_b32 v18, 2, v18")
    g = []
    for j in range(3): g.append([f"buffer_load_dwordx4 {vr(KR+4*j,4)}, v{12+j}, s[76:79], 0 offen"])
    for j in range(2): g.append([f"buffer_load_dwordx4 {vr(KR+12+4*j,4)}, v15, s[76:79], 0 offen offset:{1152*j}"])
    for j in range(2): g.append([f"buffer_load_dwordx4 {vr(VR+4*j,4)}, v15, s[84:87], 0 offen offset:{1152*j}"])
    for i in range(4): g.append([f"buffer_load_dwordx4 {vr(SKR+4*i,4)}, v18, s[88:91], 0 offen offset:{16*i}"])
    g[0] = o + g[0]
    g[-1] += ["v_lshlrev_b32 v17, 15, v17", "v_lshlrev_b32 v16, 2, v16", "v_sub_u32 v17, v17, v16", f"v_add_u32 v{vOUT}, 4092, v17",
              "s_lshl_b32 s3, s34, 18", f"s_add_u32 s88, s6, {WS_XR}", "s_addc_u32 s89, s7, 0", "s_and_b32 s89, s89, 0xffff", "s_mov_b32 s90, s20"]
    return g

def prep2_compute(p):
    o = []
    for h in range(2):
        r = SKR + 4 * p + 2 * h
        o.append(f"v_lshlrev_b32 v{TAPR+h}, 16, v{r}")
        o.append(f"v_and_b32 v{TAPR+2+h}, 0xffff0000, v{r}")
        o.append(f"v_lshlrev_b32 v{TAPR+4+h}, 16, v{r+1}")
        o.append(f"v_and_b32 v{TAPR+6+h}, 0xffff0000, v{r+1}")
    for j in range(5):
        o.append(f"v_lshlrev_b32 v{KT_+2*j}, 16, v{KR+4*j+p}")
        o.append(f"v_and_b32 v{KT_+2*j+1}, 0xffff0000, v{KR+4*j+p}")
    for j in range(2): o.append(f"v_pk_mul_f32 {vr(KV_+2*j,2)}, {vr(KT_+2*j,2)}, {vr(TAPR+6,2)}")
    for d in (2, 1, 0):
        for j in range(2):
            o.append(f"v_pk_fma_f32 {vr(KV_+2*j,2)}, {vr(KT_+2*(j+3-d),2)}, {vr(TAPR+2*d,2)}, {vr(KV_+2*j,2)}")
    for j in range(2):
        o.append(f"v_lshlrev_b32 v{KT_+2*j}, 16, v{VR+4*j+p}")
        o.append(f"v_and_b32 v{KT_+2*j+1}, 0xffff0000, v{VR+4*j+p}")
    for j in range(2): o.append(f"v_pk_mul_f32 {vr(KV_+2*j,2)}, {vr(KV_+2*j,2)}, {vr(KT_+2*j,2)}")
    o = [(x, False) for x in o]
    for h in range(2):
        o.append((f"v_cvt_pk_bf16_f32 v{KT_+4+h}, v{KV_+2+h}, v{KV_+h}", False))
    for h in range(2):
        o.append((f"buffer_store_dword v{KT_+4+h}, v{vOUT}, s[88:91], s3 offen", True))
        o.append(("s_add_u32 s3, s3, 4096", False))
    return o

P3K = 24; P3V = 68; P3S = 100; P3T = 116; P3KU = 124; P3KV = 146; P3VU = 162; P3O = 178
def prep3_loads(a):
    for b, n in ((76, 2048 * 1152), (84, 2048 * 1152), (88, 576 * 8)):
        a(f"s_and_b32 s{b+1}, s{b+1}, 0xffff")
        a(f"s_mov_b32 s{b+2}, {n}")
        a(f"s_mov_b32 s{b+3}, 0x00020000")
    a("s_lshl_b32 s34, s30, 3")
    a("s_add_u32 s34, s34, s22")
    a("s_mul_i32 s35, s34, 7282")
    a("s_lshr_b32 s35, s35, 16")
    a("s_mul_i32 s3, s35, 9")
    a("s_sub_u32 s34, s34, s3")
    a("v_bfe_u32 v252, v0, 3, 3")
    a("v_and_b32 v253, 7, v0")
    a("s_lshl_b32 s3, s35, 3")
    a("v_add_u32 v252, s3, v252")
    a(f"v_mul_u32_u24 v251, {8*1152}, v252")
    a("s_lshl_b32 s3, s34, 7")
    a("v_lshl_add_u32 v254, v253, 4, s3")
    a("v_add_u32 v251, v251, v254")
    a(f"v_subrev_u32 v250, {3*1152}, v251")
    a("v_mov_b32 v255, 0x80000000")
    a("v_cmp_gt_i32 vcc, 0, v250")
    a("v_cndmask_b32 v250, v250, v255, vcc")
    a(f"v_add_u32 v249, {4*1152}, v251")
    a("v_lshlrev_b32 v254, 2, v254")
    for i in range(4): a(f"buffer_load_dwordx4 {vr(P3S+4*i,4)}, v254, s[88:91], 0 offen offset:{16*i}")
    for j in range(3): a(f"buffer_load_dwordx4 {vr(P3K+4*j,4)}, v250, s[76:79], 0 offen offset:{1152*j}")
    for j in range(8):
        a(f"buffer_load_dwordx4 {vr(P3K+12+4*j,4)}, v{251 if j < 4 else 249}, s[76:79], 0 offen offset:{1152*(j&3)}")
    for j in range(8):
        a(f"buffer_load_dwordx4 {vr(P3V+4*j,4)}, v{251 if j < 4 else 249}, s[84:87], 0 offen offset:{1152*(j&3)}")
    a("v_lshlrev_b32 v253, 15, v253")
    a("v_lshlrev_b32 v252, 4, v252")
    a("v_sub_u32 v253, v253, v252")
    a("v_add_u32 v253, 4080, v253")
    a("s_lshl_b32 s3, s34, 18")
    a(f"s_add_u32 s88, s6, {WS_XR}")
    a("s_addc_u32 s89, s7, 0")
    a("s_and_b32 s89, s89, 0xffff")
    a(f"s_mov_b32 s90, {XR_BYTES}")

def prep3_compute(a, later=0, stamp=False):
    nst = 0
    def st(d):
        if stamp:
            a("s_memtime s[74:75]"); a("s_waitcnt lgkmcnt(0)"); a(f"s_sub_u32 s{d}, s74, s70")
    for p in range(4):
        if p == 0:
            a(f"s_waitcnt vmcnt({19 + later})"); st(20)
        if p == 1: st(48)
        for h in range(2):
            r = P3S + 4 * p + 2 * h
            a(f"v_lshlrev_b32 v{P3T+h}, 16, v{r}")
            a(f"v_and_b32 v{P3T+2+h}, 0xffff0000, v{r}")
            a(f"v_lshlrev_b32 v{P3T+4+h}, 16, v{r+1}")
            a(f"v_and_b32 v{P3T+6+h}, 0xffff0000, v{r+1}")
        for j in range(11):
            if p == 0: a(f"s_waitcnt vmcnt({18 - j + later})")
            a(f"v_lshlrev_b32 v{P3KU+2*j}, 16, v{P3K+4*j+p}")
            a(f"v_and_b32 v{P3KU+2*j+1}, 0xffff0000, v{P3K+4*j+p}")
        for j in range(8): a(f"v_pk_mul_f32 {vr(P3KV+2*j,2)}, {vr(P3KU+2*j,2)}, {vr(P3T+6,2)}")
        for d in (2, 1, 0):
            for j in range(8):
                a(f"v_pk_fma_f32 {vr(P3KV+2*j,2)}, {vr(P3KU+2*(j+3-d),2)}, {vr(P3T+2*d,2)}, {vr(P3KV+2*j,2)}")
        for j in range(8):
            if p == 0: a(f"s_waitcnt vmcnt({7 - j + later})")
            a(f"v_lshlrev_b32 v{P3VU+2*j}, 16, v{P3V+4*j+p}")
            a(f"v_and_b32 v{P3VU+2*j+1}, 0xffff0000, v{P3V+4*j+p}")
        for j in range(8): a(f"v_pk_mul_f32 {vr(P3KV+2*j,2)}, {vr(P3KV+2*j,2)}, {vr(P3VU+2*j,2)}")
        for h in range(2):
            o = P3O + 8 * (p & 1) + 4 * h
            for i in range(4): a(f"v_cvt_pk_bf16_f32 v{o+i}, v{P3KV+2*(7-2*i)+h}, v{P3KV+2*(6-2*i)+h}")
            a(f"buffer_store_dwordx4 {vr(o,4)}, v253, s[88:91], s3 offen")
            a("s_add_u32 s3, s3, 4096")
    st(59)

def prep4_setup(kpf=1):
    o = []
    for b, n in ((76, 2048 * 1152), (84, 2048 * 1152), (88, 576 * 8)):
        o += [f"s_and_b32 s{b+1}, s{b+1}, 0xffff", f"s_mov_b32 s{b+2}, {n}", f"s_mov_b32 s{b+3}, 0x00020000"]
    o += ["s_lshl_b32 s34, s30, 3", "s_add_u32 s34, s34, s22", "s_mul_i32 s35, s34, 7282", "s_lshr_b32 s35, s35, 16",
          "s_mul_i32 s3, s35, 9", "s_sub_u32 s34, s34, s3",
          "v_and_b32 v1, 63, v0", "v_mul_u32_u24 v1, 1152, v1", f"s_mul_i32 s3, s35, {64*1152}", "s_lshl_b32 s20, s34, 7", "s_add_u32 s3, s3, s20"]
    if not kpf: o.append("v_mov_b32 v1, 0")
    g = [o + ["buffer_load_dword v2, v1, s[76:79], s3 offen"], ["buffer_load_dword v6, v1, s[84:87], s3 offen"]]
    return g
def prep4_addr():
    return ["v_bfe_u32 v1, v0, 3, 3", "s_lshl_b32 s3, s35, 3", "v_add_u32 v1, s3, v1", "v_and_b32 v2, 7, v0",
            f"v_mul_u32_u24 v6, {8*1152}, v1", "v_lshl_add_u32 v22, v2, 4, s20", "v_add_u32 v6, v6, v22", "v_lshlrev_b32 v22, 2, v22",
            "v_lshlrev_b32 v1, 4, v1", "v_sub_u32 v1, 4080, v1", "v_lshl_add_u32 v2, v2, 15, v1",
            f"v_subrev_u32 v1, {3*1152}, v6", "s_lshl_b32 s3, s34, 18", f"s_movk_i32 s20, {4*1152}"]
def prep4_loads(Q):
    o = []
    for i in range(4): o.append(f"buffer_load_dwordx4 {vr(Q[i],4)}, v22, s[88:91], 0 offen offset:{16*i}")
    for j in range(3): o.append(f"buffer_load_dwordx4 {vr(Q[4+j],4)}, v1, s[76:79], 0 offen offset:{1152*j}")
    for j in range(8): o.append(f"buffer_load_dwordx4 {vr(Q[7+j],4)}, v6, s[76:79], {'0' if j < 4 else 's20'} offen offset:{1152*(j&3)}")
    for j in range(8): o.append(f"buffer_load_dwordx4 {vr(Q[15+j],4)}, v6, s[84:87], {'0' if j < 4 else 's20'} offen offset:{1152*(j&3)}")
    return o
def prep4_compute(a, Q, rem, stamp=False):
    T = 24; KU = 32; KV = 54; VU = 70; O = 86
    a(f"s_add_u32 s88, s6, {WS_XR}")
    a("s_addc_u32 s89, s7, 0")
    a("s_and_b32 s89, s89, 0xffff")
    a(f"s_mov_b32 s90, {XR_BYTES}")
    def st(d):
        if stamp:
            a("s_memtime s[80:81]"); a("s_waitcnt lgkmcnt(0)"); a(f"s_sub_u32 s{d}, s80, s70")
    for p in range(4):
        if p == 0:
            a(f"s_waitcnt vmcnt({rem[3]})"); st(59)
        for h in range(2):
            r = Q[p] + 2 * h
            a(f"v_lshlrev_b32 v{T+h}, 16, v{r}")
            a(f"v_and_b32 v{T+2+h}, 0xffff0000, v{r}")
            a(f"v_lshlrev_b32 v{T+4+h}, 16, v{r+1}")
            a(f"v_and_b32 v{T+6+h}, 0xffff0000, v{r+1}")
        for j in range(11):
            if p == 0: a(f"s_waitcnt vmcnt({rem[4+j]})")
            a(f"v_lshlrev_b32 v{KU+2*j}, 16, v{Q[4+j]+p}")
            a(f"v_and_b32 v{KU+2*j+1}, 0xffff0000, v{Q[4+j]+p}")
        for j in range(8): a(f"v_pk_mul_f32 {vr(KV+2*j,2)}, {vr(KU+2*j,2)}, {vr(T+6,2)}")
        for d in (2, 1, 0):
            for j in range(8):
                a(f"v_pk_fma_f32 {vr(KV+2*j,2)}, {vr(KU+2*(j+3-d),2)}, {vr(T+2*d,2)}, {vr(KV+2*j,2)}")
        for j in range(8):
            if p == 0: a(f"s_waitcnt vmcnt({rem[15+j]})")
            a(f"v_lshlrev_b32 v{VU+2*j}, 16, v{Q[15+j]+p}")
            a(f"v_and_b32 v{VU+2*j+1}, 0xffff0000, v{Q[15+j]+p}")
        for j in range(8): a(f"v_pk_mul_f32 {vr(KV+2*j,2)}, {vr(KV+2*j,2)}, {vr(VU+2*j,2)}")
        for h in range(2):
            o = O + 8 * (p & 1) + 4 * h
            for i in range(4): a(f"v_cvt_pk_bf16_f32 v{o+i}, v{KV+2*(7-2*i)+h}, v{KV+2*(6-2*i)+h}")
            a(f"buffer_store_dwordx4 {vr(o,4)}, v2, s[88:91], s3 offen")
            a("s_add_u32 s3, s3, 4096")

def prep5_setup():
    o = []
    for b, n in ((76, 2048 * 1152), (84, 2048 * 1152), (88, 576 * 8)):
        o += [f"s_and_b32 s{b+1}, s{b+1}, 0xffff", f"s_mov_b32 s{b+2}, {n}", f"s_mov_b32 s{b+3}, 0x00020000"]
    o += ["s_lshl_b32 s34, s30, 3", "s_add_u32 s34, s34, s22", "s_mul_i32 s35, s34, 7282", "s_lshr_b32 s35, s35, 16",
          "s_mul_i32 s3, s35, 9", "s_sub_u32 s34, s34, s3", "s_lshl_b32 s20, s34, 7",
          "s_cmp_eq_u32 s33, 0", "s_cselect_b32 s36, s76, s84", "s_cselect_b32 s37, s77, s85", "s_mov_b32 s38, s78",
          "s_mov_b64 exec, s[68:69]", "v_and_b32 v4, 63, v0", "v_mul_u32_u24 v4, 1152, v4", "s_mov_b64 exec, -1"]
    return o
def prep5_pf(j):
    return ["s_lshl_b32 s21, s30, 3", f"s_add_u32 s21, s21, {j}", "s_mul_i32 s29, s21, 7282", "s_lshr_b32 s29, s29, 16",
            "s_mul_i32 s3, s29, 9", "s_sub_u32 s21, s21, s3", "s_lshl_b32 s21, s21, 7", f"s_mul_i32 s29, s29, {64*1152}", "s_add_u32 s21, s21, s29",
            "s_mov_b64 exec, s[68:69]", "buffer_load_dword v3, v4, s[36:39], s21 offen", "s_mov_b64 exec, -1"]

def prep6_addr():
    o = ["s_cmp_lt_u32 s31, 4"]
    for b, n in ((76, 2048 * 1152), (84, 2048 * 1152), (88, 576 * 8)): o.append(f"s_cselect_b32 s{b+2}, {n}, 0")
    o.append(f"s_cselect_b32 s29, {XR_BYTES}, 0")
    for b in (76, 84, 88): o += [f"s_and_b32 s{b+1}, s{b+1}, 0xffff", f"s_mov_b32 s{b+3}, 0x00020000"]
    o += ["s_lshl_b32 s34, s30, 2", "s_add_u32 s34, s34, s31", "s_lshl_b32 s34, s34, 3", "s_add_u32 s34, s34, s22",
          "s_mul_i32 s35, s34, 7282", "s_lshr_b32 s35, s35, 16", "s_mul_i32 s3, s35, 9", "s_sub_u32 s34, s34, s3",
          "s_lshl_b32 s20, s34, 7", "s_lshl_b32 s3, s35, 1",
          "v_bfe_u32 v1, v0, 5, 1", "v_add_u32 v1, s3, v1", "v_and_b32 v2, 31, v0",
          f"v_mul_u32_u24 v6, {8*1152}, v1", "v_lshl_add_u32 v22, v2, 2, s20", "v_add_u32 v6, v6, v22", "v_lshlrev_b32 v22, 2, v22",
          "v_lshlrev_b32 v1, 4, v1", "v_sub_u32 v1, 4080, v1", "v_lshl_add_u32 v2, v2, 13, v1",
          f"v_subrev_u32 v1, {3*1152}, v6", "s_lshl_b32 s3, s34, 18", f"s_movk_i32 s20, {4*1152}"]
    return o
def prep6_load(i, r):
    if i == 0:
        return [f"buffer_load_dwordx4 {vr(r,4)}, v22, s[88:91], 0 offen",
                f"s_add_u32 s88, s6, {WS_XR}", "s_addc_u32 s89, s7, 0", "s_and_b32 s89, s89, 0xffff", "s_mov_b32 s90, s29"]
    if i < 4: return [f"buffer_load_dword v{r}, v1, s[76:79], 0 offen offset:{1152*(i-1)}"]
    j = (i - 4) & 7
    return [f"buffer_load_dword v{r}, v6, s[{'76:79' if i < 12 else '84:87'}], {'0' if j < 4 else 's20'} offen offset:{1152*(j&3)}"]
def prep6_compute(a, R, rem, xmod=''):
    T = 112; KU = 120; KV = 142; VU = 158; O = 176
    a(f"s_waitcnt vmcnt({rem[11]})")
    for h in range(2):
        r = R[0] + 2 * h
        a(f"v_lshlrev_b32 v{T+h}, 16, v{r}")
        a(f"v_and_b32 v{T+2+h}, 0xffff0000, v{r}")
        a(f"v_lshlrev_b32 v{T+4+h}, 16, v{r+1}")
        a(f"v_and_b32 v{T+6+h}, 0xffff0000, v{r+1}")
    for j in range(11):
        a(f"v_lshlrev_b32 v{KU+2*j}, 16, v{R[1+j]}")
        a(f"v_and_b32 v{KU+2*j+1}, 0xffff0000, v{R[1+j]}")
    for j in range(8): a(f"v_pk_mul_f32 {vr(KV+2*j,2)}, {vr(KU+2*j,2)}, {vr(T+6,2)}")
    for d in (2, 1, 0):
        for j in range(8):
            a(f"v_pk_fma_f32 {vr(KV+2*j,2)}, {vr(KU+2*(j+3-d),2)}, {vr(T+2*d,2)}, {vr(KV+2*j,2)}")
    a(f"s_waitcnt vmcnt({rem[19]})")
    for j in range(8):
        a(f"v_lshlrev_b32 v{VU+2*j}, 16, v{R[12+j]}")
        a(f"v_and_b32 v{VU+2*j+1}, 0xffff0000, v{R[12+j]}")
    for j in range(8): a(f"v_pk_mul_f32 {vr(KV+2*j,2)}, {vr(KV+2*j,2)}, {vr(VU+2*j,2)}")
    for h in range(2):
        o = O + 4 * h
        for i in range(4): a(f"v_cvt_pk_bf16_f32 v{o+i}, v{KV+2*(7-2*i)+h}, v{KV+2*(6-2*i)+h}")
        if xmod != "none": a(f"buffer_store_dwordx4 {vr(o,4)}, v2, s[88:91], s3 offen {xmod}")
        if h == 0: a("s_add_u32 s3, s3, 4096")

def prep7_scal():
    o = ["s_cmp_lt_u32 s31, 4"]
    for b, n in ((76, 2048 * 1152), (84, 2048 * 1152), (88, 576 * 8)): o.append(f"s_cselect_b32 s{b+2}, {n}, 0")
    o.append(f"s_cselect_b32 s29, {XR_BYTES}, 0")
    for b in (76, 84, 88): o += [f"s_and_b32 s{b+1}, s{b+1}, 0xffff", f"s_mov_b32 s{b+3}, 0x00020000"]
    o += ["s_lshl_b32 s34, s30, 2", "s_add_u32 s34, s34, s31", "s_lshl_b32 s34, s34, 3", "s_add_u32 s34, s34, s22",
          "s_mul_i32 s35, s34, 7282", "s_lshr_b32 s35, s35, 16", "s_mul_i32 s3, s35, 9", "s_sub_u32 s34, s34, s3",
          "s_lshl_b32 s3, s34, 18", "s_lshl_b32 s34, s34, 7", "s_lshl_b32 s35, s35, 1", f"s_movk_i32 s20, {4*1152}"]
    return o
def prep7_vec():
    return ["v_bfe_u32 v1, v0, 5, 1", "v_add_u32 v1, s35, v1", "v_and_b32 v2, 31, v0",
          f"v_mul_u32_u24 v6, {8*1152}, v1", "v_lshl_add_u32 v22, v2, 2, s34", "v_add_u32 v6, v6, v22", "v_lshlrev_b32 v22, 2, v22",
          "v_lshlrev_b32 v1, 4, v1", "v_sub_u32 v1, 4080, v1", "v_lshl_add_u32 v2, v2, 13, v1",
          f"v_subrev_u32 v1, {3*1152}, v6"]
```

```python
from gen_common import *
from gen_conv5 import prep7_scal, prep7_vec, prep6_load, prep6_compute, gate

G1_LDS = 155648
WBUF = 32768
XA0 = 98304
XAS = 14336
SLOT = 18432
RSLOT = [0, 32768, 65536, 98304, 116736, 135168]
P = 7
RING = 6
vW0, vW1, vX0, vX1, vX2, vRW, vRX0, vRX1, vST = 1, 2, 3, 4, 5, 6, 7, 8, 9
TMP = 10
vRW2 = 22
vPF = 23
FR = 24
ACC = 48
WR = 112

def slot_addr(q): return RSLOT[(q - 9) % 6]

def gemm1l(a, name="gemm1_kernel", stamp=False, do_epi=True, AB=1, prio=1, pf=0, stmod="sc0 sc1", MV=144, rot=1, il=1, st4=1, w2pf=1, do_prep=1, PF0=9, PFS=2, PL0=-5, BGS=2, BGE=2, kvpf=1, xm=0, hm=1):
    stmod = ['', 'sc0 sc1', 'nt', 'sc1', 'sc0 sc1 nt', 'sc1 nt', 'sc0', 'sc0 nt'][hm]
    kernel_header(a, name)
    a("s_cmp_ge_u32 s2, 256")
    a(f"s_cbranch_scc1 {name}_done")
    a("s_and_b32 s23, s2, 7")
    a("s_lshr_b32 s29, s2, 3")
    a("s_lshl_b32 s28, s23, 5")
    a("s_add_u32 s28, s28, s29")
    a("s_cmp_ge_u32 s28, 252")
    a(f"s_cbranch_scc1 {name}_side")
    if stamp:
        a("s_memtime s[70:71]")
        a("s_memrealtime s[72:73]")
        a("s_mov_b32 s20, 0"); a("s_mov_b32 s48, 0"); a("s_mov_b32 s59, 0")
    a(f"s_load_dwordx2 s[4:5], s[0:1], {KA['q']}")
    a(f"s_load_dwordx4 s[24:27], s[0:1], {KA['w1']}")
    a(f"s_load_dwordx2 s[6:7], s[0:1], {KA['ws']}")
    a(f"s_load_dwordx2 s[76:77], s[0:1], {KA['k']}")
    a(f"s_load_dwordx2 s[84:85], s[0:1], {KA['v']}")
    a(f"s_load_dwordx2 s[88:89], s[0:1], {KA['shift_k']}")
    a("v_lshrrev_b32 v10, 6, v0")
    a("v_and_b32 v11, 63, v0")
    a("v_readfirstlane_b32 s22, v10")
    a("s_mul_i32 s29, s28, 9363")
    a("s_lshr_b32 s30, s29, 16")
    a("s_mul_i32 s29, s30, 7")
    a("s_sub_u32 s31, s28, s29")
    a("s_mul_i32 s32, s31, 18")
    a("s_cmp_eq_u32 s31, 6")
    a("s_cselect_b32 s29, 1, 0")
    a("s_add_u32 s32, s32, s29")
    a("s_lshl_b32 s34, s31, 2")
    a("s_lshl_b32 s35, s30, 1")
    a("s_add_u32 s34, s34, s35")
    a("s_mul_i32 s35, s34, 7282")
    a("s_lshr_b32 s35, s35, 16")
    a("s_mul_i32 s35, s35, 9")
    a("s_sub_u32 s49, s34, s35")
    if not rot: a("s_mov_b32 s49, 0")
    for s in range(9):
        a(f"s_add_u32 s34, s49, {s}")
        a("s_sub_u32 s35, s34, 9")
        a("s_cmp_ge_u32 s34, 9")
        a("s_cselect_b32 s34, s35, s34")
        a(f"s_mul_i32 s{50+s}, s34, {64*9216}")
        a(f"s_lshl_b32 s{92+s}, s34, 7")
    a("v_lshrrev_b32 v12, 4, v11")
    a("v_and_b32 v13, 15, v11")
    a("s_and_b32 s33, s22, 3")
    a("s_lshl_b32 s33, s33, 4")
    a("v_add_u32 v14, s33, v12")
    a("v_mul_u32_u24 v14, 9216, v14")
    a("s_lshl_b32 s33, s30, 8")
    a("v_add_u32 v14, s33, v14")
    a("v_lshlrev_b32 v15, 1, v12")
    a("v_xor_b32 v15, v15, v13")
    a(f"v_lshl_add_u32 v{vW0}, v15, 4, v14")
    a("v_xor_b32 v15, 8, v15")
    a("v_lshl_add_u32 v14, v15, 4, v14")
    a(f"v_add_u32 v{vW1}, {8*9216 - 2048}, v14")
    a("v_lshrrev_b32 v14, 3, v11")
    a("v_and_b32 v15, 7, v11")
    a("v_xor_b32 v15, v15, v12")
    a("v_mul_u32_u24 v14, 1152, v14")
    a(f"v_lshl_add_u32 v{vX0}, v15, 4, v14")
    a("v_xor_b32 v15, 4, v15")
    a("v_lshl_add_u32 v14, v15, 4, v14")
    a(f"v_add_u32 v{vX1}, {8*1152 - 1024}, v14")
    a("s_lshr_b32 s33, s22, 2")
    a("s_and_b32 s34, s22, 3")
    a("s_lshl_b32 s34, s34, 12")
    a("s_lshl_b32 s40, s33, 14")
    a("s_add_u32 s40, s40, s34")
    a("s_xor_b32 s60, s40, 16384")
    a("s_add_u32 s34, s32, s22")
    a(f"s_mul_i32 s41, s34, {SLOT}")
    a("s_xor_b32 s35, s22, 4")
    a("s_add_u32 s34, s32, s35")
    a(f"s_mul_i32 s61, s34, {SLOT}")
    a("s_lshl_b32 s42, s22, 11")
    a("s_lshl_b32 s62, s35, 11")
    a("s_cmp_eq_u32 s22, 7")
    a("s_cselect_b64 s[64:65], 0, -1")
    a("s_cmp_eq_u32 s35, 7")
    a("s_cselect_b64 s[66:67], 0, -1")
    a("s_waitcnt lgkmcnt(0)")
    srd(a, 8, 4, 5, 2048 * 1152)
    a("s_cmp_eq_u32 s33, 0")
    a("s_cselect_b32 s12, s24, s26")
    a("s_cselect_b32 s13, s25, s27")
    a("s_cselect_b32 s36, s26, s24")
    a("s_cselect_b32 s37, s27, s25")
    a("s_and_b32 s13, s13, 0xffff")
    a("s_and_b32 s37, s37, 0xffff")
    a(f"s_mov_b32 s14, {576*9216}")
    a("s_mov_b32 s15, 0x00020000")
    a(f"s_mov_b32 s38, {576*9216}")
    a("s_mov_b32 s39, 0x00020000")
    a(f"s_load_dwordx2 s[24:25], s[0:1], {KA['w2']}")
    a(f"s_load_dwordx2 s[26:27], s[0:1], {KA['ssm_k']}")

    def stageA_dma(s, own=True):
        sr = "s[12:15]" if own else "s[36:39]"
        mW, sX, mX, ex = ("s40", "s41", "s42", "s[64:65]") if own else ("s60", "s61", "s62", "s[66:67]")
        g = []
        g.append([f"s_add_u32 m0, {mW}, {(s % 3) * WBUF}", f"s_add_u32 s21, s{50+s}, {4*9216 - 1024}",
                  f"buffer_load_dwordx4 v{vW0}, {sr}, s{50+s} offen lds"])
        g.append([f"buffer_load_dwordx4 v{vW0}, {sr}, s21 offen offset:1024 lds"])
        g.append([f"buffer_load_dwordx4 v{vW1}, {sr}, s{50+s} offen offset:2048 lds"])
        g.append([f"buffer_load_dwordx4 v{vW1}, {sr}, s21 offen offset:3072 lds"])
        g.append([f"s_add_u32 m0, {mX}, {XA0 + (s % 4) * XAS}", f"s_add_u32 s45, {sX}, s{92+s}", f"s_mov_b64 exec, {ex}",
                  f"buffer_load_dwordx4 v{vX0}, s[8:11], s45 offen lds", "s_mov_b64 exec, -1"])
        g.append([f"s_mov_b64 exec, {ex}", f"buffer_load_dwordx4 v{vX1}, s[8:11], s45 offen offset:1024 lds", "s_mov_b64 exec, -1"])
        return g
    def subB_dma(q):
        sa = slot_addr(q); j = q - 2
        g = []
        g.append([f"s_add_u32 m0, s42, {sa}", f"s_add_u32 s45, s44, {j*SLOT}", f"buffer_load_dwordx4 v{vX0}, s[8:11], s45 offen lds"])
        g.append([f"buffer_load_dwordx4 v{vX1}, s[8:11], s45 offen offset:1024 lds"])
        g.append([f"s_add_u32 m0, s43, {sa}", f"s_add_u32 s45, s68, {j*SLOT}", "s_mov_b64 exec, 0xffff", f"buffer_load_dwordx4 v{vX2}, s[8:11], s45 offen lds", "s_mov_b64 exec, -1"])
        return g
    def emit(groups):
        for g in groups:
            for x in g: a(x)

    def rest_setup():
        a("v_bfe_u32 v14, v11, 3, 1")
        a("s_lshl_b32 s34, s22, 1")
        a("v_add_u32 v14, s34, v14")
        a("v_mul_u32_u24 v14, 1152, v14")
        a("v_and_b32 v15, 7, v11")
        a("v_xor_b32 v15, s22, v15")
        a("v_lshl_add_u32 v14, v15, 4, v14")
        a("s_add_u32 s34, s49, s22")
        a("s_sub_u32 s35, s34, 9")
        a("s_cmp_ge_u32 s34, 9")
        a("s_cselect_b32 s34, s35, s34")
        a("s_lshl_b32 s63, s34, 7")
        a(f"v_mov_b32 v{vX2}, v14")
        a("v_lshrrev_b32 v14, 2, v13")
        a("v_and_b32 v15, 1, v12")
        a("v_lshl_add_u32 v15, v15, 2, v14")
        a("v_xor_b32 v15, s22, v15")
        a("v_lshl_add_u32 v14, v12, 3, v14")
        a("v_lshlrev_b32 v14, 8, v14")
        a("v_lshl_add_u32 v14, v15, 5, v14")
        a("v_and_b32 v15, 3, v11")
        a(f"v_lshl_add_u32 v{vRW}, v15, 3, v14")
        a(f"v_add_u32 v{vRW2}, 0x10000, v{vRW}")
        a("v_lshrrev_b32 v14, 1, v13")
        a("v_xor_b32 v14, v14, v12")
        a("v_lshlrev_b32 v15, 7, v13")
        a("v_lshl_add_u32 v14, v14, 4, v15")
        a(f"v_add_u32 v{vRX0}, {XA0}, v14")
        a(f"v_xor_b32 v{vRX1}, 64, v{vRX0}")
        a("s_lshl_b32 s34, s30, 3")
        a("s_add_u32 s34, s34, s22")
        a("s_lshr_b32 s35, s34, 2")
        a("s_lshl_b32 s35, s35, 18")
        a("s_and_b32 s34, s34, 3")
        a("s_lshl_b32 s34, s34, 9")
        a("s_add_u32 s34, s34, s35")
        a("v_lshlrev_b32 v14, 5, v13")
        a("v_lshl_add_u32 v14, v12, 3, v14")
        a(f"v_add_u32 v{vST}, s34, v14")
        a("v_lshlrev_b32 v14, 5, v13")
        a("v_lshrrev_b32 v15, 1, v12")
        a("v_lshl_add_u32 v14, v15, 4, v14")
        a("v_and_b32 v15, 1, v12")
        a("v_lshl_add_u32 v14, v15, 11, v14")
        a(f"v_add_u32 v{vPF}, s34, v14")
        a("s_lshl_b32 s43, s22, 8")
        a("s_add_u32 s43, s43, 16384")
        a(f"s_mul_i32 s44, s32, {SLOT}")
        a("s_add_u32 s68, s44, s100")
        a("s_add_u32 s44, s44, s63")
        a("s_mov_b32 s46, 0xbfb8aa3b")
        a("s_lshl_b32 s47, s32, 11")
        srd(a, 16, 6, 7, H_BYTES)

    def prefetch():
        a("s_mul_i32 s50, s30, 7")
        a("s_lshl_b32 s51, s23, 5")
        a("s_max_u32 s52, s50, s51")
        a("s_add_u32 s50, s50, 7")
        a("s_add_u32 s51, s51, 32")
        a("s_min_u32 s50, s50, s51")
        a("s_sub_u32 s50, s50, s52")
        a("s_sub_u32 s52, s28, s52")
        a("v_subrev_u32 v14, 256, v0")
        a("v_mul_lo_u32 v15, v14, s50")
        a("v_add_u32 v15, s52, v15")
        a("s_lshl_b32 s51, s50, 8")
        a("s_lshl_b32 s53, s30, 8")
        a(f"s_add_u32 s53, s53, {192*9216}")
        n = 0
        for it in range(3):
            a("v_cmp_gt_u32 vcc, 768, v15")
            a("v_lshrrev_b32 v16, 1, v15")
            a("v_mul_u32_u24 v16, 9216, v16")
            a("v_and_b32 v17, 1, v15")
            a("v_lshl_add_u32 v16, v17, 7, v16")
            a("s_and_b64 exec, exec, vcc")
            a(f"buffer_load_dword v{vPF}, v16, s[12:15], s53 offen")
            a(f"buffer_load_dword v{vPF}, v16, s[36:39], s53 offen")
            n += 2
            if it < 2: a("v_add_u32 v15, s51, v15")
        a("s_mov_b64 exec, -1")
        a("s_and_b32 s50, s28, 31")
        a(f"s_mul_i32 s50, s50, {576*128}")
        a("v_lshlrev_b32 v16, 7, v14")
        a(f"buffer_load_dword v{vPF}, v16, s[8:11], s50 offen")
        a(f"s_add_u32 s50, s50, {256*128}")
        a(f"buffer_load_dword v{vPF}, v16, s[8:11], s50 offen")
        a(f"s_add_u32 s50, s50, {256*128}")
        a("v_cmp_gt_u32 vcc, 64, v14")
        a("s_and_b64 exec, exec, vcc")
        a(f"buffer_load_dword v{vPF}, v16, s[8:11], s50 offen")
        a("s_mov_b64 exec, -1")
        return n + 3

    a("s_cmp_eq_u32 s33, 0")
    a(f"s_cbranch_scc0 {name}_proY")
    def with_prep(tag, wait):
        rest_setup()
        a(wait)
    emit(stageA_dma(0, True)); emit(stageA_dma(0, False))
    with_prep("x", "s_waitcnt vmcnt(0) lgkmcnt(0)")
    a("s_barrier")
    a(f"s_branch {name}_pro_end")
    a.label(f"{name}_proY")
    emit(stageA_dma(1, True)); emit(stageA_dma(1, False))
    with_prep("y", "s_waitcnt lgkmcnt(0)")
    a("s_barrier")
    emit(stageA_dma(2, True)); emit(stageA_dma(2, False))
    a.label(f"{name}_pro_end")
    a("s_cmp_ge_u32 s31, 5")
    a(f"s_cbranch_scc1 {name}_v19")

    def body(NSUB, prep=False):
        R = []; plidx = []; used_slots = set(); bq = []
        def pop_bg():
            if bq:
                for x in bq.pop(0): a(x)
                vm['n'] += 1; plidx.append(vm['n'])
        NPER = 9 + NSUB - P
        vm = dict(n=0)
        landed = {2: 0}
        lg = dict(n=0); lgidx = {}; waited = dict(lg=0)
        def wreg(mat, ks): return WR + (mat * 18 + ks) * 4
        def acc(sub, mat): return ACC + (sub % 8) * 8 + mat * 4
        def frags(p):
            if p < 9: return [(tt, sub, 2 * p + tt) for tt in range(2) for sub in range(P)]
            return [(ks & 1, p - 2, ks) for ks in range(18)]
        cur_base = dict(v=XA0)
        ring = dict(n=0)
        rslot = {}
        def emit_read(p, i):
            tt, sub, ks = frags(p)[i]
            if p < 9:
                off = XA0 + (p % 4) * XAS + sub * 2048
            else:
                sa = slot_addr(p)
                if i == 0 and not (sa >= cur_base['v'] and sa + SLOT - cur_base['v'] <= 65536):
                    d = sa - cur_base['v']
                    a(f"v_add_u32 v{vRX0}, {d & 0xffffffff}, v{vRX0}")
                    a(f"v_add_u32 v{vRX1}, {d & 0xffffffff}, v{vRX1}")
                    cur_base['v'] = sa
                off = sa + (ks >> 1) * 2048
            off -= cur_base['v']
            assert 0 <= off < 65536
            r = FR + (ring['n'] % RING) * 4; ring['n'] += 1
            rslot[(p, i)] = r
            a(f"ds_read_b128 {vr(r, 4)}, v{vRX1 if tt else vRX0} offset:{off}")
            lg['n'] += 1; lgidx[("X", p, i)] = lg['n']
        def emit_wread(s, tt, mat):
            b = s % 3
            base = f"v{vRW2}" if b == 2 else f"v{vRW}"
            off = ((b & 1) * WBUF if b < 2 else 0) + mat * 16384 + tt * 8192
            r = wreg(mat, 2 * s + tt)
            a(f"ds_read_b64_tr_b16 {vr(r,2)}, {base} offset:{off}")
            a(f"ds_read_b64_tr_b16 {vr(r+2,2)}, {base} offset:{off + 1024}")
            lg['n'] += 2; lgidx[("W", 2 * s + tt, mat)] = lg['n']
        def wait_lg(tag):
            need = lgidx[tag]
            if need <= waited['lg']: return
            n = lg['n'] - need
            a(f"s_waitcnt lgkmcnt({min(n, 15)})")
            waited['lg'] = need if n <= 15 else lg['n'] - 15
        def preload_list(p):
            o = []
            if p < 9:
                o += [lambda: emit_wread(p, 0, 0), lambda: emit_read(p, 0), lambda: emit_wread(p, 0, 1)]
                for i in range(1, RING): o.append(lambda i=i: emit_read(p, i))
                o += [lambda: emit_wread(p, 1, 0), lambda: emit_wread(p, 1, 1)]
            else:
                for i in range(RING): o.append(lambda i=i: emit_read(p, i))
            return o
        def preload(p):
            for f in preload_list(p): f()
        epq = []
        def add_epi(sub, avail):
            G = acc(sub, 0); U = acc(sub, 1); T = TMP; O = TMP + 8 + (sub & 1) * 2
            ops = []
            for r in range(4): ops.append((4, [f"v_mul_f32 v{T+r}, s46, v{G+r}"]))
            for r in range(4): ops.append((8, [f"v_exp_f32 v{T+r}, v{T+r}"]))
            for r in range(4): ops.append((4, [f"v_mul_f32 v{T+4+r}, v{G+r}, v{U+r}"]))
            for r in range(4): ops.append((4, [f"v_add_f32 v{T+r}, 1.0, v{T+r}"]))
            for r in range(4): ops.append((8, [f"v_rcp_f32 v{T+r}, v{T+r}"]))
            for r in range(4): ops.append((4, [f"v_mul_f32 v{T+4+r}, v{T+4+r}, v{T+r}"]))
            ops.append((4, [f"v_cvt_pk_bf16_f32 v{O}, v{T+4}, v{T+5}"]))
            ops.append((4, [f"v_cvt_pk_bf16_f32 v{O+1}, v{T+6}, v{T+7}"]))
            if st4 and (sub & 1):
                O0 = TMP + 8
                ops.append((8, ["s_nop 0", f"v_permlane16_swap_b32 v{O0}, v{O0+2}", f"v_permlane16_swap_b32 v{O0+1}, v{O0+3}"]))
                st = ["s_nop 0", f"buffer_store_dwordx4 {vr(O0,4)}, v{vPF}, s[16:19], s47 offen {stmod}", "s_add_u32 s47, s47, 4096"]
                ops.append((0, st, "vm"))
            elif st4 and sub < NSUB - 1:
                ops.append((0, [], "novm"))
            else:
                st = [f"buffer_store_dwordx2 {vr(O,2)}, v{vST}, s[16:19], s47 offen offset:{(sub&1)*2048} {stmod}"]
                if sub & 1: st.append("s_add_u32 s47, s47, 4096")
                ops.append((0, st, "vm"))
            for o in ops: epq.append((o[0], o[1], avail, len(o) > 2, sub))
        if do_epi:
            for sub in range(NSUB): add_epi(sub, max(8, sub + 2))
        done_sub = set()
        sched = {p: [] for p in range(NPER)}
        for p in range(NPER):
            if p + 3 <= 11: sched[p] = [p + 3]
        nq = 12
        for p in range(9, NPER):
            k = 0
            while nq < NPER and nq - 6 <= p - 1 and k < 2:
                sched[p].append(nq); nq += 1; k += 1
        preload(0)
        a(f"s_cmp_eq_u32 s33, 0")
        a(f"s_cbranch_scc1 {name}_skipY{NSUB}")
        a("s_waitcnt vmcnt(12) lgkmcnt(0)")
        a("s_barrier")
        a.label(f"{name}_skipY{NSUB}")
        for p in range(NPER):
            fr = frags(p); nf = len(fr); mcred = 0.0
            if stamp and p == NPER - 1:
                a("s_memtime s[80:81]"); a("s_waitcnt lgkmcnt(0)"); a("s_sub_u32 s48, s80, s70")
            if prio: a("s_setprio 1")
            for i in range(nf):
                tt, sub, ks = fr[i]
                if ks == 0 and do_epi and sub >= 8: assert (sub - 8) in done_sub
                for mat in range(2):
                    wait_lg(("X", p, i))
                    if p < 9: wait_lg(("W", ks, mat))
                    c = "0" if ks == 0 else vr(acc(sub, mat), 4)
                    a(f"v_mfma_f32_16x16x32_bf16 {vr(acc(sub,mat),4)}, {vr(wreg(mat,ks),4)}, {vr(rslot[(p,i)],4)}, {c}")
                    if mat == 0 and p >= 9:
                        mcred = min(mcred + MV / 18.0, 12); u = 0
                        while epq and epq[0][2] <= p - 1 and not epq[0][3] and epq[0][0] <= mcred and u + epq[0][0] <= 8:
                            c_, ins, av, isvm, sb = epq.pop(0)
                            for x in ins: a(x)
                            mcred -= c_; u += c_
                if i + RING < nf: emit_read(p, i + RING)
                if i % BGS == BGS - 1 and i < nf - 1 - AB: pop_bg()
                if i == nf - 1 - AB:
                    a("s_waitcnt lgkmcnt(0)"); waited['lg'] = lg['n']
                    if prio: a("s_setprio 3")
                    if p == NPER - 1:
                        a(f"s_cmp_eq_u32 s33, 0")
                        a(f"s_cbranch_scc0 {name}_skipA{NSUB}")
                        a("s_barrier")
                        a.label(f"{name}_skipA{NSUB}")
                    else:
                        a("s_barrier")
            if prio: a("s_setprio 0")
            if stamp and p == 8:
                a("s_memtime s[82:83]"); a("s_memrealtime s[80:81]"); a("s_waitcnt lgkmcnt(0)"); a("s_sub_u32 s59, s80, s72")
            if p == NPER - 1: break
            pl = preload_list(p + 1)
            if not il:
                for f in pl: f()
                pl = []
            dq = []
            for q in sched[p]:
                gs = stageA_dma(q) if q < 9 else subB_dma(q)
                for k, gg in enumerate(gs): dq.append((gg, q if k == len(gs) - 1 else None))
            if p == 1:
                pre = []
                if prep: pre += prep7_scal()
                pre += ["s_lshl_b32 s62, s28, 1", "s_add_u32 s62, s62, s33", "s_lshl_b32 s62, s62, 1", "s_and_b32 s60, s22, 1", "s_add_u32 s62, s62, s60",
                       "s_sub_u32 s60, s62, 648", f"s_mov_b32 s38, {576*4096}",
                       "s_cmp_lt_u32 s62, 648",
                       "s_cselect_b32 s62, s62, s60", "s_cselect_b32 s36, s24, s26", "s_cselect_b32 s37, s25, s27",
                       f"s_cselect_b32 s38, {4608*1152}, s38", "s_and_b32 s37, s37, 0xffff", "s_lshl_b32 s62, s62, 13",
                       "s_and_b32 s60, s22, 3"]
                if prep:
                    pre += ["s_cmp_eq_u32 s60, 0", "s_cselect_b32 s36, s76, s36", "s_cselect_b32 s37, s77, s37", "s_cselect_b32 s38, s78, s38",
                            "s_cmp_eq_u32 s60, 1", "s_cselect_b32 s36, s84, s36", "s_cselect_b32 s37, s85, s37", "s_cselect_b32 s38, s86, s38",
                            "s_lshl_b32 s61, s30, 2", "s_add_u32 s61, s61, s31", "s_lshl_b32 s61, s61, 1", "s_add_u32 s61, s61, s33", "s_lshl_b32 s61, s61, 2"]
                dq[0] = (pre + dq[0][0], dq[0][1])
            if p == 6:
                pre = ["v_and_b32 v10, 63, v0", "v_lshlrev_b32 v1, 7, v10", "v_add_u32 v1, s62, v1"]
                if prep:
                    pre += ["s_cmp_lt_u32 s60, 2", "s_cselect_b64 exec, -1, 0",
                            "v_lshrrev_b32 v11, 4, v10", "v_add_u32 v11, s61, v11", "v_mul_u32_u24 v12, 7282, v11", "v_lshrrev_b32 v12, 16, v12",
                            "v_mul_u32_u24 v13, 9, v12", "v_sub_u32 v11, v11, v13", "v_and_b32 v10, 15, v10", "v_lshl_add_u32 v10, v12, 4, v10",
                            "v_mul_u32_u24 v10, 1152, v10", "v_lshl_add_u32 v1, v11, 7, v10", "s_mov_b64 exec, -1"]
                dq[0] = (pre + dq[0][0], dq[0][1])
            if p >= PF0 and (p - PF0) % PFS == 0 and (p - PF0) // PFS < 4:
                k = (p - PF0) // PFS
                if (k >= 2 and w2pf) or (k < 2 and prep and kvpf):
                    dq.append(([f"s_cmp_eq_u32 s60, {k}", "s_cselect_b64 exec, -1, 0", f"buffer_load_dword v{9 if prep else 2}, v1, s[36:39], 0 offen", "s_mov_b64 exec, -1"], None))
            def pop_dma():
                gg, q = dq.pop(0)
                for x in gg: a(x)
                vm['n'] += 1
                if q is not None: landed[q] = vm['n']
            if p >= 8 and epq:
                rem = sum(o[0] for o in epq if o[4] < NSUB - 1)
                budget = rem / (NPER - 1 - p) - MV * 0.9
                used = 0
                step = budget / (len(dq) + 0.5) if dq else 1e9
                nxt_d = 0; nxt_p = 8
                while epq and epq[0][2] <= p and (used + epq[0][0] <= budget + 3 or epq[0][0] == 0):
                    if dq and used >= nxt_d:
                        pop_dma(); nxt_d += step
                    elif pl and used >= nxt_p:
                        pl.pop(0)(); nxt_p = used + 8
                    c, ins, av, isvm, sub = epq.pop(0)
                    for x in ins: a(x)
                    used += c
                    if isvm:
                        done_sub.add(sub)
                        if ins: vm['n'] += 1
            while dq:
                pop_dma()
                for k in range(2):
                    if pl: pl.pop(0)()
            for f in pl: f()
            if prep and p >= NPER + PL0 and len(R) < 20:
                assert all(not sched[pp] for pp in range(p, NPER))
                busy = set(sb % 8 for sb in range(NSUB) if sb not in done_sub)
                for sl in range(8):
                    if sl in busy or sl in used_slots or len(R) >= 20: continue
                    used_slots.add(sl)
                    if not R:
                        assert p >= PF0 + 3 * PFS
                        for x in prep7_vec(): a(x)
                    r = ACC + sl * 8
                    while r < ACC + sl * 8 + 8 and len(R) < 20:
                        bq.append(prep6_load(len(R), r))
                        R.append(r); r += 4 if len(R) == 1 else 1
            for _ in range(BGE): pop_bg()
            if p + 2 < NPER:
                a(f"s_waitcnt vmcnt({min(63, vm['n'] - landed[p + 2])}) lgkmcnt(0)")
            else:
                a("s_waitcnt lgkmcnt(0)")
            waited['lg'] = lg['n']
            a("s_barrier")
        if stamp:
            a("s_memtime s[74:75]")
        a("s_nop 7")
        a("s_nop 3")
        while epq:
            c, ins, av, isvm, sub = epq.pop(0)
            for x in ins: a(x)
            if isvm and ins: vm['n'] += 1
        if prep:
            a("s_nop 1")
            assert len(R) == 20 and not bq
            prep6_compute(a, R, [vm['n'] - x for x in plidx], ['', 'sc0 sc1', 'nt', 'none', 'sc1'][xm])
        if stamp:
            a("s_memtime s[80:81]"); a("s_waitcnt lgkmcnt(0)"); a("s_sub_u32 s20, s80, s70")
            a("s_waitcnt vmcnt(0)")
            a("s_memrealtime s[80:81]")
            a("s_waitcnt lgkmcnt(0)")
            for d, s in ((74, 70), (82, 70)): a(f"s_sub_u32 s{d}, s{d}, s{s}")
            for k, s in enumerate((72, 80, 59, 82, 74, 28, 20, 48)): a(f"v_mov_b32 v{24+k}, s{s}")
            a("s_lshl_b32 s70, s2, 3")
            a("s_add_u32 s70, s70, s22")
            a("s_lshl_b32 s70, s70, 5")
            a("s_add_u32 s70, s70, 0x8000000")
            a("v_mov_b32 v32, s70")
            a("s_mov_b64 exec, 1")
            a("global_store_dwordx4 v32, v[24:27], s[6:7]")
            a("global_store_dwordx4 v32, v[28:31], s[6:7] offset:16")
        a("s_endpgm")
    body(18, bool(do_prep))
    a.label(f"{name}_v19")
    body(19)
    a.label(f"{name}_side")
    gate(a, name)
    a.label(f"{name}_done")
    a("s_endpgm")
    kernel_desc(a, name, 256, 102)

if __name__ == "__main__":
    import sys
    opts = sys.argv[2:]
    a = Asm()
    a.raw(f"; @launch kernel=gemm1_kernel grid=(256,1,1) block=(512,1,1) lds={G1_LDS}")
    a.raw('.amdgcn_target "amdgcn-amd-amdhsa--gfx950"')
    kw = {}
    for o in opts:
        if "=" in o:
            k, v = o.split("="); kw[k] = float(v) if "." in v else int(v)
    gemm1l(a, stamp="stamp" in opts, do_epi="noepi" not in opts, **kw)
    open(sys.argv[1], "w").write(a.text())
```

```python
from gen_common import *
from gen_conv4 import *
from gen_conv5 import conv5

G2_STAGE = 40960
NSTG = 4
G2_LDS = NSTG * G2_STAGE
PB_BYTES = 4 * 2048 * 576 * 2
CW = 12928
C1OFF = 4160; XOFF = 8320

def gemm2e(a, name="gemm2_kernel", stamp=False, N1=18, do_conv=False, stmod="sc0 sc1", pp=1, AB=1, convonly=0, noconv=0, pm=1, zm=0, lm=0):
    MODS = ['', 'sc0 sc1', 'nt', 'sc1', 'sc0 sc1 nt', 'sc1 nt', 'sc0', 'sc0 nt']
    stmod = MODS[pm]; lmod = MODS[lm]
    kernel_header(a, name)
    a("s_cmp_ge_u32 s2, 256")
    a(f"s_cbranch_scc1 {name}_done")
    a("s_and_b32 s28, s2, 7")
    a("s_lshr_b32 s29, s2, 3")
    a("s_cmp_lt_u32 s29, 8")
    a(f"s_cbranch_scc1 {name}_conv")
    if convonly: a(f"s_branch {name}_done")
    if stamp:
        a("s_memtime s[70:71]")
        a("s_memrealtime s[72:73]")
    a(f"s_load_dwordx2 s[4:5], s[0:1], {KA['w2']}")
    a(f"s_load_dwordx2 s[6:7], s[0:1], {KA['ws']}")
    a("v_lshrrev_b32 v1, 6, v0")
    a("v_and_b32 v2, 63, v0")
    a("v_readfirstlane_b32 s22, v1")
    a("s_mul_i32 s28, s28, 24")
    a("s_add_u32 s23, s28, s29")
    a("s_sub_u32 s23, s23, 8")
    a("s_mul_i32 s29, s23, 1366")
    a("s_lshr_b32 s30, s29, 16")
    a("s_mul_i32 s29, s30, 48")
    a("s_sub_u32 s28, s23, s29")
    a("s_mul_i32 s29, s28, 21846")
    a("s_lshr_b32 s31, s29, 16")
    a("s_mul_i32 s29, s31, 3")
    a("s_sub_u32 s34, s28, s29")
    a("s_and_b32 s47, s22, 3")
    a("s_and_b32 s32, s22, 1")
    a("s_lshr_b32 s33, s47, 1")
    a(f"s_mul_i32 s35, s30, {N1}")
    a("v_lshrrev_b32 v3, 4, v2")
    a("v_and_b32 v4, 15, v2")
    a("v_lshlrev_b32 v8, 4, v2")
    a("s_lshl_b32 s37, s47, 12")
    a("v_add_u32 v8, s37, v8")
    a("s_mul_i32 s37, s47, 384")
    a("s_movk_i32 s38, 2731")
    a("s_movk_i32 s39, 1152")
    a("s_mul_i32 s40, s34, 384")
    for j in range(6):
        d = 10 + j
        a(f"v_add_u32 v5, {64*j}, v2")
        a("v_add_u32 v5, s37, v5")
        a("v_mul_lo_u32 v6, v5, s38")
        a("v_lshrrev_b32 v6, 16, v6")
        a("v_mul_u32_u24 v7, 24, v6")
        a("v_sub_u32 v7, v5, v7")
        a("v_bfe_u32 v16, v6, 1, 1")
        a("v_bfe_u32 v17, v6, 3, 1")
        a("v_lshl_add_u32 v16, v17, 1, v16")
        a("v_lshlrev_b32 v16, 1, v16")
        a("v_xor_b32 v7, v7, v16")
        a("v_mul_lo_u32 v6, v6, s39")
        a("v_lshl_add_u32 v6, v7, 4, v6")
        a("v_add_u32 v6, s40, v6")
        a(f"v_subrev_u32 v{d}, {1024*(j%3)}, v6")
    a("s_lshl_b32 s20, s31, 14")
    a("s_lshl_b32 s41, s35, 18")
    a("s_add_u32 s20, s20, s41")
    a(f"s_mul_i32 s21, s35, {64*1152}")
    a("s_lshl_b32 s43, s47, 12")
    a("s_mul_i32 s44, s47, 6144")
    a("s_add_u32 s44, s44, 16384")
    a("s_waitcnt lgkmcnt(0)")
    srd(a, 8, 4, 5, 4608 * 1152)
    srd(a, 12, 6, 7, H_BYTES)

    def dma_ops(stage, adv=1):
        b = (stage % NSTG) * G2_STAGE
        ops = []
        ops.append([f"s_add_u32 m0, s43, {b}", "s_nop 0", f"buffer_load_dwordx4 v8, s[12:15], s20 offen {lmod} lds"])
        for j in range(1, 4):
            ops.append([f"buffer_load_dwordx4 v8, s[12:15], s20 offen offset:{1024*j} {lmod} lds"])
        for hh in range(2):
            for j in range(3):
                o = []
                if j == 0:
                    o = [f"s_add_u32 m0, s44, {b + hh*3072}", "s_nop 0"]
                off = f" offset:{1024*j}" if j else ""
                o.append(f"buffer_load_dwordx4 v{10+hh*3+j}, s[8:11], s21 offen{off} lds")
                ops.append(o)
        ops[-1] += [f"s_add_u32 s20, s20, {262144*adv}", f"s_add_u32 s21, s21, {64*1152*adv}"]
        return ops
    def emit(ops):
        for o in ops:
            for x in o: a(x)

    a("s_cmp_ge_u32 s22, 4")
    a(f"s_cbranch_scc1 {name}_prod")
    emit(dma_ops(0))
    a("v_lshrrev_b32 v5, 1, v3")
    a("v_lshlrev_b32 v5, 9, v5")
    a("v_and_b32 v6, 1, v3")
    a("v_lshl_add_u32 v5, v6, 4, v5")
    a("s_lshl_b32 s41, s32, 13")
    a("v_lshl_add_u32 v7, v4, 5, v5")
    a("v_add_u32 v16, s41, v7")
    for b in range(1, NSTG):
        a(f"v_add_u32 v{16+b}, {b*G2_STAGE}, v16")
    a("v_lshrrev_b32 v5, 2, v4")
    a("v_lshl_add_u32 v6, v3, 3, v5")
    a("v_mul_u32_u24 v6, 384, v6")
    a("v_and_b32 v7, 1, v2")
    a("v_lshl_add_u32 v6, v7, 4, v6")
    a("v_add_u32 v6, 16384, v6")
    a("v_lshrrev_b32 v5, 1, v5")
    a("v_and_b32 v7, 1, v3")
    a("v_lshl_add_u32 v5, v7, 1, v5")
    a("v_bfe_u32 v9, v2, 1, 1")
    a("v_xor_b32 v5, v5, v9")
    for jj4 in range(4):
        a("s_mul_i32 s41, s33, 3")
        a(f"s_add_u32 s41, s41, {jj4>>1}")
        a("s_and_b32 s42, s41, 1")
        a("s_lshl_b32 s42, s42, 1")
        a("s_lshr_b32 s41, s41, 1")
        a("s_lshl_b32 s41, s41, 7")
        a("v_xor_b32 v7, s42, v5")
        a("v_lshl_add_u32 v7, v7, 5, v6")
        a(f"v_xor_b32 v36, {jj4&1}, v9")
        a("v_lshl_add_u32 v7, v36, 3, v7")
        a(f"v_add_u32 v{20+jj4}, s41, v7")
        for b in range(1, NSTG):
            a(f"v_add_u32 v{20+4*b+jj4}, {b*G2_STAGE}, v{20+jj4}")
    a(f"s_add_u32 s16, s6, {WS_P}")
    a("s_addc_u32 s17, s7, 0")
    a("s_and_b32 s17, s17, 0xffff")
    a(f"s_mov_b32 s18, {PB_BYTES}")
    a("s_mov_b32 s19, 0x00020000")
    FR = 40; ACC = 128
    def acc(mi, j): return ACC + (mi * 6 + j) * 4
    def fa(t, mi): return FR + (t & 1) * 40 + mi * 4
    def fb(t, j): return FR + (t & 1) * 40 + 16 + j * 4
    def read_ops(t):
        st = t >> 1; b = st % NSTG; tt = t & 1
        ops = []
        for mi in range(4):
            ops.append(f"ds_read_b128 {vr(fa(t,mi),4)}, v{16+b} offset:{tt*1024 + mi*2048}")
        for j in range(6):
            off = tt * 32 * 384 + (j >> 2) * 128
            ops.append(f"ds_read_b64_tr_b16 {vr(fb(t,j),2)}, v{20+4*b+(j&3)} offset:{off}")
            ops.append(f"ds_read_b64_tr_b16 {vr(fb(t,j)+2,2)}, v{20+4*b+(j&3)} offset:{off + 4*384}")
        A = ops[:4]; B = ops[4:]
        return [A[0], B[0], B[1], A[1], A[2], A[3]] + B[2:]
    a("s_setprio 1")
    a("s_waitcnt vmcnt(0)")
    a("s_barrier")
    if stamp: a("s_memtime s[84:85]")
    for x in read_ops(0): a(x)
    a("s_waitcnt lgkmcnt(0)")
    def cons(NST):
        NT = 2 * NST
        for t in range(NT):
            st = t >> 1
            if (t & 1) and st + 1 < NST:
                a("s_barrier")
            rd = read_ops(t + 1) if t + 1 < NT else []
            for j in range(6):
                for mi in range(4):
                    c = "0" if t == 0 else vr(acc(mi, j), 4)
                    a(f"v_mfma_f32_16x16x32_bf16 {vr(acc(mi,j),4)}, {vr(fb(t,j),4)}, {vr(fa(t,mi),4)}, {c}")
                    if rd: a(rd.pop(0))
            if t + 1 < NT:
                a("s_waitcnt lgkmcnt(0)")
    cons(N1)
    if stamp: a("s_memtime s[74:75]")
    a("s_lshl_b32 s45, s30, 7")
    a("s_lshl_b32 s46, s31, 3")
    a("s_add_u32 s45, s45, s46")
    a("s_lshl_b32 s46, s32, 2")
    a("s_add_u32 s45, s45, s46")
    a("s_mul_i32 s45, s45, 18")
    a("s_mul_i32 s46, s34, 6")
    a("s_add_u32 s45, s45, s46")
    a("s_mul_i32 s46, s33, 3")
    a("s_add_u32 s45, s45, s46")
    a("s_lshl_b32 s45, s45, 10")
    a("v_lshlrev_b32 v5, 4, v2")
    a("v_cmp_lt_u32 vcc, 31, v2")
    a("s_nop 3")
    k = 0
    for mi in range(4):
        for pq in range(3):
            t0 = acc(mi, 2 * pq); t1 = acc(mi, 2 * pq + 1)
            T = FR + (k % 4) * 8; k += 1
            a(f"v_cvt_pk_bf16_f32 v{T}, v{t0}, v{t0+1}")
            a(f"v_cvt_pk_bf16_f32 v{T+1}, v{t0+2}, v{t0+3}")
            a(f"v_cvt_pk_bf16_f32 v{T+2}, v{t1}, v{t1+1}")
            a(f"v_cvt_pk_bf16_f32 v{T+3}, v{t1+2}, v{t1+3}")
            a(f"v_cndmask_b32 v{T+4}, v{T}, v{T+2}, vcc")
            a(f"v_cndmask_b32 v{T+5}, v{T+1}, v{T+3}, vcc")
            a(f"v_cndmask_b32 v{T+6}, v{T+2}, v{T}, vcc")
            a(f"v_cndmask_b32 v{T+7}, v{T+3}, v{T+1}, vcc")
            a(f"buffer_store_dwordx4 {vr(T+4,4)}, v5, s[16:19], s45 offen offset:{pq*1024} {stmod}")
        if mi < 3: a(f"s_add_u32 s45, s45, {18*1024}")
    def stamp_out():
        a("s_waitcnt vmcnt(0)")
        a("s_memrealtime s[80:81]")
        a("s_memtime s[86:87]")
        a("s_waitcnt lgkmcnt(0)")
        for d, s in ((74, 70), (84, 70), (86, 70)): a(f"s_sub_u32 s{d}, s{d}, s{s}")
        for kk, s in enumerate((72, 80, 84, 74, 86, 23, 22, 22)): a(f"v_mov_b32 v{24+kk}, s{s}")
        a("s_lshl_b32 s70, s2, 3")
        a("s_add_u32 s70, s70, s22")
        a("s_lshl_b32 s70, s70, 5")
        a("s_add_u32 s70, s70, 0x8000000")
        a("v_mov_b32 v32, s70")
        a("s_mov_b64 exec, 1")
        a("global_store_dwordx4 v32, v[24:27], s[6:7]")
        a("global_store_dwordx4 v32, v[28:31], s[6:7] offset:16")
    if stamp: stamp_out()
    a("s_endpgm")

    a.label(f"{name}_prod")
    a("s_add_u32 s20, s20, 262144")
    a(f"s_add_u32 s21, s21, {64*1152}")
    emit(dma_ops(1))
    a("s_barrier")
    if stamp: a("s_memtime s[84:85]")
    emit(dma_ops(2)); emit(dma_ops(3))
    def prod(NST, conv):
        issued = 30
        landed = {1: 10, 2: 20, 3: 30}
        CB = ((NST - 4) % NSTG) * G2_STAGE
        for st in range(NST - 1):
            a(f"s_waitcnt vmcnt({issued - landed[st + 1]})")
            a("s_barrier")
            if st + NSTG < NST:
                emit(dma_ops(st + NSTG)); issued += 10; landed[st + NSTG] = issued
            if conv and st == NST - 3:
                a(f"s_mul_i32 s68, s47, {CW}")
                a(f"s_add_u32 s68, s68, {CB}")
                a("v_lshlrev_b32 v5, 4, v2")
                a("s_add_u32 m0, s68, 32")
                a("s_nop 0")
                for i in range(4): a(f"buffer_load_dwordx4 v5, s[56:59], s49 offen offset:{1024*i} lds")
                a(f"s_add_u32 m0, s68, {C1OFF + 32}")
                a("s_mov_b64 exec, -2")
                a("buffer_load_dwordx4 v5, s[60:63], s49 offen lds")
                a("s_mov_b64 exec, -1")
                for i in range(1, 4): a(f"buffer_load_dwordx4 v5, s[60:63], s49 offen offset:{1024*i} lds")
                a(f"s_add_u32 m0, s68, {XOFF}")
                a("s_nop 0")
                for i in range(4): a(f"buffer_load_dwordx4 v5, s[64:67], s49 offen offset:{1024*i} lds")
                issued += 12
                a("v_mov_b32 v32, 0"); a("v_mov_b32 v33, 0")
                a("v_and_b32 v6, 3, v2")
                a("v_lshl_add_u32 v6, v6, 3, s68")
                a("ds_write_b64 v6, v[32:33]")
                a(f"ds_write_b64 v6, v[32:33] offset:{C1OFF}")
                a("v_lshl_add_u32 v6, v2, 3, s68")
                a(f"ds_write_b64 v6, v[32:33] offset:{XOFF + 4096}")
                a("s_waitcnt lgkmcnt(0)")
                a("s_lshl_b32 s76, s52, 16")
                for k in range(3):
                    a(f"s_lshr_b32 s{77+k}, s{52+k}, 16")
                    a(f"s_lshl_b32 s69, s{53+k}, 16")
                    a(f"s_or_b32 s{77+k}, s{77+k}, s69")
                for k in range(4): a(f"v_mov_b32 v{32+k}, s{76+k}")
                a("v_mov_b32 v6, s68")
                a(f"ds_write_b128 v6, v[32:35] offset:{C1OFF + 32}")
        if not conv:
            if stamp:
                a("s_memtime s[74:75]"); stamp_out()
            a("s_endpgm"); return
        a("v_lshrrev_b32 v5, 1, v4")
        a("v_lshl_add_u32 v5, v3, 2, v5")
        a("v_lshlrev_b32 v5, 2, v5")
        a("v_and_b32 v6, 1, v4")
        a("v_xor_b32 v6, 1, v6")
        a(f"v_mul_u32_u24 v6, {C1OFF}, v6")
        a("v_add3_u32 v5, v5, v6, 4")
        a("v_add_u32 v16, s68, v5")
        for k in range(1, 4): a(f"v_add_u32 v{16+k}, {1024*k}, v16")
        a("v_lshlrev_b32 v7, 5, v4")
        a("v_lshlrev_b32 v6, 4, v3")
        a("v_sub_u32 v7, v6, v7")
        a(f"s_add_u32 s69, s68, {XOFF + 480}")
        a("v_add_u32 v20, s69, v7")
        a("v_lshlrev_b32 v7, 5, v4")
        a("v_lshl_add_u32 v7, v3, 3, v7")
        a(f"s_add_u32 s69, s68, {XOFF + 504}")
        a("v_sub_u32 v21, s69, v7")
        a("v_add_u32 v22, s68, v7")
        a("s_and_b32 s50, s48, 1")
        a("s_lshl_b32 s50, s50, 4")
        a("s_lshr_b32 s51, s51, s50")
        a("s_lshl_b32 s51, s51, 16")
        CA = 32; CF = 64
        def cfa(r, i): return CF + (r & 1) * 64 + i * 4
        def cfb(r, i): return CF + (r & 1) * 64 + 32 + i * 4
        def creads(r):
            o = []
            for i in range(8):
                d = 128 * (i & 1) + 16 * r
                o.append(f"ds_read2_b32 {vr(cfa(r,i),2)}, v{16 + (i>>1)} offset0:{d} offset1:{d+1}")
                o.append(f"ds_read2_b32 {vr(cfa(r,i)+2,2)}, v{16 + (i>>1)} offset0:{d+2} offset1:{d+3}")
                o.append(f"ds_read_b128 {vr(cfb(r,i),4)}, v20 offset:{3584 - 512*i + 64*r}")
            return o
        a("s_waitcnt vmcnt(0) lgkmcnt(0)")
        if stamp: a("s_memtime s[74:75]")
        for nt in range(8): a(f"ds_read_b64 {vr(192+2*nt,2)}, v21 offset:{3584 - 512*nt}")
        for x in creads(0): a(x)
        a("s_waitcnt lgkmcnt(15)")
        a("s_waitcnt lgkmcnt(0)")
        for nt in range(8):
            k0 = 192 + 2 * nt; y = CA + 4 * nt
            a(f"v_and_b32 v{y}, 0xffff0000, v{k0+1}")
            a(f"v_lshlrev_b32 v{y+1}, 16, v{k0+1}")
            a(f"v_and_b32 v{y+2}, 0xffff0000, v{k0}")
            a(f"v_lshlrev_b32 v{y+3}, 16, v{k0}")
            for r in range(4): a(f"v_mul_f32 v{y+r}, s51, v{y+r}")
        a("s_nop 1")
        for r in range(8):
            rd = creads(r + 1) if r < 7 else []
            for aa in range(8):
                for nt in range(aa, 8):
                    a(f"v_mfma_f32_16x16x32_bf16 {vr(CA+4*nt,4)}, {vr(cfa(r,aa),4)}, {vr(cfb(r,nt-aa),4)}, {vr(CA+4*nt,4)}")
                    if rd: a(rd.pop(0))
            if r < 7: a("s_waitcnt lgkmcnt(0)")
        a("s_nop 7")
        a("s_nop 3")
        for nt in range(8):
            y = CA + 4 * nt
            a(f"v_cvt_pk_bf16_f32 v{CF+2*nt}, v{y}, v{y+1}")
            a(f"v_cvt_pk_bf16_f32 v{CF+2*nt+1}, v{y+2}, v{y+3}")
            a(f"ds_write_b64 v22, {vr(CF+2*nt,2)} offset:{512*nt}")
        a("s_waitcnt lgkmcnt(0)")
        a("s_barrier")
        a("v_subrev_u32 v5, 256, v0")
        a("v_lshlrev_b32 v9, 2, v5")
        a(f"v_add_u32 v9, {CB}, v9")
        a("v_lshlrev_b32 v10, 4, v5")
        a("s_lshl_b32 s30, s23, 14")
        a("s_mov_b32 s31, 0x05040100")
        a("s_mov_b32 s32, 0x07060302")
        for i in range(4):
            for ch in range(4):
                a(f"ds_read_b32 v{96+4*i+ch}, v9 offset:{ch*CW + 1024*i}")
        for i in range(4):
            a(f"s_waitcnt lgkmcnt({12-4*i})")
            s = 96 + 4 * i; d = 128 + 4 * i
            a(f"v_perm_b32 v{d}, v{s+1}, v{s}, s31")
            a(f"v_perm_b32 v{d+1}, v{s+3}, v{s+2}, s31")
            a(f"v_perm_b32 v{d+2}, v{s+1}, v{s}, s32")
            a(f"v_perm_b32 v{d+3}, v{s+3}, v{s+2}, s32")
            if i: a("v_add_u32 v10, 4096, v10")
            a(f"buffer_store_dwordx4 {vr(d,4)}, v10, s[16:19], s30 offen {stmod}")
        if stamp: stamp_out()
        a("s_endpgm")
    prod(N1, False)
    a.label(f"{name}_conv")
    if not noconv:
        a("s_lshl_b32 s23, s28, 3")
        a("s_add_u32 s23, s23, s29")
        conv5(a, name, stamp=stamp, pp=pp, AB=AB, zmod=MODS[zm])
    a.label(f"{name}_done")
    a("s_endpgm")
    kernel_desc(a, name, 224, 96)
```

```python
import sys
from gen_common import *
from gen_gemm1l import gemm1l, G1_LDS
from gen_gemm2e import gemm2e, G2_LDS
from gen_conv4 import *
opts = sys.argv[2:]
kw = {}
for o in opts:
    if "=" in o:
        k, v = o.split("="); kw[k] = int(v)
hdr = open('gated_mix__ssm_conv_h3__glu_gated_swiglu__prompt.s.ref').read().split('\n')
hdr = [l for l in hdr if l.startswith(';') and '@launch' not in l]
a = Asm()
for l in hdr: a.raw(l)
a.raw(f"; @launch kernel=gemm1_kernel grid=(256,1,1) block=(512,1,1) lds={G1_LDS}")
a.raw(f"; @launch kernel=gemm2_kernel grid=(256,1,1) block=(512,1,1) lds={G2_LDS}")
NW = kw.get("NW", 9)
a.raw(f"; @launch kernel=final_kernel grid=({2304//NW},1,1) block=({64*NW},1,1) lds={kw.get('FL',0)}")
a.raw('.amdgcn_target "amdgcn-amd-amdhsa--gfx950"')
kw1 = {k[2:]: v for k, v in kw.items() if k.startswith("1_")}
kw2 = {k[2:]: v for k, v in kw.items() if k.startswith("2_")}
gemm1l(a, stamp="stamp1" in opts, **kw1)
gemm2e(a, stamp="stamp2" in opts, **kw2)
final4(a, stamp='stamp3' in opts, NW=NW, fm=kw.get('fm',0), om=kw.get('om',0))
open(sys.argv[1], "w").write(a.text())
```

```python
from gen_fz_common import *

WBUF = 32768
XA0 = 98304
XAS = 14336
SLOT = 18432
S3 = 90112
P = 7
RING = 6
vW0, vW1, vX0, vX1, vX2, vRW, vRX0, vRX1 = 1, 2, 3, 4, 5, 6, 7, 8
vPL = 9
TMP = 10
vRW2 = 22
vPF = 23
FR = 24
ACC = 48
WR = 112
KB = 0; VB = 17408; SKB = 33792; OUTB = 34816; OSTR = 272

def stamp_to(a, d):
    a("s_memtime s[80:81]"); a("s_waitcnt lgkmcnt(0)"); a(f"s_sub_u32 s{d}, s80, s70")

def phase1(a, name, tailX, tailY, stamp=False, AB=1, MV=144, PF0=9, PFS=2, PD=11, PS0=13, FC=11, w2pf=1, AB0=4, early=1, dfr=1, verbose=0, clr=1, pub=1, dprep=1, fc=1, C0=2, DC=4, ph=0):
    stmod = SC
    a.label(f"{name}_p1")
    a(f"s_and_b32 s23, s{sT}, 7")
    a(f"s_lshr_b32 s29, s{sT}, 3")
    a("s_lshr_b32 s49, s23, 1")
    a("s_and_b32 s32, s23, 1")
    a("s_lshl_b32 s28, s32, 5")
    a("s_add_u32 s28, s28, s29")
    a("s_cmp_eq_u32 s28, 63")
    a(f"s_cbranch_scc1 {name}_gate")
    a(f"s_load_dwordx2 s[4:5], s[0:1], {KA['q']}")
    a(f"s_load_dwordx4 s[24:27], s[0:1], {KA['w1']}")
    a(f"s_load_dwordx2 s[6:7], s[0:1], {KA['ws']}")
    a(f"s_load_dwordx2 s[76:77], s[0:1], {KA['k']}")
    a(f"s_load_dwordx2 s[84:85], s[0:1], {KA['v']}")
    a(f"s_load_dwordx2 s[88:89], s[0:1], {KA['shift_k']}")
    a(f"s_load_dwordx2 s[92:93], s[0:1], {KA['dbg']}")
    a("s_mul_i32 s30, s49, 63")
    a("s_add_u32 s28, s28, s30")
    a("v_lshrrev_b32 v10, 6, v0")
    a("v_and_b32 v11, 63, v0")
    a("v_readfirstlane_b32 s22, v10")
    a("s_mul_i32 s29, s28, 9363")
    a("s_lshr_b32 s30, s29, 16")
    a("s_mul_i32 s29, s30, 7")
    a("s_sub_u32 s31, s28, s29")
    a("s_mul_i32 s47, s31, 18")
    a("s_cmp_eq_u32 s31, 6")
    a("s_cselect_b32 s29, 2, 0")
    a("s_add_u32 s47, s47, s29")
    a("s_mul_i32 s29, s32, 10")
    a("s_add_u32 s47, s47, s29")
    a("s_add_u32 s34, s30, s31")
    a("s_mul_i32 s35, s34, 21846")
    a("s_lshr_b32 s35, s35, 16")
    a("s_mul_i32 s35, s35, 3")
    a("s_sub_u32 s34, s34, s35")
    a("s_mul_i32 s49, s34, 3")
    for sg in range(3):
        if sg:
            a("s_add_u32 s34, s34, 1")
            a("s_cmp_eq_u32 s34, 3")
            a("s_cselect_b32 s34, 0, s34")
        a(f"s_mul_i32 s{50+sg}, s34, {3*64*9216}")
        a(f"s_mul_i32 s{53+sg}, s34, 384")
    a("v_lshrrev_b32 v12, 4, v11")
    a("v_and_b32 v13, 15, v11")
    a("s_and_b32 s33, s22, 3")
    a("s_lshl_b32 s33, s33, 4")
    a("v_add_u32 v14, s33, v12")
    a("v_mul_u32_u24 v14, 9216, v14")
    a("s_lshl_b32 s33, s30, 8")
    a("v_add_u32 v14, s33, v14")
    a("v_lshlrev_b32 v15, 1, v12")
    a("v_xor_b32 v15, v15, v13")
    a(f"v_lshl_add_u32 v{vW0}, v15, 4, v14")
    a("v_xor_b32 v15, 8, v15")
    a("v_lshl_add_u32 v14, v15, 4, v14")
    a(f"v_add_u32 v{vW1}, {8*9216 - 2048}, v14")
    a("v_lshrrev_b32 v14, 3, v11")
    a("v_and_b32 v15, 7, v11")
    a("v_xor_b32 v15, v15, v12")
    a("v_mul_u32_u24 v14, 1152, v14")
    a(f"v_lshl_add_u32 v{vX0}, v15, 4, v14")
    a("v_xor_b32 v15, 4, v15")
    a("v_lshl_add_u32 v14, v15, 4, v14")
    a(f"v_add_u32 v{vX1}, {8*1152 - 1024}, v14")
    a("s_lshr_b32 s33, s22, 2")
    a("s_and_b32 s34, s22, 3")
    a("s_lshl_b32 s34, s34, 12")
    a("s_lshl_b32 s40, s33, 14")
    a("s_add_u32 s40, s40, s34")
    a("s_xor_b32 s60, s40, 16384")
    a("s_add_u32 s34, s47, s22")
    a(f"s_mul_i32 s41, s34, {SLOT}")
    a("s_xor_b32 s35, s22, 4")
    a("s_add_u32 s34, s47, s35")
    a(f"s_mul_i32 s61, s34, {SLOT}")
    a("s_lshl_b32 s42, s22, 11")
    a("s_lshl_b32 s62, s35, 11")
    a("s_cmp_eq_u32 s22, 7")
    a("s_cselect_b64 s[64:65], 0, -1")
    a("s_cmp_eq_u32 s35, 7")
    a("s_cselect_b64 s[66:67], 0, -1")
    a("s_waitcnt lgkmcnt(0)")
    srd(a, 8, 4, 5, 2048 * 1152)
    a("s_cmp_eq_u32 s33, 0")
    a("s_cselect_b32 s12, s24, s26")
    a("s_cselect_b32 s13, s25, s27")
    a("s_cselect_b32 s36, s26, s24")
    a("s_cselect_b32 s37, s27, s25")
    a("s_and_b32 s13, s13, 0xffff")
    a("s_and_b32 s37, s37, 0xffff")
    a(f"s_mov_b32 s14, {576*9216}")
    a("s_mov_b32 s15, 0x00020000")
    a(f"s_mov_b32 s38, {576*9216}")
    a("s_mov_b32 s39, 0x00020000")
    a(f"s_load_dwordx2 s[24:25], s[0:1], {KA['w2']}")
    a(f"s_load_dwordx2 s[26:27], s[0:1], {KA['ssm_k']}")

    def stageA_dma(s, own=True):
        sr = "s[12:15]" if own else "s[36:39]"
        mW, sX, mX, ex = ("s40", "s41", "s42", "s[64:65]") if own else ("s60", "s61", "s62", "s[66:67]")
        sg = s // 3; o = (s % 3) * 64 * 9216
        g = []
        g.append([f"s_add_u32 m0, {mW}, {(s % 3) * WBUF}", f"s_add_u32 s21, s{50+sg}, {o + 4*9216 - 1024}", f"s_add_u32 s20, s{50+sg}, {o}",
                  f"buffer_load_dwordx4 v{vW0}, {sr}, s20 offen lds"])
        g.append([f"buffer_load_dwordx4 v{vW0}, {sr}, s21 offen offset:1024 lds"])
        g.append([f"buffer_load_dwordx4 v{vW1}, {sr}, s20 offen offset:2048 lds"])
        g.append([f"buffer_load_dwordx4 v{vW1}, {sr}, s21 offen offset:3072 lds"])
        g.append([f"s_add_u32 m0, {mX}, {XA0 + (s % 4) * XAS}", f"s_add_u32 s45, {sX}, s{53+sg}", f"s_add_u32 s45, s45, {(s % 3) * 128}", f"s_mov_b64 exec, {ex}",
                  f"buffer_load_dwordx4 v{vX0}, s[8:11], s45 offen lds", "s_mov_b64 exec, -1"])
        g.append([f"s_mov_b64 exec, {ex}", f"buffer_load_dwordx4 v{vX1}, s[8:11], s45 offen offset:1024 lds", "s_mov_b64 exec, -1"])
        return g
    def emit(groups):
        for g in groups:
            for x in g: a(x)

    def rest_setup():
        a("v_bfe_u32 v14, v11, 3, 1")
        a("s_lshl_b32 s34, s22, 1")
        a("v_add_u32 v14, s34, v14")
        a("v_mul_u32_u24 v14, 1152, v14")
        a("v_and_b32 v15, 7, v11")
        a("v_xor_b32 v15, s22, v15")
        a(f"v_lshl_add_u32 v{vX2}, v15, 4, v14")
        a("s_add_u32 s34, s49, s22")
        a("s_sub_u32 s35, s34, 9")
        a("s_cmp_ge_u32 s34, 9")
        a("s_cselect_b32 s34, s35, s34")
        a("s_lshl_b32 s63, s34, 7")
        a("s_add_u32 s49, s55, 256")
        a("v_lshrrev_b32 v14, 2, v13")
        a("v_and_b32 v15, 1, v12")
        a("v_lshl_add_u32 v15, v15, 2, v14")
        a("v_xor_b32 v15, s22, v15")
        a("v_lshl_add_u32 v14, v12, 3, v14")
        a("v_lshlrev_b32 v14, 8, v14")
        a("v_lshl_add_u32 v14, v15, 5, v14")
        a("v_and_b32 v15, 3, v11")
        a(f"v_lshl_add_u32 v{vRW}, v15, 3, v14")
        a(f"v_add_u32 v{vRW2}, 0x10000, v{vRW}")
        a("v_lshrrev_b32 v14, 1, v13")
        a("v_xor_b32 v14, v14, v12")
        a("v_lshlrev_b32 v15, 7, v13")
        a("v_lshl_add_u32 v14, v14, 4, v15")
        a(f"v_add_u32 v{vRX0}, {XA0}, v14")
        a(f"v_xor_b32 v{vRX1}, 64, v{vRX0}")
        a("s_lshl_b32 s34, s30, 3")
        a("s_add_u32 s34, s34, s22")
        a("s_lshr_b32 s35, s34, 2")
        a("s_lshl_b32 s35, s35, 18")
        a("s_and_b32 s34, s34, 3")
        a("s_lshl_b32 s34, s34, 9")
        a("s_add_u32 s34, s34, s35")
        a("v_lshlrev_b32 v14, 5, v13")
        a("v_lshrrev_b32 v15, 1, v12")
        a("v_lshl_add_u32 v14, v15, 4, v14")
        a("v_and_b32 v15, 1, v12")
        a("v_lshl_add_u32 v14, v15, 11, v14")
        a(f"v_add_u32 v{vPF}, s34, v14")
        a("s_lshl_b32 s43, s22, 8")
        a("s_add_u32 s43, s43, 16384")
        a(f"s_mul_i32 s44, s47, {SLOT}")
        a("s_add_u32 s68, s44, s49")
        a("s_add_u32 s44, s44, s63")
        a("s_mov_b32 s46, 0xbfb8aa3b")
        a("s_lshl_b32 s47, s47, 11")
        srd(a, 16, 6, 7, H_BYTES)
        a("s_and_b32 s93, s93, 0xffff")
        a("s_movk_i32 s94, 256")
        a("s_mov_b32 s95, 0x00020000")
        a(f"s_lshl_b32 s{sPFO}, s28, 7")
        for x in pubmask(22): a(x)
        a(f"s_mov_b32 s{sFAST}, 0")

    a("s_cmp_eq_u32 s33, 0")
    a(f"s_cbranch_scc0 {name}_proY")
    emit(stageA_dma(0, True)); emit(stageA_dma(0, False))
    rest_setup()
    a("s_waitcnt vmcnt(0) lgkmcnt(0)")
    a("s_barrier")
    a(f"s_branch {name}_pro_end")
    a.label(f"{name}_proY")
    emit(stageA_dma(1, True)); emit(stageA_dma(1, False))
    rest_setup()
    a("s_waitcnt lgkmcnt(0)")
    a("s_barrier")
    emit(stageA_dma(2, True)); emit(stageA_dma(2, False))
    a.label(f"{name}_pro_end")
    a("s_cmp_ge_u32 s31, 5")
    a(f"s_cbranch_scc1 {name}_v19")

    def body(NSUB, prep):
        E = 9 + NSUB - P
        segs = [("A", 0, 8, None), ("M", 8, 2, 50)]
        p0 = 10
        if NSUB == 19: segs.append(("S", 10, 1, 51)); p0 = 11
        segs += [("B1", p0, 4, 52), ("B2", p0 + 4, 4, 53)]
        def seg_of(pos):
            for s in segs:
                if s[1] <= pos < s[1] + s[2]: return s
        def slot_addr(q): return (q - 9) * WBUF if q < 12 else S3 + ((q - E) % 4) * SLOT
        def subB_dma(q):
            sa = slot_addr(q); pos = q - 2; sg = seg_of(pos); j = pos - sg[1]
            pre = []
            if j == 0: pre = [f"s_mul_i32 s44, s{sg[3]}, 9", "s_add_u32 s68, s44, s49", "s_add_u32 s44, s44, s63"]
            g = []
            g.append(pre + [f"s_add_u32 m0, s42, {sa}", f"s_add_u32 s45, s44, {j*SLOT}", f"buffer_load_dwordx4 v{vX0}, s[8:11], s45 offen lds"])
            g.append([f"buffer_load_dwordx4 v{vX1}, s[8:11], s45 offen offset:1024 lds"])
            g.append([f"s_add_u32 m0, s43, {sa}", f"s_add_u32 s45, s68, {j*SLOT}", "s_mov_b64 exec, 0xffff", f"buffer_load_dwordx4 v{vX2}, s[8:11], s45 offen lds", "s_mov_b64 exec, -1"])
            return g
        vm = dict(n=0)
        landed = {2: 0}
        mark = {}
        need_end = {}
        pubs = {}
        level = dict(v=0)
        lg = dict(n=0); lgidx = {}; waited = dict(lg=0)
        def wreg(mat, ks): return WR + (mat * 18 + ks) * 4
        def acc(sub, mat): return ACC + (sub % 8) * 8 + mat * 4
        def frags(p):
            if p < 9: return [(tt, sub, 2 * p + tt) for tt in range(2) for sub in range(P)]
            return [(ks & 1, p - 2, ks) for ks in range(18)]
        cur_base = dict(v=XA0)
        ring = dict(n=0)
        rslot = {}
        def emit_read(p, i):
            tt, sub, ks = frags(p)[i]
            if p < 9:
                off = XA0 + (p % 4) * XAS + sub * 2048
            else:
                sa = slot_addr(p)
                if i == 0 and not (sa >= cur_base['v'] and sa + SLOT - cur_base['v'] <= 65536):
                    d = sa - cur_base['v']
                    a(f"v_add_u32 v{vRX0}, {d & 0xffffffff}, v{vRX0}")
                    a(f"v_add_u32 v{vRX1}, {d & 0xffffffff}, v{vRX1}")
                    cur_base['v'] = sa
                off = sa + (ks >> 1) * 2048
            off -= cur_base['v']
            assert 0 <= off < 65536
            r = FR + (ring['n'] % RING) * 4; ring['n'] += 1
            rslot[(p, i)] = r
            a(f"ds_read_b128 {vr(r, 4)}, v{vRX1 if tt else vRX0} offset:{off}")
            lg['n'] += 1; lgidx[("X", p, i)] = lg['n']
        def emit_wread(s, tt, mat):
            b = s % 3
            base = f"v{vRW2}" if b == 2 else f"v{vRW}"
            off = ((b & 1) * WBUF if b < 2 else 0) + mat * 16384 + tt * 8192
            r = wreg(mat, 2 * s + tt)
            a(f"ds_read_b64_tr_b16 {vr(r,2)}, {base} offset:{off}")
            a(f"ds_read_b64_tr_b16 {vr(r+2,2)}, {base} offset:{off + 1024}")
            lg['n'] += 2; lgidx[("W", 2 * s + tt, mat)] = lg['n']
        def wait_lg(tag):
            need = lgidx[tag]
            if need <= waited['lg']: return
            n = lg['n'] - need
            a(f"s_waitcnt lgkmcnt({min(n, 15)})")
            waited['lg'] = need if n <= 15 else lg['n'] - 15
        def preload_list(p):
            o = []
            if p < 9:
                o += [lambda: emit_wread(p, 0, 0), lambda: emit_read(p, 0), lambda: emit_wread(p, 0, 1)]
                for i in range(1, RING): o.append(lambda i=i: emit_read(p, i))
                o += [lambda: emit_wread(p, 1, 0), lambda: emit_wread(p, 1, 1)]
            else:
                for i in range(RING): o.append(lambda i=i: emit_read(p, i))
            return o
        epq = []
        def add_epi(sub, avail):
            sg = seg_of(sub); j = sub - sg[1]; second = j & 1; single = sg[2] == 1
            G = acc(sub, 0); U = acc(sub, 1); T = TMP; O = TMP + 8 + second * 2
            ops = []
            for r in range(4): ops.append((4, [f"v_mul_f32 v{T+r}, s46, v{G+r}"]))
            for r in range(4): ops.append((8, [f"v_exp_f32 v{T+r}, v{T+r}"]))
            for r in range(4): ops.append((4, [f"v_mul_f32 v{T+4+r}, v{G+r}, v{U+r}"]))
            for r in range(4): ops.append((4, [f"v_add_f32 v{T+r}, 1.0, v{T+r}"]))
            for r in range(4): ops.append((8, [f"v_rcp_f32 v{T+r}, v{T+r}"]))
            for r in range(4): ops.append((4, [f"v_mul_f32 v{T+4+r}, v{T+4+r}, v{T+r}"]))
            ops.append((4, [f"v_cvt_pk_bf16_f32 v{O}, v{T+4}, v{T+5}"]))
            ops.append((4, [f"v_cvt_pk_bf16_f32 v{O+1}, v{T+6}, v{T+7}"]))
            so = "s47"
            pre = []
            if sg[3] is not None and j < 2: pre = [f"s_mov_b32 s47, s{sg[3]}"]
            if single:
                ops.append((8, [f"v_bfe_u32 v{T}, v0, 4, 1", f"v_mul_u32_u24 v{T}, 2040, v{T}"]))
                ops.append((4, [f"v_sub_u32 v{T}, v{vPF}, v{T}"]))
                ops.append((0, pre + [f"buffer_store_dwordx2 {vr(O,2)}, v{T}, s[16:19], s47 offen {stmod}"], "vm"))
            elif second:
                O0 = TMP + 8
                ops.append((8, ["s_nop 0", f"v_permlane16_swap_b32 v{O0}, v{O0+2}", f"v_permlane16_swap_b32 v{O0+1}, v{O0+3}"]))
                ops.append((0, pre + ["s_nop 0", f"buffer_store_dwordx4 {vr(O0,4)}, v{vPF}, s[16:19], s47 offen {stmod}", "s_add_u32 s47, s47, 4096"], "vm"))
            else:
                ops.append((0, [], "novm"))
            for o in ops: epq.append((o[0], o[1], avail, len(o) > 2, sub))
        for sub in range(NSUB): add_epi(sub, max(8, sub + 2))
        done_sub = set()
        lvl_pos = {7: B_A, p0 - 1: B_MID, p0 + 3: B_B1}
        clean = dict(v=True)
        def req_pub(bit, p):
            need_end.setdefault(p + 1, []).append(vm['n'])
            pubs[p + 2] = pubs.get(p + 2, 0) | bit
            if verbose: print(f"NSUB{NSUB}: bit {bit} stored at side {p}, publish at {p+2}")
        def pop_epi(p):
            c, ins, av, isvm, sub = epq.pop(0)
            for x in ins: a(x)
            clean['v'] = False
            if isvm:
                done_sub.add(sub)
                if ins:
                    vm['n'] += 1; clean['v'] = True
                    if sub in lvl_pos: req_pub(lvl_pos[sub], p)
            return c
        def flush_clean(p):
            u = 0
            while not clean['v']:
                assert epq[0][2] <= p
                u += pop_epi(p)
            return u
        sched = {p: [] for p in range(E)}
        for p in range(E):
            if p + 3 < E: sched[p] = [p + 3]
        if dfr: pass
        def vmop(ins):
            for x in ins: a(x)
            vm['n'] += 1
        def prep_scal():
            o = ["s_cmp_lt_u32 s31, 4"]
            for b, n in ((76, 2048 * 1152), (84, 2048 * 1152), (88, 576 * 8)): o.append(f"s_cselect_b32 s{b+2}, {n}, 0")
            for b in (76, 84, 88): o += [f"s_and_b32 s{b+1}, s{b+1}, 0xffff", f"s_mov_b32 s{b+3}, 0x00020000"]
            o += ["s_lshl_b32 s34, s30, 2", "s_add_u32 s34, s34, s31", "s_mul_i32 s60, s34, 7282", "s_lshr_b32 s60, s60, 16",
                  "s_mul_i32 s35, s60, 9", "s_sub_u32 s61, s34, s35"]
            return o
        def prep_dma():
            t = FR
            for x in [f"v_bfe_u32 v{t}, v0, 3, 3", f"v_mul_u32_u24 v{t}, 1152, v{t}", f"v_and_b32 v{t+1}, 7, v0", f"v_lshl_add_u32 v{t}, v{t+1}, 4, v{t}",
                      f"v_and_b32 v{t+1}, 63, v0", f"v_lshlrev_b32 v{t+1}, 4, v{t+1}",
                      "s_lshl_b32 s34, s60, 3", "s_add_u32 s34, s34, s22", f"s_mul_i32 s34, s34, {16*1152}", "s_lshl_b32 s35, s61, 7", "s_add_u32 s34, s34, s35",
                      f"s_add_u32 s35, s34, {9216 - 1024}"]: a(x)
            for b, base in (("76:79", KB + 1024), ("84:87", VB)):
                vmop([f"s_add_u32 m0, s42, {base}", "s_nop 0", f"buffer_load_dwordx4 v{t}, s[{b}], s34 offen lds"])
                vmop([f"buffer_load_dwordx4 v{t}, s[{b}], s35 offen offset:1024 lds"])
            vmop(["s_sub_u32 s34, s34, 9216", "s_max_i32 s34, s34, 0", f"s_mov_b32 m0, {KB}", "s_cmp_eq_u32 s22, 0", "s_cselect_b64 exec, -1, 0",
                  f"buffer_load_dwordx4 v{t}, s[76:79], s34 offen lds"])
            vmop(["s_lshl_b32 s34, s61, 9", f"s_mov_b32 m0, {SKB}", "s_cmp_eq_u32 s22, 1", "s_cselect_b64 exec, -1, 0",
                  f"buffer_load_dwordx4 v{t+1}, s[88:91], s34 offen lds", "s_mov_b64 exec, -1"])
        def prep_chunk(c):
            RK = FR; RV = FR + 8; RS = FR + 12; TP = FR + 16; KV = FR + 20; KU = TMP; VT = TMP + 7; O = TMP + 8; AD = TMP + 10
            a("s_cmp_ge_u32 s31, 4")
            a(f"s_cbranch_scc1 {name}_pc{c}")
            a(f"v_bfe_u32 v{KU}, v0, 5, 4")
            a(f"v_and_b32 v{KU+1}, 31, v0")
            a(f"v_lshlrev_b32 v{KU+2}, 10, v{KU}")
            a(f"v_lshl_add_u32 v{KU+2}, v{KU+1}, 2, v{KU+2}")
            b0 = KB + (4 * c + 5) * 128
            a(f"v_add_u32 v{KU+3}, {b0}, v{KU+2}")
            for i in range(3): a(f"ds_read2_b32 {vr(RK+2*i,2)}, v{KU+3} offset0:{64*i} offset1:{64*i+32}")
            a(f"ds_read_b32 v{RK+6}, v{KU+3} offset:{6*128}")
            a(f"v_lshlrev_b32 v{KU+4}, 4, v{KU+1}")
            a(f"ds_read_b128 {vr(RS,4)}, v{KU+4} offset:{SKB}")
            a(f"v_add_u32 v{KU+3}, {VB + 4*c*128}, v{KU+2}")
            for i in range(2): a(f"ds_read2_b32 {vr(RV+2*i,2)}, v{KU+3} offset0:{64*i} offset1:{64*i+32}")
            a(f"v_mul_u32_u24 v{AD}, {2*OSTR}, v{KU+1}")
            a(f"v_lshlrev_b32 v{KU}, 4, v{KU}")
            a(f"v_sub_u32 v{AD}, v{AD}, v{KU}")
            a(f"v_add_u32 v{AD}, {OUTB + (124 - 4*c)*2}, v{AD}")
            if c == 0:
                a("s_or_b32 s34, s60, s22")
                a("s_cmp_eq_u32 s34, 0")
                a("s_cselect_b32 s34, -1, 0")
                a("s_mov_b32 s35, 0")
            a("s_waitcnt lgkmcnt(0)")
            if c == 0:
                a("s_mov_b64 exec, s[34:35]")
                for i in range(3): a(f"v_mov_b32 v{RK+i}, 0")
                a("s_mov_b64 exec, -1")
            for h in range(2):
                up = (lambda d, s: f"v_and_b32 v{d}, 0xffff0000, v{s}") if h else (lambda d, s: f"v_lshlrev_b32 v{d}, 16, v{s}")
                r = RS + 2 * h
                a(f"v_lshlrev_b32 v{TP}, 16, v{r}"); a(f"v_and_b32 v{TP+1}, 0xffff0000, v{r}")
                a(f"v_lshlrev_b32 v{TP+2}, 16, v{r+1}"); a(f"v_and_b32 v{TP+3}, 0xffff0000, v{r+1}")
                for i in range(7): a(up(KU + i, RK + i))
                for j in range(4): a(f"v_mul_f32 v{KV+j}, v{KU+j}, v{TP+3}")
                for d in (2, 1, 0):
                    for j in range(4): a(f"v_fmac_f32 v{KV+j}, v{KU+j+3-d}, v{TP+d}")
                for j in range(4): a(up(KU + j, RV + j))
                for j in range(4): a(f"v_mul_f32 v{KV+j}, v{KV+j}, v{KU+j}")
                a(f"v_cvt_pk_bf16_f32 v{O}, v{KV+3}, v{KV+2}")
                a(f"v_cvt_pk_bf16_f32 v{O+1}, v{KV+1}, v{KV}")
                a(f"ds_write_b64 v{AD}, {vr(O,2)} offset:{h*OSTR}")
            a("s_waitcnt lgkmcnt(0)")
            a.label(f"{name}_pc{c}")
        def prep_out(p):
            t = FR
            for x in [f"v_bfe_u32 v{t+8}, v0, 4, 2", f"v_and_b32 v{t+9}, 15, v0", f"v_mul_u32_u24 v{t+10}, {OSTR}, v{t+8}", f"v_lshl_add_u32 v{t+10}, v{t+9}, 4, v{t+10}",
                      f"s_mul_i32 s34, s22, {8*OSTR}", f"v_add_u32 v{t+10}, s34, v{t+10}",
                      f"ds_read_b128 {vr(t,4)}, v{t+10} offset:{OUTB}", f"ds_read_b128 {vr(t+4,4)}, v{t+10} offset:{OUTB + 4*OSTR}",
                      f"v_lshlrev_b32 v{t+8}, 12, v{t+8}", f"v_lshl_add_u32 v{t+8}, v{t+9}, 4, v{t+8}"] + ws_srd(88, WS_XR, XR_BYTES) + [
                      "s_cmp_lt_u32 s31, 4", "s_cselect_b32 s90, s90, 0",
                      "s_lshl_b32 s34, s61, 3", "s_add_u32 s34, s34, s22", "s_lshl_b32 s34, s34, 15", "s_lshl_b32 s35, s60, 8", "s_sub_u32 s34, s34, s35",
                      "s_add_u32 s34, s34, 3840", "s_add_u32 s35, s34, 16384", "s_waitcnt lgkmcnt(0)"]: a(x)
            vmop([f"buffer_store_dwordx4 {vr(t,4)}, v{t+8}, s[88:91], s34 offen {SC}"])
            vmop([f"buffer_store_dwordx4 {vr(t+4,4)}, v{t+8}, s[88:91], s35 offen {SC}"])
            a("s_nop 1")
            req_pub(B_KV, p)
        extra_cost = {}
        if prep: extra_cost = {PS0: 330, PS0 + 1: 330}

        for f in preload_list(0): f()
        a(f"s_cmp_eq_u32 s33, 0")
        a(f"s_cbranch_scc1 {name}_skipY{NSUB}")
        a("s_waitcnt vmcnt(12) lgkmcnt(0)")
        a("s_barrier")
        a.label(f"{name}_skipY{NSUB}")
        for p in range(E):
            fr = frags(p); nf = len(fr); mcred = 0.0
            if stamp and p == 9: stamp_to(a, 71)
            a("s_setprio 1")
            ab = AB0 if p == E - 1 else AB
            for i in range(nf):
                tt, sub, ks = fr[i]
                if ks == 0 and sub >= 8: assert (sub - 8) in done_sub, (NSUB, sub)
                for mat in range(2):
                    wait_lg(("X", p, i))
                    if p < 9: wait_lg(("W", ks, mat))
                    c = "0" if ks == 0 else vr(acc(sub, mat), 4)
                    a(f"v_mfma_f32_16x16x32_bf16 {vr(acc(sub,mat),4)}, {vr(wreg(mat,ks),4)}, {vr(rslot[(p,i)],4)}, {c}")
                    if mat == 0 and p >= 9:
                        mcred = min(mcred + MV / 18.0, 12); u = 0
                        while epq and epq[0][2] <= p - 1 and not epq[0][3] and epq[0][0] <= mcred and u + epq[0][0] <= 8:
                            c_ = pop_epi(p); mcred -= c_; u += c_
                if i + RING < nf: emit_read(p, i + RING)
                if p == E - 1 and i == nf - 1 - AB0:
                    a("s_waitcnt lgkmcnt(0)"); waited['lg'] = lg['n']
                    a(f"s_cmp_eq_u32 s33, 0")
                    a(f"s_cbranch_scc1 {name}_skipB{NSUB}")
                    a("s_barrier")
                    a.label(f"{name}_skipB{NSUB}")
                if i == nf - 1 - AB:
                    a("s_waitcnt lgkmcnt(0)"); waited['lg'] = lg['n']
                    a("s_setprio 3")
                    if p == E - 1:
                        a(f"s_cmp_eq_u32 s33, 0")
                        a(f"s_cbranch_scc0 {name}_skipA{NSUB}")
                        a("s_barrier")
                        a.label(f"{name}_skipA{NSUB}")
                    else:
                        a("s_barrier")
            a("s_setprio 0")
            if p == E - 1: break
            used0 = 0
            if ph:
                vmop(["s_memtime s[80:81]", f"s_lshl_b32 s34, s{sT}, 3", "s_add_u32 s34, s34, s22", "s_lshl_b32 s34, s34, 7", f"s_add_u32 s34, s34, {0x9000000 + 4*p}",
                      f"v_mov_b32 v{FR+1}, s34", "s_waitcnt lgkmcnt(0)", "s_sub_u32 s80, s80, s70", f"v_mov_b32 v{FR}, s80", "s_mov_b64 exec, 1",
                      f"global_store_dword v{FR+1}, v{FR}, s[6:7]", "s_mov_b64 exec, -1", "s_nop 0"])
            if p in pubs:
                level['v'] |= pubs[p]
                if pub and pubs[p] & B_START: vmop(publish(1, FR, sFAST))
                if pub and pubs[p] & ~B_START: vmop(publish(level['v'], FR + 2))
            if p == DC:
                vmop(["s_mov_b64 exec, s[100:101]", f"buffer_load_dword v{vPL}, off, s[92:95], 0 {SC}", "s_mov_b64 exec, -1"])
                mark['dc'] = vm['n']
            if p == DC + 2:
                tg = f"{name}_dc{NSUB}"
                for x in [f"s_waitcnt vmcnt({min(63, vm['n'] - mark['dc'])})", "s_cmp_eq_u32 s100, 0", f"s_cbranch_scc1 {tg}_ok", f"s_movk_i32 s{sCNT}, 0x4000"]: a(x)
                a.label(f"{tg}_l")
                for x in [f"v_readfirstlane_b32 s34, v{vPL}", "s_cmp_lg_u32 s34, 0", f"s_cbranch_scc1 {tg}_ok", "s_sleep 2",
                          f"buffer_load_dword v{vPL}, off, s[92:95], 0 {SC}", "s_waitcnt vmcnt(0)",
                          f"s_sub_u32 s{sCNT}, s{sCNT}, 1", f"s_cbranch_scc0 {tg}_l"]: a(x)
                a.label(f"{tg}_ok")
                for x in ws_srd(92, WS_FL, FL_BYTES): a(x)
            if p == 1:
                for x in p2_ids(34, 69, 35, 29, 3) + [f"s_lshl_b32 s{sFAST}, s69, 7", f"s_add_u32 s{sFAST}, s{sFAST}, 32768", f"s_mul_i32 s69, s69, {OBS}", "s_mul_i32 s34, s22, 5120", "s_add_u32 s69, s69, s34"] + ws_srd(56, WS_OB, OB_BYTES) + [
                        f"s_cmp_eq_u32 s{sM}, 0", "s_cselect_b32 s58, s58, 0",
                        "v_mov_b32 v12, -1", "v_mov_b32 v13, -1", "v_mov_b32 v14, -1", "v_mov_b32 v15, -1", "v_lshlrev_b32 v16, 4, v11"]: a(x)
                if prep:
                    for x in prep_scal(): a(x)
                for x in [f"s_lshr_b32 s34, s{sT}, 3", "s_lshl_b32 s34, s34, 3", "s_add_u32 s34, s34, s22",
                          "s_lshr_b32 s35, s23, 1", "s_mul_i32 s35, s35, 162", "s_add_u32 s62, s35, s34",
                          "s_lshl_b32 s35, s23, 5", "s_add_u32 s35, s35, s34", "s_sub_u32 s35, s35, 162",
                          "s_lshl_b32 s29, s23, 2", "s_add_u32 s29, s29, s34", f"s_add_u32 s29, s29, {256 - 194}",
                          "s_cmp_lt_u32 s34, 194", "s_cselect_b32 s35, s35, s29", f"s_mov_b32 s38, {576*4096}",
                          "s_cmp_lt_u32 s34, 162", "s_cselect_b32 s62, s62, s35", "s_cselect_b32 s36, s24, s26", "s_cselect_b32 s37, s25, s27",
                          f"s_cselect_b32 s38, {4608*1152}, s38", "s_and_b32 s37, s37, 0xffff", "s_lshl_b32 s62, s62, 13",
                          "s_cmp_lt_u32 s34, 198", "s_cselect_b32 s38, s38, 0", "s_and_b32 s66, s22, 3"]: a(x)
            if p == 6:
                for x in ["s_mul_i32 s50, s31, 18", "s_cmp_eq_u32 s31, 6", "s_cselect_b32 s34, 2, 0", "s_add_u32 s50, s50, s34",
                          "s_xor_b32 s34, s32, 1", "s_mul_i32 s34, s34, 10", "s_add_u32 s52, s50, s34",
                          "s_lshr_b32 s34, s23, 1", "s_add_u32 s34, s34, s30", "s_and_b32 s34, s34, 1", "s_lshl_b32 s34, s34, 2",
                          "s_xor_b32 s35, s34, 4", "s_add_u32 s53, s52, s35", "s_add_u32 s52, s52, s34",
                          "s_add_u32 s50, s50, 8", "s_add_u32 s51, s31, 103"] + [f"s_lshl_b32 s{k}, s{k}, 11" for k in range(50, 54)] + [
                          "s_cmp_eq_u32 s33, 0", "s_cselect_b64 s[64:65], -1, 0"]: a(x)
            if prep and p == PD:
                prep_dma(); need_end.setdefault(PS0 - 2, []).append(vm['n']) if PS0 - 2 > PD else None
                mark['pd'] = vm['n']
            if prep and p in (PS0, PS0 + 1):
                used0 += flush_clean(p)
                prep_chunk(p - PS0)
            if prep and p == PS0 + 2: prep_out(p)
            dq = []
            if p == E - 4:
                assert (not prep or p > PS0 + 2) and p >= PF0 + 3 * PFS
                for x in g2_scal() + ["s_xor_b32 s34, s76, 1", f"s_and_b32 s34, s34, {early}", "s_mov_b32 s48, s34", "s_cmp_eq_u32 s34, 1", "s_cselect_b64 s[36:37], -1, 0",
                                      f"s_mul_i32 s39, s33, {G2_STAGE}", "s_cmp_eq_u32 s89, 1", f"s_cselect_b32 s38, {B_MID}, {B_A}", "s_mov_b32 s67, 0"]: a(x)
            if p in (E - 3, E - 2):
                a(f"s_waitcnt vmcnt({min(63, vm['n'] - mark['poll'])})")
                for x in [f"v_and_b32 v{FR}, s38, v{vPL}", f"v_cmp_ne_u32 vcc, 0, v{FR}", "s_nop 1", "s_lshr_b32 s66, vcc_lo, 16", "s_and_b32 s66, s66, vcc_lo", "s_and_b32 s66, s66, s36"]: a(x)
            if p in (E - 4, E - 3):
                vmop(poll_addr(FR + 4, FR) + ["s_mov_b64 exec, s[36:37]", f"buffer_load_dword v{vPL}, v{FR+4}, s[92:95], 0 offen {SC}", "s_mov_b64 exec, -1"])
                mark['poll'] = vm['n']
            if p == E - 2:
                vmop(kv_addr(FR + 4, FR) + ["s_cmp_eq_u32 s76, 1", "s_cselect_b64 exec, -1, 0",
                      f"buffer_load_dword v{vPL}, v{FR+4}, s[92:95], 0 offen {SC}", "s_mov_b64 exec, -1"])
                mark['cpoll'] = vm['n']
            def masked(groups, ex):
                return [([f"s_mov_b64 exec, {ex}"] + g + ["s_mov_b64 exec, -1"], None) for g in groups]
            if p == E - 3:
                for x in b_unpack(): a(x)
            if p in (E - 3, E - 2):
                pre = ["s_and_b32 s3, s54, 15", "s_lshl_b32 s3, s3, 1", "s_add_u32 s3, s3, s33"] + st_off2() + [
                       "s_andn2_b32 s34, s66, s67", "s_bitcmp1_b32 s34, 0", "s_cselect_b64 s[90:91], -1, 0", "s_and_b32 s34, s66, 1", "s_or_b32 s67, s67, s34"]
                gA = masked(dmaA("s39"), "s[90:91]")
                gA[0] = (pre + gA[0][0], None)
                dq += gA
                if p == E - 3: dq += masked(dmaB("s39"), "s[36:37]")
                else:
                    pre = st_off(2) + ["s_lshl_b32 s34, s33, 1", "s_and_b32 s34, s34, s66", "s_or_b32 s67, s67, s34", "s_cmp_lg_u32 s34, 0", "s_cselect_b64 s[90:91], -1, 0",
                                       "s_cmp_eq_u32 s33, 1", "s_cselect_b64 s[36:37], s[36:37], 0"]
                    gA = masked(dmaA(2 * G2_STAGE), "s[90:91]")
                    gA[0] = (pre + gA[0][0], None)
                    dq += gA + masked(dmaB(2 * G2_STAGE), "s[36:37]")
                dq[-1] = (dq[-1][0], f"e{p - E}")
            pl = preload_list(p + 1)
            for q in sched[p]:
                gs = stageA_dma(q) if q < 9 else subB_dma(q)
                for k, gg in enumerate(gs): dq.append((gg, q if k == len(gs) - 1 else None))
            if C0 <= p <= C0 + 4 and clr:
                k = p - C0
                dq.append(([f"buffer_store_dwordx4 v[12:15], v16, s[56:59], s69 offen {SC}", "s_add_u32 s69, s69, 1024"], "clr" if k == 4 else None))
            if w2pf and p >= PF0 and (p - PF0) % PFS == 0 and (p - PF0) // PFS < 4:
                k = (p - PF0) // PFS
                dq.append(([f"v_and_b32 v22, 63, v0", "v_lshlrev_b32 v22, 7, v22", f"s_mov_b32 m0, {LDS_SCR}", f"s_cmp_eq_u32 s66, {k}", "s_cselect_b64 exec, -1, 0",
                            f"buffer_load_dword v22, s[36:39], s62 offen lds", "s_mov_b64 exec, -1"], None))
            def pop_dma():
                gg, q = dq.pop(0)
                for x in gg: a(x)
                vm['n'] += 1
                if q is not None:
                    landed[q] = vm['n']
                    if q == "clr": req_pub(B_START, p)
            if p >= 8 and epq:
                rem = sum(o[0] for o in epq if o[4] < NSUB - 1) + sum(v for k, v in extra_cost.items() if k >= p) + used0
                budget = rem / (E - 1 - p) - MV * 0.9 - extra_cost.get(p, 0) - used0
                must = p - 1 - 8
                used = 0
                step = max(budget, 40) / (len(dq) + 0.5) if dq else 1e9
                nxt_d = 0; nxt_p = 8
                while epq and epq[0][2] <= p and (used + epq[0][0] <= budget + 3 or epq[0][0] == 0 or epq[0][4] <= must):
                    if dq and used >= nxt_d:
                        pop_dma(); nxt_d += step
                    elif pl and used >= nxt_p:
                        pl.pop(0)(); nxt_p = used + 8
                    used += pop_epi(p)
            while dq:
                pop_dma()
                for k in range(2):
                    if pl: pl.pop(0)()
            for f in pl: f()
            if p == 7:
                for x in b_offs(11, 12, vB[:3]): a(x)
            req = list(need_end.get(p, []))
            if p + 2 < E: req.append(landed[p + 2])
            if p in (E - 4, E - 3): pass
            if prep and p == PS0 - 1: req.append(mark['pd'])
            if req: a(f"s_waitcnt vmcnt({min(63, vm['n'] - max(req))}) lgkmcnt(0)")
            else: a("s_waitcnt lgkmcnt(0)")
            waited['lg'] = lg['n']
            a("s_barrier")
            if p in (E - 4, E - 3): mark[f'pw{p}'] = vm['n'] - mark['poll']
        if stamp: stamp_to(a, 73)
        left = [(c, ins, isvm and bool(ins)) for c, ins, av, isvm, sub in epq]
        if verbose: print("left epi cycles", sum(x[0] for x in left), "level", level['v'], "pending pubs", {k: v for k, v in pubs.items() if k >= E - 1})
        st = dict(n=vm['n'], e3=landed["e-3"], e2=landed["e-2"], cp=mark['cpoll'])
        a("s_nop 7")
        a("s_cmp_eq_u32 s33, 0")
        a(f"s_cbranch_scc0 {name}_tY{NSUB}")
        a("s_nop 1")
        tailX(f"{name}_x{NSUB}", left, dict(st))
        a.label(f"{name}_tY{NSUB}")
        a("s_nop 1")
        tailY(f"{name}_y{NSUB}", left, dict(st))
    body(18, bool(dprep))
    a.label(f"{name}_v19")
    body(19, False)
```

```python
from gen_fz_common import *
from gen_conv4 import CSTR, HWV

X9 = 9 * HWV
NST = 18
vPL = 9
vPA, vPN = 7, 8
XCH = 2 * G2_STAGE
G_OFF = 256 * OBS
sEAR = 48

def emit(a, groups):
    n = 0
    for g in groups:
        for x in g: a(x)
        n += 1
    return n

def poll_eval(t):
    return [f"v_and_b32 v{t}, v{vPN}, v{vPL}", f"v_cmp_ne_u32 vcc, 0, v{t}", "s_nop 1", "s_lshr_b32 s66, vcc_lo, 16", "s_and_b32 s66, s66, vcc_lo"]
def poll_regs(t):
    return poll_addr(vPA, t) + poll_need(vPN, t)
def poll_issue():
    return [f"buffer_load_dword v{vPL}, v{vPA}, s[92:95], 0 offen {SC}"]

def spin(a, i, tag, t, poll=1):
    if not poll: return
    a(f"s_bitcmp1_b32 s66, {i}")
    a(f"s_cbranch_scc1 {tag}_ok")
    a(f"s_movk_i32 s{sCNT}, 0x4000")
    a.label(f"{tag}_l")
    for x in poll_issue(): a(x)
    a("s_waitcnt vmcnt(0)")
    for x in poll_eval(t): a(x)
    a(f"s_bitcmp1_b32 s66, {i}")
    a(f"s_cbranch_scc1 {tag}_ok")
    a("s_sleep 2")
    a(f"s_sub_u32 s{sCNT}, s{sCNT}, 1")
    a(f"s_cbranch_scc0 {tag}_l")
    a.label(f"{tag}_ok")

def wait_kv(a, tag, t):
    a(f"v_and_b32 v{t}, {B_KV}, v{vPL}")
    a(f"v_cmp_ne_u32 vcc, 0, v{t}")
    a("s_nop 1")
    a("s_cmp_eq_u64 vcc, -1")
    a(f"s_cbranch_scc1 {tag}_ok")
    for x in kv_addr(t + 4, t): a(x)
    a(f"s_movk_i32 s{sCNT}, 0x4000")
    a.label(f"{tag}_l")
    a(f"buffer_load_dword v{vPL}, v{t+4}, s[92:95], 0 offen {SC}")
    a("s_waitcnt vmcnt(0)")
    a(f"v_and_b32 v{t}, {B_KV}, v{vPL}")
    a(f"v_cmp_ne_u32 vcc, 0, v{t}")
    a("s_nop 1")
    a("s_cmp_eq_u64 vcc, -1")
    a(f"s_cbranch_scc1 {tag}_ok")
    a("s_sleep 16")
    a(f"s_sub_u32 s{sCNT}, s{sCNT}, 1")
    a(f"s_cbranch_scc0 {tag}_l")
    a.label(f"{tag}_ok")

def stamp_out(a, regs, idreg):
    a("s_waitcnt vmcnt(0)")
    a("s_memrealtime s[80:81]")
    a("s_memtime s[82:83]")
    a("s_waitcnt lgkmcnt(0)")
    a("s_sub_u32 s82, s82, s70")
    for kk, s in enumerate(regs): a(f"v_mov_b32 v{24+kk}, s{s}")
    a(f"s_lshl_b32 s70, s{sT}, 3")
    a("s_add_u32 s70, s70, s22")
    a("s_lshl_b32 s70, s70, 5")
    a("s_add_u32 s70, s70, 0x8000000")
    a("v_mov_b32 v32, s70")
    a("s_mov_b64 exec, 1")
    a("global_store_dwordx4 v32, v[24:27], s[6:7]")
    a("global_store_dwordx4 v32, v[28:31], s[6:7] offset:16")
def stamp_to(a, d):
    a("s_memtime s[80:81]"); a("s_waitcnt lgkmcnt(0)"); a(f"s_sub_u32 s{d}, s80, s70")

def tails(a, name, poll=1, stamp=False):
    def epi(left):
        n = 0
        for c, ins, isvm in left:
            for x in ins: a(x)
            n += isvm
        return n
    def tailX(tag, left, st):
        n = st['n'] + epi(left)
        a(f"s_waitcnt vmcnt({min(63, n - st['cp'])})")
        a(f"s_cmp_eq_u32 s{sEAR}, 0")
        a(f"s_cbranch_scc1 {name}_xother")
        a("s_bitcmp1_b32 s67, 0")
        a(f"s_cbranch_scc0 {name}_xlate")
        a(f"s_waitcnt vmcnt({min(63, n - st['e2'])})")
        a(f"s_branch {name}_cons")
    def tailY(tag, left, st):
        a(f"s_cmp_eq_u32 s{sEAR}, 0")
        a(f"s_cbranch_scc1 {tag}_other")
        for x in poll_regs(24) + poll_eval(24): a(x)
        a("s_cmp_eq_u32 s67, 3")
        a(f"s_cbranch_scc1 {tag}_e")
        a("s_bitcmp1_b32 s67, 0")
        a(f"s_cbranch_scc1 {tag}_a1")
        spin(a, 0, f"{tag}_s0", 24, poll)
        for x in st_off(1): a(x)
        emit(a, dmaA(G2_STAGE))
        a.label(f"{tag}_a1")
        a("s_bitcmp1_b32 s67, 1")
        a(f"s_cbranch_scc1 {tag}_a2")
        spin(a, 1, f"{tag}_s1", 24, poll)
        for x in st_off(2): a(x)
        emit(a, dmaA(2 * G2_STAGE))
        a.label(f"{tag}_a2")
        a("s_waitcnt vmcnt(0)")
        a.label(f"{tag}_e")
        for x in poll_issue() + st_off(3): a(x)
        emit(a, dmaA(3 * G2_STAGE) + dmaB(3 * G2_STAGE))
        a(f"s_waitcnt vmcnt({min(63, st['n'] - st['e2'] + 11)})")
        a("s_barrier")
        spin(a, 2, f"{tag}_s2", 24, poll)
        for x in st_off(4): a(x)
        emit(a, dmaA(0) + dmaB(0))
        epi(left)
        a(f"s_branch {name}_prod")
        a.label(f"{tag}_other")
        a(f"s_waitcnt vmcnt({min(63, st['n'] - st['cp'])})")
        epi(left)
        a(f"s_branch {name}_yother")
    return tailX, tailY

def phase2(a, name, poll=1, stamp=False, om=0, fused=1, pp=1, AB=1, nsleep=1, pre=1, dly=0, xm=1, TFS=7):
    XM = ['', 'sc0 sc1', 'sc1', 'nt'][xm]
    OM = ['', 'sc0 sc1', 'nt'][om]
    if fused:
        a.label(f"{name}_xother")
        a("s_barrier")
        a.label(f"{name}_yother")
        a(f"s_branch {name}_conv")
    a.label(f"{name}_p2late")
    a(f"s_load_dwordx2 s[4:5], s[0:1], {KA['q']}")
    a(f"s_load_dwordx2 s[24:25], s[0:1], {KA['w2']}")
    a(f"s_load_dwordx2 s[6:7], s[0:1], {KA['ws']}")
    a("v_lshrrev_b32 v10, 6, v0")
    a("v_and_b32 v11, 63, v0")
    a("v_readfirstlane_b32 s22, v10")
    for x in b_offs(11, 12, vB[:3]) + b_unpack(): a(x)
    a("s_lshr_b32 s33, s22, 2")
    a("s_mov_b64 s[100:101], 0")
    a(f"v_mov_b32 v{vPL}, 0")
    a("s_waitcnt lgkmcnt(0)")
    srd(a, 8, 4, 5, 2048 * 1152)
    srd(a, 16, 6, 7, H_BYTES)
    for x in ws_srd(92, WS_FL, FL_BYTES): a(x)
    for x in g2_scal(): a(x)
    a("s_cmp_eq_u32 s76, 1")
    a(f"s_cbranch_scc1 {name}_conv")
    a("s_cmp_eq_u32 s33, 0")
    a(f"s_cbranch_scc0 {name}_ylate")
    for x in st_off(0): a(x)
    emit(a, dmaB(0))
    a.label(f"{name}_xlate")
    if poll:
        for x in poll_regs(24): a(x)
        a("s_mov_b32 s66, 0")
        spin(a, 0, f"{name}_xs0", 24)
    for x in st_off(0): a(x)
    emit(a, dmaA(0))
    a(f"s_mov_b32 s{sEAR}, 0")
    a.label(f"{name}_cons")
    if stamp: stamp_to(a, 74)
    a("s_and_b32 s42, s22, 1")
    a("s_lshr_b32 s43, s22, 1")
    a("v_bfe_u32 v3, v0, 4, 2")
    a("v_and_b32 v4, 15, v0")
    a("v_lshrrev_b32 v5, 1, v3")
    a("v_lshlrev_b32 v5, 9, v5")
    a("v_and_b32 v6, 1, v3")
    a("v_lshl_add_u32 v5, v6, 4, v5")
    a("s_lshl_b32 s34, s42, 13")
    a("v_lshl_add_u32 v7, v4, 5, v5")
    a("v_add_u32 v16, s34, v7")
    a(f"v_add_u32 v17, {2*G2_STAGE}, v16")
    a("v_lshrrev_b32 v5, 2, v4")
    a("v_lshl_add_u32 v6, v3, 3, v5")
    a("v_mul_u32_u24 v6, 384, v6")
    a("v_and_b32 v7, 1, v0")
    a("v_lshl_add_u32 v6, v7, 4, v6")
    a("v_add_u32 v6, 16384, v6")
    a("v_lshrrev_b32 v5, 1, v5")
    a("v_and_b32 v7, 1, v3")
    a("v_lshl_add_u32 v5, v7, 1, v5")
    a("v_bfe_u32 v9, v0, 1, 1")
    a("v_xor_b32 v5, v5, v9")
    for jj4 in range(4):
        if jj4 % 2 == 0:
            a("s_mul_i32 s34, s43, 3")
            a(f"s_add_u32 s34, s34, {jj4>>1}")
            a("s_and_b32 s35, s34, 1")
            a("s_lshl_b32 s35, s35, 1")
            a("s_lshr_b32 s34, s34, 1")
            a("s_lshl_b32 s34, s34, 7")
            a("v_xor_b32 v7, s35, v5")
            a("v_lshl_add_u32 v7, v7, 5, v6")
            a("v_lshl_add_u32 v7, v9, 3, v7")
            a(f"v_add_u32 v{18+jj4}, s34, v7")
        else:
            a(f"v_xor_b32 v{18+jj4}, 8, v{17+jj4}")
        a(f"v_add_u32 v{22+jj4}, {2*G2_STAGE}, v{18+jj4}")
    FR = 32; ACC = 128
    def acc(mi, j): return ACC + (mi * 6 + j) * 4
    def fa(t, mi): return FR + (t & 1) * 40 + mi * 4
    def fb(t, j): return FR + (t & 1) * 40 + 16 + j * 4
    def read_ops(t):
        st = t >> 1; b = st % 4; tt = t & 1; bo = (b & 1) * G2_STAGE; bh = b >> 1
        ops = []
        for mi in range(4):
            ops.append(f"ds_read_b128 {vr(fa(t,mi),4)}, v{16+bh} offset:{bo + tt*1024 + mi*2048}")
        for j in range(6):
            off = bo + tt * 32 * 384 + (j >> 2) * 128
            ops.append(f"ds_read_b64_tr_b16 {vr(fb(t,j),2)}, v{18+4*bh+(j&3)} offset:{off}")
            ops.append(f"ds_read_b64_tr_b16 {vr(fb(t,j)+2,2)}, v{18+4*bh+(j&3)} offset:{off + 4*384}")
        A = ops[:4]; B = ops[4:]
        return [A[0], B[0], B[1], A[1], A[2], A[3]] + B[2:]
    a("s_setprio 1")
    a(f"s_cmp_eq_u32 s{sEAR}, 1")
    a(f"s_cbranch_scc1 {name}_cw")
    a("s_waitcnt vmcnt(0)")
    a.label(f"{name}_cw")
    a("s_barrier")
    if stamp: stamp_to(a, 75)
    for x in read_ops(0): a(x)
    a("s_waitcnt lgkmcnt(0)")
    extra = ws_srd(56, WS_OB, OB_BYTES) + [f"s_mul_i32 s44, s77, {OBS}", "s_mul_i32 s34, s22, 9216", "s_add_u32 s44, s44, s34",
             "v_and_b32 v5, 63, v0", "v_lshlrev_b32 v5, 4, v5", "s_mul_i32 s34, s22, 6144", f"s_add_u32 s34, s34, {XCH}", "v_add_u32 v6, s34, v5"]
    NT = 2 * NST
    for t in range(NT):
        st = t >> 1
        if (t & 1) and st + 1 < NST:
            if st == 3: a("s_waitcnt vmcnt(0)")
            a("s_barrier")
        rd = read_ops(t + 1) if t + 1 < NT else []
        order = [(j, mi) for j in range(6) for mi in range(4)]
        if t == NT - 1: order = [(j, mi) for mi in (1, 2, 3, 0) for j in range(6)]
        for j, mi in order:
            c = "0" if t == 0 else vr(acc(mi, j), 4)
            a(f"v_mfma_f32_16x16x32_bf16 {vr(acc(mi,j),4)}, {vr(fb(t,j),4)}, {vr(fa(t,mi),4)}, {c}")
            if rd: a(rd.pop(0))
            elif extra and t >= 2: a(extra.pop(0))
        if t + 1 < NT:
            a("s_waitcnt lgkmcnt(0)")
    assert not extra
    if stamp: stamp_to(a, 71)
    k = 0
    for mi in (1, 2, 3):
        for pq in range(3):
            t0 = acc(mi, 2 * pq); t1 = acc(mi, 2 * pq + 1)
            T = FR + (k % 4) * 4; k += 1
            a(f"v_cvt_pk_bf16_f32 v{T}, v{t0}, v{t0+1}")
            a(f"v_cvt_pk_bf16_f32 v{T+1}, v{t0+2}, v{t0+3}")
            a(f"v_cvt_pk_bf16_f32 v{T+2}, v{t1}, v{t1+1}")
            a(f"v_cvt_pk_bf16_f32 v{T+3}, v{t1+2}, v{t1+3}")
            for r in range(4): a(f"v_min_u32 v{T+r}, -2, v{T+r}")
            a(f"buffer_store_dwordx4 {vr(T,4)}, v5, s[56:59], s44 offen offset:{pq*1024} {XM if LX != 2 or mi == 1 else SC}")
        if mi < 3: a("s_add_u32 s44, s44, 3072")
    for j in range(6): a(f"ds_write_b128 v6, {vr(acc(0,j),4)} offset:{1024*j}")
    a("s_waitcnt lgkmcnt(0)")
    a("s_barrier")
    if stamp: stamp_out(a, (72, 80, 75, 71, 82, sT, 73, 74), None)
    a("s_endpgm")

    a.label(f"{name}_ylate")
    for x in st_off(1): a(x)
    emit(a, dmaB(G2_STAGE))
    for x in st_off(2): a(x)
    emit(a, dmaB(2 * G2_STAGE))
    for x in poll_regs(24): a(x)
    a("s_mov_b32 s66, 0")
    spin(a, 0, f"{name}_ys0", 24, poll)
    for x in st_off(1): a(x)
    emit(a, dmaA(G2_STAGE))
    spin(a, 1, f"{name}_ys1", 24, poll)
    for x in st_off(2): a(x)
    emit(a, dmaA(2 * G2_STAGE))
    for x in poll_issue() + st_off(3): a(x)
    emit(a, dmaA(3 * G2_STAGE) + dmaB(3 * G2_STAGE))
    a("s_barrier")
    a("s_waitcnt vmcnt(15)")
    a("s_barrier")
    spin(a, 2, f"{name}_ys2", 24, poll)
    for x in st_off(4): a(x)
    emit(a, dmaA(0) + dmaB(0))
    a.label(f"{name}_prod")
    if stamp: stamp_to(a, 74)
    issued = 21; landed = {2: 0, 3: 11, 4: 21}; pidx = 1
    QR = 32; QG = 48; S = 72; PU = 96; ZU = 144; vG = 44; vSL = 45; vSH = 46; vOM = 47
    vQ0, vQ1, vL16, vZ, vP0, vP1, vXR = 26, 27, 28, 29, 30, 31, 25
    for st in range(1, NST - 1):
        need = landed[st + 1]
        ev = st % 2 == 0 and st + 4 < NST
        if ev: need = max(need, pidx)
        a(f"s_waitcnt vmcnt({issued - need})")
        a("s_barrier")
        if st == 3 and fused:
            for x in pubmask(84) + publish(63, 24): a(x)
            issued += 1
        if st + 4 < NST:
            if ev and poll:
                for x in poll_eval(24): a(x)
                spin(a, (st + 4) >> 1, f"{name}_ps{st}", 24)
                if st + 6 < NST:
                    a("s_and_b32 s34, s66, 0x1ff")
                    a("s_cmpk_eq_u32 s34, 0x1ff")
                    a("s_cselect_b64 exec, 0, -1")
                    for x in poll_issue(): a(x)
                    a("s_mov_b64 exec, -1")
                    issued += 1; pidx = issued
            for x in st_off(st + 4): a(x)
            b = (st % 4) * G2_STAGE
            issued += emit(a, dmaA(b) + dmaB(b)); landed[st + 4] = issued
        def tf_loads():
            a(f"buffer_load_dword v12, v10, s[92:95], 0 offen {SC}")
            a(f"buffer_load_dword v13, v11, s[92:95], 0 offen {SC}")
        if st == TFS:
            a(f"s_and_b32 s23, s{sT}, 7")
            for i in (1, 2, 3):
                if LX == 1:
                    a(f"s_xor_b32 s34, s79, {i}")
                    a("s_sub_u32 s34, s34, s79")
                    a("s_mul_i32 s34, s34, 3")
                    a(f"s_add_u32 s{49+i}, s34, s77")
                elif LX == 2:
                    a(f"s_xor_b32 s34, s79, {i&1}")
                    a("s_sub_u32 s34, s34, s79")
                    a("s_mul_i32 s34, s34, 3")
                    a(f"s_xor_b32 s35, s23, {2*(i&2)}")
                    a("s_mul_i32 s35, s35, 24")
                    a("s_add_u32 s34, s34, s35")
                    a(f"s_add_u32 s{49+i}, s34, s78")
                else:
                    a(f"s_xor_b32 s34, s23, {2*i}")
                    a("s_mul_i32 s34, s34, 24")
                    a(f"s_add_u32 s{49+i}, s34, s78")
            if poll:
                a("v_and_b32 v10, 63, v0")
                a("v_lshlrev_b32 v10, 7, v10")
                a(f"v_add_u32 v10, {32768 + 192*128}, v10")
                a("v_mov_b32 v11, s50")
                a("v_writelane_b32 v11, s51, 1")
                a("v_writelane_b32 v11, s52, 2")
                a("v_lshlrev_b32 v11, 7, v11")
                a("v_add_u32 v11, 32768, v11")
                tf_loads()
                issued += 2
        if st == NST - 4 and poll:
            tg = f"{name}_tf"
            a(f"s_movk_i32 s{sCNT}, 0x4000")
            a.label(f"{tg}_l")
            a("v_and_b32 v12, v12, v13")
            a("v_cmp_eq_u32 vcc, 1, v12")
            a("s_nop 1")
            a("s_cmp_eq_u64 vcc, -1")
            a(f"s_cbranch_scc1 {tg}_ok")
            a("s_sleep 4")
            tf_loads()
            a("s_waitcnt vmcnt(0)")
            a(f"s_sub_u32 s{sCNT}, s{sCNT}, 1")
            a(f"s_cbranch_scc0 {tg}_l")
            a.label(f"{tg}_ok")
        if st == NST - 4:
            a(f"s_load_dwordx2 s[44:45], s[0:1], {KA['out']}")
            for x in ws_srd(56, WS_OB, OB_BYTES): a(x)
            a("s_and_b32 s42, s22, 1")
            a("s_lshr_b32 s43, s84, 1")
            a("s_lshl_b32 s42, s42, 1")
            a("s_lshr_b32 s34, s79, 1")
            a("s_add_u32 s42, s42, s34")
            for x in pair_of(42, 29, 87, 88, 89, 34, 35): a(x)
            a("s_lshl_b32 s29, s29, 1")
            a("s_and_b32 s34, s79, 1")
            a("s_add_u32 s29, s29, s34")
            a(f"s_mul_i32 s30, s29, {16*1152}")
            a("s_mul_i32 s34, s86, 384")
            a("s_add_u32 s30, s30, s34")
            a("s_mul_i32 s34, s43, 192")
            a("s_add_u32 s30, s30, s34")
            a("v_bfe_u32 v3, v0, 4, 2")
            a("v_and_b32 v4, 15, v0")
            a(f"v_mul_u32_u24 v{vQ0}, 1152, v4")
            a(f"v_lshl_add_u32 v{vQ0}, v3, 4, v{vQ0}")
            a("v_lshrrev_b32 v5, 1, v3")
            a(f"v_lshl_add_u32 v10, v5, 3, v{vQ0}")
            a(f"v_xor_b32 v{vQ1}, 8, v10")
            for pq in range(3):
                a(f"buffer_load_dwordx2 {vr(QR+4*pq,2)}, v10, s[8:11], s30 offen offset:{64*pq}")
                a(f"buffer_load_dwordx2 {vr(QR+4*pq+2,2)}, v{vQ1}, s[8:11], s30 offen offset:{64*pq}")
            a("v_lshlrev_b32 v10, 2, v4")
            a("s_lshl_b32 s34, s29, 6")
            a(f"s_add_u32 s34, s34, {G_OFF}")
            a(f"buffer_load_dword v{vG}, v10, s[56:59], s34 offen {SC}")
            issued += 7
            a(f"v_and_b32 v{vL16}, 63, v0")
            a(f"v_lshlrev_b32 v{vL16}, 4, v{vL16}")
            a("s_mul_i32 s34, s84, 6144")
            a(f"s_add_u32 s34, s34, {XCH}")
            a(f"v_add_u32 v{vXR}, s34, v{vL16}")
            a(f"v_mul_u32_u24 v{vZ}, {OBS}, v3")
            a(f"v_lshl_add_u32 v{vZ}, v4, 4, v{vZ}")
            a("v_lshl_add_u32 v10, v3, 1, v5")
            a(f"v_mul_u32_u24 v{vP0}, {4*OBS}, v10")
            a(f"v_lshl_add_u32 v{vP0}, v4, 3, v{vP0}")
            a("v_xor_b32 v10, 1, v10")
            a(f"v_mul_u32_u24 v{vP1}, {4*OBS}, v10")
            a(f"v_lshl_add_u32 v{vP1}, v4, 3, v{vP1}")
            for i in (1, 2, 3):
                a(f"s_mul_i32 s{59+i}, s{49+i}, {OBS}")
                a("s_mul_i32 s34, s84, 9216")
                a(f"s_add_u32 s{59+i}, s{59+i}, s34")
                a(f"s_add_u32 s{59+i}, s{59+i}, {(i-1)*3072}")
            a("s_mul_i32 s63, s86, 24")
            a("s_mul_i32 s34, s43, 12")
            a("s_add_u32 s63, s63, s34")
            a("s_add_u32 s34, s63, 192")
            a(f"s_mul_i32 s64, s34, {OBS}")
            a("s_lshr_b32 s34, s29, 4")
            a("s_lshl_b32 s35, s34, 12")
            a("s_add_u32 s64, s64, s35")
            a("s_lshl_b32 s65, s34, 9")
            a("s_and_b32 s34, s29, 3")
            a("s_lshl_b32 s35, s34, 10")
            a("s_add_u32 s64, s64, s35")
            a("s_lshr_b32 s34, s34, 1")
            a("s_lshl_b32 s34, s34, 2")
            a("s_add_u32 s65, s65, s34")
            a("s_bfe_u32 s34, s29, 0x20002")
            a("s_lshl_b32 s35, s34, 8")
            a("s_add_u32 s64, s64, s35")
            a("s_lshl_b32 s34, s34, 7")
            a("s_add_u32 s65, s65, s34")
            a(f"s_add_u32 s65, s65, {192*OBS + 32768}")
            a("s_bitcmp1_b32 s29, 0")
            a("s_mov_b32 s31, 0x05040100")
            a("s_cselect_b32 s31, 0x07060302, s31")
            a("s_waitcnt lgkmcnt(0)")
            a("s_and_b32 s45, s45, 0xffff")
            a(f"s_mov_b32 s46, {2048*1152}")
            a("s_mov_b32 s47, 0x00020000")
    a("s_waitcnt vmcnt(0)")
    a(f"v_sub_f32 v{vOM}, 1.0, v{vG}")
    a(f"v_cvt_pk_bf16_f32 v{vSL}, v{vOM}, v{vOM}")
    a(f"v_and_b32 v{vSH}, 0xffff0000, v{vSL}")
    a(f"v_lshrrev_b32 v{vSL}, 16, v{vSL}")
    for i in range(12):
        a(f"v_lshlrev_b32 v{QG+2*i}, 16, v{QR+i}")
        a(f"v_and_b32 v{QG+2*i+1}, 0xffff0000, v{QR+i}")
    for i in range(24): a(f"v_mul_f32 v{QG+i}, v{QG+i}, v{vG}")
    a("v_cmp_lt_u32 s[52:53], 1, v3")
    def final(tag, pool):
        MK = [36, 38, 40, 54]
        def loads(grp):
            o = []
            if grp < 3:
                for pq in range(3): o.append(f"buffer_load_dwordx4 {vr(PU+16*grp+4*pq,4)}, v{vL16}, s[56:59], s{60+grp} offen offset:{1024*pq} {SC}")
            else:
                o.append(f"buffer_load_dwordx4 {vr(ZU,4)}, v{vZ}, s[56:59], s64 offen {SC}")
                if not pool:
                    for pq in (1, 2):
                        o.append(f"s_add_u32 s34, s64, {4*pq*OBS}")
                        o.append(f"buffer_load_dwordx4 {vr(ZU+4*pq,4)}, v{vZ}, s[56:59], s34 offen {SC}")
                else:
                    for pq in (1, 2):
                        for e in range(4):
                            o.append(f"s_add_u32 s34, s65, {(32*(pq-1) + e)*OBS}")
                            o.append(f"buffer_load_dword v{ZU+4+8*(pq-1)+e}, v{vP0}, s[56:59], s34 offen {SC}")
                            o.append(f"buffer_load_dword v{ZU+4+8*(pq-1)+4+e}, v{vP1}, s[56:59], s34 offen {SC}")
            return o
        def regs(grp):
            if grp < 3: return list(range(PU + 16 * grp, PU + 16 * grp + 12))
            return list(range(ZU, ZU + (20 if pool else 12)))
        if pre:
            for grp in range(4):
                for x in loads(grp): a(x)
        a("s_mov_b32 s67, 15")
        a("s_barrier")
        if stamp: stamp_to(a, 71)
        if dly: a(f"s_sleep {dly}")
        if not pre:
            for grp in range(4):
                for x in loads(grp): a(x)
        for j in range(6): a(f"ds_read_b128 {vr(S+4*j,4)}, v{vXR} offset:{1024*j}")
        a(f"s_movk_i32 s{sCNT}, 0x4000")
        a("s_waitcnt lgkmcnt(0)")
        for i in range(24): a(f"v_mul_f32 v{S+i}, v{vSH}, v{S+i}")
        if stamp == 2:
            a("s_waitcnt vmcnt(9)"); stamp_to(a, 73)
        a.label(f"{tag}_round")
        a("s_waitcnt vmcnt(0)")
        if stamp == 2: stamp_to(a, 74)
        for grp in range(4):
            r = regs(grp); t = 10 + grp
            a(f"v_max3_u32 v{t}, v{r[0]}, v{r[1]}, v{r[2]}")
            r = r[3:]
            while len(r) > 1:
                a(f"v_max3_u32 v{t}, v{t}, v{r[0]}, v{r[1]}"); r = r[2:]
            if r: a(f"v_max_u32 v{t}, v{t}, v{r[0]}")
            a(f"v_cmp_eq_u32 s[{MK[grp]}:{MK[grp]+1}], -1, v{t}")
        a("s_nop 1")
        a(f"s_or_b64 s[68:69], s[{MK[0]}:{MK[0]+1}], s[{MK[1]}:{MK[1]+1}]")
        a(f"s_or_b64 s[68:69], s[68:69], s[{MK[2]}:{MK[2]+1}]")
        a(f"s_or_b64 s[68:69], s[68:69], s[{MK[3]}:{MK[3]+1}]")
        a(f"s_cbranch_scc0 {tag}_nold")
        if nsleep: a(f"s_sleep {nsleep}")
        for grp in range(4):
            a(f"s_mov_b64 exec, s[{MK[grp]}:{MK[grp]+1}]")
            a(f"s_cbranch_execz {tag}_sk{grp}")
            for x in loads(grp): a(x)
            a.label(f"{tag}_sk{grp}")
        a("s_mov_b64 exec, -1")
        a.label(f"{tag}_nold")
        for grp in range(4):
            a(f"s_cmp_eq_u64 s[{MK[grp]}:{MK[grp]+1}], 0")
            a(f"s_cbranch_scc0 {tag}_na{grp}")
            a(f"s_bitcmp1_b32 s67, {grp}")
            a(f"s_cbranch_scc0 {tag}_na{grp}")
            a(f"s_bitset0_b32 s67, {grp}")
            if grp < 3:
                for i in range(12):
                    a(f"v_dot2_f32_bf16 v{S+2*i}, v{PU+16*grp+i}, v{vSL}, v{S+2*i}")
                    a(f"v_dot2_f32_bf16 v{S+2*i+1}, v{PU+16*grp+i}, v{vSH}, v{S+2*i+1}")
            else:
                ZT = ZU + 24
                zs = [ZU + i for i in range(12)]
                if pool:
                    for i in range(8):
                        a(f"v_perm_b32 v{ZT+24+i}, v{ZU+4+2*i+1}, v{ZU+4+2*i}, s31")
                        zs[4 + i] = ZT + 24 + i
                for i in range(12):
                    a(f"v_lshlrev_b32 v{ZT+2*i}, 16, v{zs[i]}")
                    a(f"v_and_b32 v{ZT+2*i+1}, 0xffff0000, v{zs[i]}")
                for i in range(24): a(f"v_fmac_f32 v{S+i}, v{QG+i}, v{ZT+i}")
            a.label(f"{tag}_na{grp}")
        a("s_cmp_eq_u32 s67, 0")
        a(f"s_cbranch_scc1 {tag}_fin")
        a(f"s_sub_u32 s{sCNT}, s{sCNT}, 1")
        a(f"s_cbranch_scc0 {tag}_round")
        a.label(f"{tag}_fin")
        if stamp: a(f"s_mov_b32 s75, s{sCNT}")
        a("s_nop 2")
        for pq in range(3):
            T = QR + 4 * pq; O = PU + 4 * pq
            for r in range(4): a(f"v_cvt_pk_bf16_f32 v{T+r}, v{S+8*pq+2*r}, v{S+8*pq+2*r+1}")
            for r in range(4): a(f"v_cndmask_b32 v{O+r}, v{T+r}, v{T+(r^2)}, s[52:53]")
            a(f"buffer_store_dwordx4 {vr(O,4)}, v{vQ0}, s[44:47], s30 offen offset:{64*pq} {OM}")
        if stamp: stamp_out(a, (72, 80, 75, 71, 82, sT, 73, 74), None)
        a("s_endpgm")
    a("s_cmp_eq_u32 s63, 60")
    a(f"s_cbranch_scc1 {name}_fpool")
    final(f"{name}_fn", False)
    a.label(f"{name}_fpool")
    final(f"{name}_fp", True)
    conv6(a, name, poll=poll, stamp=stamp, pp=pp, AB=AB, fused=fused)

def gate6(a, name):
    a.label(f"{name}_gate")
    a(f"s_load_dwordx2 s[4:5], s[0:1], {KA['q']}")
    a(f"s_load_dwordx2 s[30:31], s[0:1], {KA['gate_w']}")
    a(f"s_load_dwordx2 s[6:7], s[0:1], {KA['ws']}")
    a(f"s_load_dwordx2 s[36:37], s[0:1], {KA['dbg']}")
    a("v_lshrrev_b32 v1, 6, v0")
    a("v_and_b32 v2, 63, v0")
    a("v_readfirstlane_b32 s22, v1")
    a("v_and_b32 v3, 7, v2")
    a("v_lshrrev_b32 v4, 3, v2")
    a("s_lshl_b32 s24, s49, 3")
    a("s_add_u32 s24, s24, s22")
    a(f"s_mul_i32 s25, s24, {64*1152}")
    a("v_mul_u32_u24 v5, 1152, v4")
    a("v_lshl_add_u32 v5, v3, 4, v5")
    a("v_lshlrev_b32 v6, 4, v3")
    for x in p2_ids(34, 69, 35, 29, 3) + [f"s_lshl_b32 s{sFAST}, s69, 7", f"s_add_u32 s{sFAST}, s{sFAST}, 32768", f"s_mul_i32 s69, s69, {OBS}", "s_mul_i32 s34, s22, 5120", "s_add_u32 s69, s69, s34"]: a(x)
    for k in range(4): a(f"v_mov_b32 v{12+k}, -1")
    a("v_lshlrev_b32 v7, 4, v2")
    a("s_waitcnt lgkmcnt(0)")
    srd(a, 8, 4, 5, 2048 * 1152)
    srd(a, 12, 30, 31, 1152)
    for x in ws_srd(56, WS_OB, OB_BYTES): a(x)
    for x in ws_srd(92, WS_FL, FL_BYTES) + dbg_srd(36, 36): a(x)
    for x in pubmask(22): a(x)
    a(f"s_or_b32 s34, s49, s{sM}")
    a("s_cmp_eq_u32 s34, 0")
    a(f"s_cbranch_scc0 {name}_gnc")
    for k in range(4): a(f"v_mov_b32 v{16+k}, 0")
    a("s_lshl_b32 s34, s22, 13")
    a("s_add_u32 s35, s34, 4096")
    for k in range(8): a(f"buffer_store_dwordx4 v[16:19], v7, s[92:95], s{34 + (k>>2)} offen offset:{1024*(k&3)} {SC}")
    a("s_waitcnt vmcnt(0)")
    a("s_barrier")
    a("s_and_b64 exec, s[100:101], 1")
    a(f"buffer_store_dword v12, off, s[36:39], 0 {SC}")
    a("s_mov_b64 exec, -1")
    a.label(f"{name}_gnc")
    GW = 16; QQ = 64
    for j in range(9): a(f"buffer_load_dwordx4 {vr(GW+4*j,4)}, v6, s[12:15], 0 offen offset:{128*j}")
    def qld(st):
        b = QQ + (st % 5) * 36
        for j in range(9): a(f"buffer_load_dwordx4 {vr(b+4*j,4)}, v5, s[8:11], s25 offen offset:{128*j}")
        a(f"s_add_u32 s25, s25, {8*1152}")
    for st in range(5): qld(st)
    a("v_mov_b32 v10, 0")
    for st in range(8):
        b = QQ + (st % 5) * 36
        a(f"s_waitcnt vmcnt({9 * (min(8, st + 5) - st - 1)})")
        a("v_mov_b32 v8, 0"); a("v_mov_b32 v9, 0")
        for k in range(36): a(f"v_dot2_f32_bf16 v{8+(k&1)}, v{b+k}, v{GW+k}, v{8+(k&1)}")
        a("s_nop 3")
        if st + 5 < 8: qld(st + 5)
        a("v_add_f32 v8, v8, v9")
        a("s_nop 1")
        a("v_add_f32_dpp v8, v8, v8 quad_perm:[1,0,3,2] row_mask:0xf bank_mask:0xf")
        a("s_nop 1")
        a("v_add_f32_dpp v8, v8, v8 quad_perm:[2,3,0,1] row_mask:0xf bank_mask:0xf")
        a("s_nop 1")
        a("v_add_f32_dpp v8, v8, v8 row_half_mirror row_mask:0xf bank_mask:0xf")
        a(f"v_cmp_eq_u32 vcc, {st}, v3")
        a("v_cndmask_b32 v10, v10, v8, vcc")
    for k in range(5):
        a(f"buffer_store_dwordx4 v[12:15], v7, s[56:59], s69 offen {SC}")
        a("s_add_u32 s69, s69, 1024")
    a("v_cvt_pk_bf16_f32 v11, v10, v10")
    a("v_lshlrev_b32 v10, 16, v11")
    a("v_mul_f32 v10, 0xbfb8aa3b, v10")
    a("v_exp_f32 v10, v10")
    a("s_nop 0")
    a("v_add_f32 v10, 1.0, v10")
    a("v_rcp_f32 v10, v10")
    a("s_nop 0")
    a("v_cvt_pk_bf16_f32 v11, v10, v10")
    a("v_lshlrev_b32 v10, 16, v11")
    a("v_lshl_add_u32 v11, v3, 3, v4")
    a("v_lshlrev_b32 v11, 2, v11")
    a("s_lshl_b32 s24, s24, 8")
    a(f"s_add_u32 s24, s24, {G_OFF}")
    a(f"buffer_store_dword v10, v11, s[56:59], s24 offen {SC}")
    a(f"s_movk_i32 s{sCNT}, 0x4000")
    a.label(f"{name}_gl")
    a(f"buffer_load_dword v{vPL}, off, s[36:39], 0 {SC}")
    a("s_waitcnt vmcnt(0)")
    a(f"v_readfirstlane_b32 s34, v{vPL}")
    a("s_cmp_lg_u32 s34, 0")
    a(f"s_cbranch_scc1 {name}_gok")
    a("s_sleep 2")
    a(f"s_sub_u32 s{sCNT}, s{sCNT}, 1")
    a(f"s_cbranch_scc0 {name}_gl")
    a.label(f"{name}_gok")
    a("s_barrier")
    for x in publish(1, 24, sFAST): a(x)

def conv6(a, name, poll=1, stamp=False, pp=1, AB=1, fused=1):
    a.label(f"{name}_conv")
    if stamp: stamp_to(a, 74)
    a(f"s_load_dwordx4 s[24:27], s[0:1], {KA['ssm_k']}")
    a("s_mov_b32 s23, s78")
    a("v_and_b32 v2, 63, v0")
    a("v_lshrrev_b32 v3, 4, v2")
    a("v_and_b32 v4, 15, v2")
    a("s_lshl_b32 s28, s23, 3")
    a("s_add_u32 s28, s28, s22")
    a("s_add_u32 s29, s23, 512")
    a("s_lshl_b32 s30, s28, 12")
    a("s_lshl_b32 s31, s29, 12")
    a("s_lshl_b32 s35, s22, 9")
    a("s_add_u32 s31, s31, s35")
    a(f"s_mul_i32 s32, s22, {HWV}")
    a("s_lshl_b32 s33, s28, 1")
    a("s_and_b32 s33, s33, 0xfffffffc")
    a("s_lshl_b32 s36, s29, 1")
    a("s_and_b32 s36, s36, 0xfffffffc")
    a("v_lshlrev_b32 v5, 4, v2")
    CA = 32; AF = 64; BF = 96; C9 = 128; AD = 160; AD9 = 164; HL = 168; H9 = 192
    for x in ws_srd(12, WS_XR, XR_BYTES): a(x)
    if poll: wait_kv(a, f"{name}_wk", 24)
    a(f"s_add_u32 m0, s32, {2*CSTR + 32}")
    a(f"v_mov_b32 v{HL}, 0"); a(f"v_mov_b32 v{HL+1}, 0")
    for b in range(4): a(f"buffer_load_dwordx4 v5, s[12:15], s30 offen offset:{1024*b} {SC} lds")
    a(f"v_mov_b32 v{H9}, 0"); a(f"v_mov_b32 v{H9+1}, 0")
    a("s_mov_b32 s41, 0")
    a("s_cmp_eq_u32 s22, 0")
    a("s_cselect_b32 s40, -2, -1")
    a("s_waitcnt lgkmcnt(0)")
    a("s_sub_u32 s8, s24, 16")
    a("s_subb_u32 s9, s25, 0")
    a("s_and_b32 s9, s9, 0xffff")
    a(f"s_mov_b32 s10, {576*4096 + 16}")
    a("s_mov_b32 s11, 0x00020000")
    a("s_load_dword s52, s[26:27], s33")
    a("s_load_dword s53, s[26:27], s36")
    for b in range(4):
        a(f"buffer_load_dwordx4 {vr(HL+6*b+2,4)}, v5, s[8:11], s30 offen offset:{1024*b + 16}")
        if b == 0: a("s_mov_b64 exec, -2")
        a(f"buffer_load_dwordx2 {vr(HL+6*b,2)}, v5, s[8:11], s30 offen offset:{1024*b + 8}")
        if b == 0: a("s_mov_b64 exec, -1")
    a(f"s_add_u32 m0, s35, {X9}")
    a("s_mov_b32 exec_hi, 0")
    a(f"buffer_load_dwordx4 v5, s[12:15], s31 offen {SC} lds")
    a(f"buffer_load_dwordx4 {vr(H9+2,4)}, v5, s[8:11], s31 offen offset:16")
    a("s_mov_b64 exec, s[40:41]")
    a(f"buffer_load_dwordx2 {vr(H9,2)}, v5, s[8:11], s31 offen offset:8")
    a("s_mov_b64 exec, -1")
    for k in range(4): a(f"v_mov_b32 v{24+k}, 0")
    a("v_and_b32 v17, 7, v2")
    a("v_lshrrev_b32 v18, 1, v17")
    a(f"v_mul_u32_u24 v18, {CSTR}, v18")
    a("v_and_b32 v17, 1, v17")
    a("v_lshl_add_u32 v17, v17, 4, v18")
    a("v_add_u32 v18, s32, v17")
    a("ds_write_b128 v18, v[24:27]")
    a(f"v_add_u32 v18, {8*HWV}, v17")
    a("ds_write_b128 v18, v[24:27]")
    a("v_lshlrev_b32 v16, 3, v2")
    a(f"v_add_u32 v18, {X9 + 4096}, v16")
    a("ds_write_b64 v18, v[24:25]")
    a("v_add_u32 v16, s32, v16")
    a("v_lshlrev_b32 v10, 5, v4")
    a("v_lshlrev_b32 v11, 4, v3")
    a("v_sub_u32 v11, v11, v10")
    a(f"s_add_u32 s42, s32, {2*CSTR + 32 + 480}")
    a("v_add_u32 v12, s42, v11")
    a("s_lshl_b32 s42, s22, 6")
    a(f"s_add_u32 s42, s42, {X9 + 480}")
    a("v_add_u32 v13, s42, v11")
    a("s_add_u32 s42, s32, 32")
    a("v_add_u32 v14, s42, v5")
    a(f"s_add_u32 s42, s35, {8*HWV + 32}")
    a("v_add_u32 v15, s42, v5")
    a("v_sub_u32 v17, 3, v4")
    a("v_and_b32 v17, 3, v17")
    a(f"v_mul_u32_u24 v18, {CSTR + 2}, v17")
    a("v_lshl_add_u32 v18, v4, 1, v18")
    a("v_lshl_add_u32 v18, v3, 4, v18")
    a("v_add_u32 v18, 2, v18")
    a("v_add_u32 v20, s32, v18")
    a("v_add_u32 v21, 2048, v20")
    a("s_lshl_b32 s42, s22, 6")
    a(f"s_add_u32 s42, s42, {8*HWV}")
    a("v_add_u32 v22, s42, v18")
    a("v_add_u32 v23, 2048, v22")
    for x in ws_srd(16, WS_OB, OB_BYTES): a(x)
    a("v_lshl_add_u32 v17, v3, 3, v4")
    a("v_sub_u32 v17, 15, v17")
    a("v_and_b32 v18, 1, v17")
    a("v_lshlrev_b32 v18, 4, v18")
    a("v_lshrrev_b32 v17, 1, v17")
    a("s_waitcnt lgkmcnt(0)")
    for s, ch in ((52, 28), (53, 29)):
        a(f"s_and_b32 s56, s{ch}, 1")
        a("s_lshl_b32 s56, s56, 4")
        a(f"s_lshr_b32 s{s}, s{s}, s56")
        a(f"s_and_b32 s{s}, s{s}, 0xffff")
    a("s_cmp_eq_u32 s22, 0")
    a("s_cselect_b32 s53, s53, 0")
    a("v_lshlrev_b32 v19, v18, s52")
    a("v_lshlrev_b32 v18, v18, s53")
    for q in range(4):
        a(f"v_cmp_eq_u32 vcc, {q}, v17")
        a(f"v_cndmask_b32 v{AD+q}, 0, v19, vcc")
        a(f"v_cndmask_b32 v{AD9+q}, 0, v18, vcc")
    a("s_waitcnt vmcnt(11)")
    for i in range(8): a(f"ds_read_b128 {vr(BF+4*i,4)}, v12 offset:{3584 - 512*i}")
    def copies(h, t, va, off):
        p2, p3, r = h, h + 1, h + 2
        src = [p2, p3, r, r + 1, r + 2, r + 3]
        a(f"ds_write_b128 v{va}, {vr(r,4)} offset:{off}")
        for k in range(4): a(f"v_alignbit_b32 v{t+k}, v{src[k+2]}, v{src[k+1]}, 16")
        a(f"ds_write_b128 v{va}, {vr(t,4)} offset:{off + CSTR}")
        for k in range(4): a(f"v_mov_b32 v{t+4+k}, v{src[k+1]}")
        a(f"ds_write_b128 v{va}, {vr(t+4,4)} offset:{off + 2*CSTR}")
        for k in range(4): a(f"v_alignbit_b32 v{t+8+k}, v{src[k+1]}, v{src[k]}, 16")
        a(f"ds_write_b128 v{va}, {vr(t+8,4)} offset:{off + 3*CSTR}")
    for b in range(4):
        a(f"s_waitcnt vmcnt({3 + 2*(3-b)})")
        copies(HL + 6 * b, CA + 12 * b, 14, 1024 * b)
    a("s_waitcnt vmcnt(0)")
    a("s_mov_b32 exec_hi, 0")
    copies(H9, C9, 15, 0)
    a("s_mov_b64 exec, -1")
    def areads(r, va):
        return [f"ds_read2_b64 {vr(AF+4*i,4)}, v{va + (i>>2)} offset0:{64*(i&3) + 8*r} offset1:{64*(i&3) + 8*r + 1}" for i in range(8)]
    for x in areads(0, 20): a(x)
    a("s_waitcnt lgkmcnt(0)")
    a("s_barrier")
    if fused:
        for x in publish(63, 24): a(x)
    if stamp: stamp_to(a, 75)
    if pp:
        a("s_cmp_lt_u32 s22, 4")
        a(f"s_cbranch_scc1 {name}_ppx")
        a("s_barrier")
        a.label(f"{name}_ppx")
    def dpp_ops():
        o = []
        for i in range(7, -1, -1):
            for q in range(4):
                o.append(f"v_mov_b32_dpp v{BF+4*i+q}, v{BF+4*i+q} row_shr:2 row_mask:0xf bank_mask:0xf bound_ctrl:0")
            if i:
                for q in range(4):
                    o.append(f"v_mov_b32_dpp v{BF+4*i+q}, v{BF+4*(i-1)+q} row_shl:14 row_mask:0xf bank_mask:0xf")
        return o
    for st in range(9):
        acc = CA if st < 8 else C9
        if pp: a("s_setprio 1")
        ms = []
        if st in (0, 8):
            for nt in range(8): ms.append((nt, AD if st == 0 else AD9, nt, True))
        for aa in range(8):
            for nt in range(aa, 8): ms.append((nt, AF + 4 * aa, nt - aa, False))
        for k, (nt, af, bi, zero) in enumerate(ms):
            c = "0" if zero else vr(acc + 4 * nt, 4)
            a(f"v_mfma_f32_16x16x32_bf16 {vr(acc+4*nt,4)}, {vr(BF+4*bi,4)}, {vr(af,4)}, {c}")
            if pp and k + 1 == len(ms) - AB:
                a("s_setprio 3")
                a("s_barrier")
        if pp: a("s_setprio 0")
        if st < 7:
            rd = areads(st + 1, 20); dp = dpp_ops()
            for j, x in enumerate(dp):
                if j % 6 == 0 and rd: a(rd.pop(0))
                a(x)
            for x in rd: a(x)
        elif st == 7:
            for x in areads(0, 22): a(x)
            for i in range(8): a(f"ds_read_b128 {vr(BF+4*i,4)}, v13 offset:{3584 - 512*i}")
            for nt in range(8):
                y = CA + 4 * nt
                a(f"v_cvt_pk_bf16_f32 v{HL+2*nt}, v{y}, v{y+1}")
                a(f"v_cvt_pk_bf16_f32 v{HL+2*nt+1}, v{y+2}, v{y+3}")
                a(f"ds_write_b64 v16, {vr(HL+2*nt,2)} offset:{512*nt}")
        else:
            a("v_add_u32 v17, s32, v5")
            a("s_nop 7")
            a("s_nop 3")
            for nt in range(8): a(f"ds_write_b128 v17, {vr(C9+4*nt,4)} offset:{4096 + 1024*nt}")
        a("s_waitcnt lgkmcnt(0)")
        if pp:
            if st == 8:
                a("s_cmp_lt_u32 s22, 4")
                a(f"s_cbranch_scc0 {name}_ppy")
                a("s_barrier")
                a.label(f"{name}_ppy")
            else:
                a("s_barrier")
    a("s_barrier")
    if stamp: stamp_to(a, 71)
    a("s_bitcmp1_b32 s23, 1")
    a(f"s_cselect_b32 s42, {4*HWV}, 0")
    a(f"s_cselect_b32 s43, 0, {4*HWV}")
    a("v_lshl_add_u32 v17, v0, 3, s42")
    a("v_lshl_add_u32 v18, v0, 3, s43")
    for e in range(8): a(f"ds_read_b64 {vr(AF+2*e,2)}, v{17 + (e>>2)} offset:{(e&3)*HWV}")
    a("s_lshl_b32 s42, s22, 10")
    a("s_add_u32 s42, s42, 4096")
    a("v_add_u32 v19, s42, v5")
    a(f"v_add_u32 v20, {4*HWV}, v19")
    for e in range(8): a(f"ds_read_b128 {vr(BF+4*e,4)}, v{19 + (e>>2)} offset:{(e&3)*HWV}")
    a("s_mov_b32 s56, 0x05040100")
    a("s_mov_b32 s57, 0x07060302")
    a(f"s_mul_i32 s58, s77, {OBS}")
    a("s_lshl_b32 s59, s22, 9")
    a("s_add_u32 s59, s59, s58")
    a("s_add_u32 s59, s59, 32768")
    a("s_lshl_b32 s60, s22, 12")
    a("s_add_u32 s58, s58, s60")
    a("v_lshlrev_b32 v21, 3, v2")
    a("s_waitcnt lgkmcnt(8)")
    for j in range(4):
        for p in range(4):
            a(f"v_perm_b32 v{CA+4*j+p}, v{AF+2*(2*p+1)+(j>>1)}, v{AF+2*(2*p)+(j>>1)}, s{57 if j&1 else 56}")
        for p in range(4): a(f"v_min_u32 v{CA+4*j+p}, -2, v{CA+4*j+p}")
        a(f"buffer_store_dwordx4 {vr(CA+4*j,4)}, v5, s[16:19], s58 offen offset:{1024*j} {SC}")
    a("s_waitcnt lgkmcnt(0)")
    for e in range(1, 8):
        a(f"v_pk_add_f32 {vr(BF,2)}, {vr(BF,2)}, {vr(BF+4*e,2)}")
        a(f"v_pk_add_f32 {vr(BF+2,2)}, {vr(BF+2,2)}, {vr(BF+4*e+2,2)}")
    a(f"v_cvt_pk_bf16_f32 v{CA+20}, v{BF}, v{BF+1}")
    a(f"v_cvt_pk_bf16_f32 v{CA+21}, v{BF+2}, v{BF+3}")
    a(f"v_min_u32 v{CA+20}, -2, v{CA+20}")
    a(f"v_min_u32 v{CA+21}, -2, v{CA+21}")
    a(f"buffer_store_dwordx2 {vr(CA+20,2)}, v21, s[16:19], s59 offen {SC}")
    if stamp:
        a(f"s_add_u32 s76, s{sT}, 1000")
        stamp_out(a, (72, 80, 75, 71, 82, 76, 73, 74), None)
    a("s_endpgm")
```

```python
from gen_common import *
WS_OB = 0x1400000; OBS = 40960; OB_BYTES = 256 * OBS + 8192
WS_XR = 0x3000000; XR_BYTES = 576 * 4096
WS_G = 0x3800000
LDS_ALL = 163840
SC = "sc0 sc1"
sT, sM, sCNT, sFAST = 96, 97, 98, 99
B_START, B_A, B_MID, B_KV, B_B1, B_FIN = 1, 2, 4, 8, 16, 32
LDS_SCR = 83968
SPIN = 1 << 20
import os
LX = int(os.environ.get('LX', 0))

def conv_masks():
    ms = []
    for par in range(2):
        pick = []
        if par: pick.append(31)
        for want in (4, 3, 2, 1, 0):
            for idx in range(32):
                r = 32 * par + idx
                if r < 63 and r % 7 == want and len(pick) < 8: pick.append(idx)
        ms.append(sum(1 << i for i in pick))
    return ms
CM = conv_masks()

def p2_ids(cv, ob, gi, t0, t1):
    return [f"s_lshr_b32 s{t0}, s{sT}, 3",
            f"s_bitcmp1_b32 s{sT}, 0",
            f"s_mov_b32 s{t1}, {CM[0]}",
            f"s_cselect_b32 s{t1}, {CM[1]}, s{t1}",
            f"s_lshr_b32 s{cv}, s{t1}, s{t0}",
            f"s_and_b32 s{cv}, s{cv}, 1",
            f"s_bfm_b32 s{gi}, s{t0}, 0",
            f"s_and_b32 s{gi}, s{gi}, s{t1}",
            f"s_bcnt1_i32_b32 s{gi}, s{gi}",
            f"s_sub_u32 s{t0}, s{t0}, s{gi}",
            f"s_and_b32 s{t1}, s{sT}, 7",
            f"s_mul_i32 s{ob}, s{t1}, 24",
            f"s_add_u32 s{ob}, s{ob}, s{t0}",
            f"s_lshl_b32 s{t1}, s{t1}, 3",
            f"s_add_u32 s{gi}, s{gi}, s{t1}",
            f"s_add_u32 s{t1}, s{gi}, 192",
            f"s_cmp_eq_u32 s{cv}, 1",
            f"s_cselect_b32 s{gi}, s{gi}, s{t0}",
            f"s_cselect_b32 s{ob}, s{t1}, s{ob}"]

def ws_srd(d, off, nbytes):
    return [f"s_add_u32 s{d}, s6, {off}", f"s_addc_u32 s{d+1}, s7, 0", f"s_and_b32 s{d+1}, s{d+1}, 0xffff",
            f"s_mov_b32 s{d+2}, {nbytes}", f"s_mov_b32 s{d+3}, 0x00020000"]

WS_FL = WS_OB + OB_BYTES; FL_BYTES = 65536
sPFO = 2
PUBM = 0xffffffff
def publish(val, vt, so=sPFO):
    return [f"v_mov_b32 v{vt}, {val}", f"v_lshlrev_b32 v{vt+1}, 2, v0", f"v_and_b32 v{vt+1}, 127, v{vt+1}", "s_mov_b64 exec, s[100:101]",
            f"buffer_store_dword v{vt}, v{vt+1}, s[92:95], s{so} offen {SC}", "s_mov_b64 exec, -1"]
def pubmask(sw):
    return [f"s_or_b32 s34, s{sw}, s{sM}", "s_cmp_eq_u32 s34, 0", "s_cselect_b32 s100, -1, 0", "s_mov_b32 s101, 0"]
def dbg_srd(d, p):
    return [f"s_mov_b32 s{d}, s{p}", f"s_and_b32 s{d+1}, s{p+1}, 0xffff", f"s_movk_i32 s{d+2}, 256", f"s_mov_b32 s{d+3}, 0x00020000"]
def kv_addr(d, t):
    return [f"s_lshr_b32 s34, s78, 3", f"v_mov_b32 v{t}, s34", f"v_and_b32 v{t+1}, 16, v0", f"v_cmp_eq_u32 vcc, 0, v{t+1}", f"v_cndmask_b32 v{t}, 8, v{t}, vcc",
            f"v_and_b32 v{t+1}, 15, v0", f"v_mad_u32_u24 v{t}, v{t+1}, 9, v{t}",
            f"v_lshrrev_b32 v{t+1}, 2, v{t}", f"v_and_b32 v{t}, 3, v{t}",
            f"v_mad_u32_u24 v{t}, v{t+1}, 7, v{t}", f"v_lshlrev_b32 v{d}, 7, v{t}"]

KT = {(0, 0): [0,1,2,3,4,6,8,5,7], (0, 1): [0,1,2,3,5,7,4,6,8], (1, 0): [8,7,6,5,4,2,0,3,1], (1, 1): [8,7,6,5,3,1,4,2,0]}
def ktab(par, tau): return sum(n << (4 * i) for i, n in enumerate(KT[(par, tau)]))
BBIAS = 2048
G2_STAGE = 40960
vB = [1, 2, 6, 3, 4, 5]; vA = 22

def pair_of(j, d_pi, d_spa, d_spb, d_mid, t0, t1):
    return [f"s_and_b32 s{t0}, s85, 3", f"s_lshl_b32 s{t0}, s{t0}, 1", f"s_lshr_b32 s{t1}, s{j}, 1", f"s_add_u32 s{d_spa}, s{t0}, s{t1}",
            f"s_lshr_b32 s{t0}, s85, 2", f"s_lshl_b32 s{t0}, s{t0}, 1", f"s_and_b32 s{t1}, s{j}, 1", f"s_add_u32 s{t0}, s{t0}, s{t1}",
            f"s_lshl_b32 s{t1}, s32, 2", f"s_add_u32 s{t1}, s{t1}, s{t0}",
            f"s_add_u32 s{t0}, s{t1}, s32",
            f"s_cmp_eq_u32 s{d_spa}, 7", f"s_cselect_b32 s{d_mid}, 1, 0", f"s_cselect_b32 s{d_spa}, s{t1}, s{d_spa}", f"s_cselect_b32 s{t0}, 4, s{t0}",
            f"s_mul_i32 s{d_pi}, s{d_spa}, 9", f"s_add_u32 s{d_pi}, s{d_pi}, s{t0}",
            f"s_cmp_eq_u32 s{d_spa}, 6", f"s_addc_u32 s{d_pi}, s{d_pi}, 0",
            f"s_mov_b32 s{d_spb}, s{d_spa}",
            f"s_cmp_eq_u32 s{d_spa}, 7", f"s_cselect_b32 s{d_pi}, 54, s{d_pi}", f"s_cselect_b32 s{d_spa}, 5, s{d_spa}", f"s_cselect_b32 s{d_spb}, 6, s{d_spb}"]

def g2_scal():
    o = p2_ids(76, 77, 78, 34, 35)
    o += [f"s_and_b32 s32, s{sT}, 1", f"s_bfe_u32 s79, s{sT}, 0x20001",
          "s_mul_i32 s85, s78, 43", "s_lshr_b32 s85, s85, 7", "s_and_b32 s85, s85, 7",
          "s_mul_i32 s34, s85, 3", "s_sub_u32 s86, s78, s34", "s_min_u32 s86, s86, 2",
          "s_and_b32 s84, s22, 3"]
    if LX == 1:
        o += ["s_lshl_b32 s34, s79, 1", "s_and_b32 s79, s85, 3", "s_lshr_b32 s85, s85, 2", "s_add_u32 s85, s85, s34"]
    if LX == 2:
        o += ["s_and_b32 s34, s79, 1", "s_lshl_b32 s34, s34, 2", "s_and_b32 s79, s79, 2", "s_and_b32 s35, s85, 1", "s_add_u32 s79, s79, s35",
              "s_lshr_b32 s85, s85, 1", "s_add_u32 s85, s85, s34"]
    o += pair_of(84, 29, 87, 88, 89, 34, 35)
    o += ["s_lshl_b32 s29, s29, 12", f"s_mul_i32 s34, s79, {18*262144}", "s_add_u32 s29, s29, s34",
          "s_and_b32 s34, s79, 1", "s_lshl_b32 s34, s34, 11", "s_add_u32 s60, s29, s34", "s_sub_u32 s61, s29, s34",
          f"s_mul_i32 s62, s79, {18*73728}", f"s_mul_i32 s34, s84, {16*1152}", "s_add_u32 s62, s62, s34",
          "s_mul_i32 s34, s86, 384", "s_add_u32 s62, s62, s34",
          "s_lshr_b32 s34, s79, 1", "s_xor_b32 s34, s34, s84", "s_lshl_b32 s40, s34, 12",
          "s_mul_i32 s41, s84, 6144", "s_add_u32 s41, s41, 16384",
          f"s_sub_u32 s12, s24, {BBIAS}", "s_subb_u32 s13, s25, 0", "s_and_b32 s13, s13, 0xffff", f"s_mov_b32 s14, {4608*1152 + BBIAS}", "s_mov_b32 s15, 0x00020000"]
    for lo in (1, 0):
        f = (lambda v: v & 0xffffffff) if lo else (lambda v: v >> 32)
        d = 54 if lo else 55
        o += ["s_cmp_lt_u32 s85, 4", f"s_mov_b32 s34, {f(ktab(0,1))}", f"s_cselect_b32 s34, {f(ktab(0,0))}, s34",
              f"s_mov_b32 s35, {f(ktab(1,1))}", f"s_cselect_b32 s35, {f(ktab(1,0))}, s35",
              "s_cmp_eq_u32 s32, 0", f"s_cselect_b32 s{d}, s34, s35"]
    return o

def b_offs(lane, t, dst):
    o = []
    for i in range(3):
        o += [f"v_add_u32 v{t}, {64*i}, v{lane}",
              f"v_mul_u32_u24 v{t+1}, 2731, v{t}", f"v_lshrrev_b32 v{t+1}, 16, v{t+1}",
              f"v_mul_u32_u24 v{t+2}, 24, v{t+1}", f"v_sub_u32 v{t}, v{t}, v{t+2}",
              f"v_and_b32 v{t+2}, 2, v{t+1}", f"v_xor_b32 v{t}, v{t}, v{t+2}",
              f"v_mul_u32_u24 v{t+1}, 1152, v{t+1}",
              f"v_add_u32 v{t+1}, {BBIAS - 1024*i}, v{t+1}",
              f"v_lshl_add_u32 v{t+2}, v{t}, 4, v{t+1}",
              f"v_xor_b32 v{t}, 4, v{t}",
              f"v_lshl_add_u32 v{t}, v{t}, 4, v{t+1}",
              f"v_add_u32 v{t}, {8*1152}, v{t}",
              f"v_lshl_or_b32 v{dst[i]}, v{t}, 16, v{t+2}"]
    return o
def b_unpack():
    o = [f"v_lshrrev_b32 v{vB[3+i]}, 16, v{vB[i]}" for i in range(3)]
    o += [f"v_and_b32 v{vB[i]}, 0xffff, v{vB[i]}" for i in range(3)]
    o += [f"v_and_b32 v{vA}, 63, v0", f"v_lshlrev_b32 v{vA}, 4, v{vA}"]
    return o

def st_off(st):
    i = st >> 1
    o = [f"s_bfe_u32 s3, s{54 + (i >> 3)}, {hex(0x40000 | (4 * (i & 7)))}", "s_lshl_b32 s3, s3, 1"]
    if st & 1: o.append("s_add_u32 s3, s3, 1")
    return o + st_off2()
def st_off2():
    return ["s_lshl_b32 s21, s3, 18", "s_add_u32 s20, s21, s60", "s_add_u32 s21, s21, s61", f"s_mul_i32 s3, s3, 73728", "s_add_u32 s3, s3, s62"]
def dmaA(buf):
    g = [[f"s_add_u32 m0, s40, {buf}", "s_nop 0", f"buffer_load_dwordx4 v{vA}, s[16:19], s20 offen {SC} lds"]]
    for j in range(1, 4): g.append([f"buffer_load_dwordx4 v{vA}, s[16:19], s{20 if j < 2 else 21} offen offset:{1024*j} {SC} lds"])
    return g
def dmaB(buf):
    g = []
    for hh in range(2):
        for j in range(3):
            o = []
            if j == 0: o = [f"s_add_u32 m0, s41, {buf}", "s_nop 0"] if hh == 0 else ["s_add_u32 m0, m0, 3072", "s_nop 0"]
            off = f" offset:{1024*j}" if j else ""
            o.append(f"buffer_load_dwordx4 v{vB[hh*3+j]}, s[12:15], s3 offen{off} lds")
            g.append(o)
    return g

def poll_addr(d, t):
    return [f"v_and_b32 v{t}, 15, v0", f"v_lshlrev_b32 v{t}, 2, v{t}",
            f"v_lshrrev_b64 v[{t+2}:{t+3}], v{t}, s[54:55]", f"v_and_b32 v{t}, 15, v{t+2}",
            f"v_mov_b32 v{t+1}, s87", f"v_mov_b32 v{t+2}, s88", f"v_and_b32 v{t+3}, 16, v0", f"v_cmp_eq_u32 vcc, 0, v{t+3}",
            f"v_cndmask_b32 v{t+1}, v{t+2}, v{t+1}, vcc",
            f"v_mad_u32_u24 v{t+1}, v{t}, 7, v{t+1}", f"v_lshrrev_b32 v{t+3}, 5, v{t+1}",
            f"s_mul_i32 s34, s79, {63*128}", f"v_lshl_add_u32 v{d}, v{t+1}, 7, s34"]
def poll_need(d, t):
    return ["s_lshr_b32 s34, s85, 2", f"v_and_b32 v{t}, 1, v{t}", f"v_cmp_eq_u32 vcc, s34, v{t}",
            f"v_mov_b32 v{t+2}, {B_FIN}", f"v_cndmask_b32 v{d}, v{t+2}, {B_B1}, vcc",
            f"v_cmp_eq_u32 vcc, s32, v{t+3}", f"v_cndmask_b32 v{d}, v{d}, {B_A}, vcc",
            "s_cmp_eq_u32 s89, 1", "s_cselect_b64 vcc, -1, 0", f"v_cndmask_b32 v{d}, v{d}, {B_MID}, vcc"]
```

```python
import sys
from gen_fz_common import *
from gen_fz1 import phase1
from gen_fz2 import *
opts = sys.argv[2:]
kw = {}
for o in opts:
    if "=" in o:
        k, v = o.split("="); kw[k] = int(v)
split = kw.get("split", 0)
stamp = 2 if "stamp2" in opts else "stamp" in opts
hdr = open('gated_mix__ssm_conv_h3__glu_gated_swiglu__prompt.s.ref').read().split('\n')
hdr = [l for l in hdr if l.startswith(';') and '@launch' not in l]
a = Asm()
for l in hdr: a.raw(l)
a.raw(f"; @launch kernel=fused_kernel grid=(256,1,1) block=(512,1,1) lds={LDS_ALL}")
if split: a.raw(f"; @launch kernel=p2_kernel grid=(256,1,1) block=(512,1,1) lds={LDS_ALL}")
a.raw('.amdgcn_target "amdgcn-amd-amdhsa--gfx950"')
kw1 = {k[2:]: v for k, v in kw.items() if k.startswith("1_")}
kw2 = {k[2:]: v for k, v in kw.items() if k.startswith("2_")}
def entry(name, st):
    kernel_header(a, name)
    a("s_cmp_ge_u32 s2, 256")
    a(f"s_cbranch_scc1 {name}_done")
    a(f"s_mov_b32 s{sT}, s2")
    a(f"s_mov_b32 s{sM}, 0")
    if st:
        a("s_memtime s[70:71]")
        a("s_memrealtime s[72:73]")
        a("s_waitcnt lgkmcnt(0)")
        for k in (71, 73, 74, 75): a(f"s_mov_b32 s{k}, 0")
name = "fused_kernel"
if split:
    entry(name, False)
    def epi(left):
        for c, ins, isvm in left:
            for x in ins: a(x)
    def tX(tag, left, st):
        epi(left); a("s_barrier"); a("s_endpgm")
    def tY(tag, left, st):
        epi(left); a("s_endpgm")
    phase1(a, name, tX, tY, stamp=False, early=0, **kw1)
    gate6(a, name)
    a.label(f"{name}_done")
    a("s_endpgm")
    kernel_desc(a, name, 256, 102)
    name = "p2_kernel"
    entry(name, stamp)
    phase2(a, name, poll=0, stamp=stamp, fused=0, **kw2)
    a.label(f"{name}_done")
    a("s_endpgm")
    kernel_desc(a, name, 256, 102)
else:
    entry(name, stamp)
    tX, tY = tails(a, name, stamp=stamp)
    phase1(a, name, tX, tY, stamp=stamp, **kw1)
    gate6(a, name)
    a(f"s_branch {name}_p2late")
    phase2(a, name, stamp=stamp, **kw2)
    a.label(f"{name}_done")
    a("s_endpgm")
    kernel_desc(a, name, 256, 102)
open(sys.argv[1], "w").write(a.text())
```

```python
from gen_common import *
from gen_conv5 import prep7_scal, prep7_vec, prep6_load, prep6_compute, gate

G1_LDS = 155648
WBUF = 32768
XA0 = 98304
XAS = 14336
SLOT = 18432
RSLOT = [0, 32768, 65536, 98304, 116736, 135168]
P = 7
RING = 6
vW0, vW1, vX0, vX1, vX2, vRW, vRX0, vRX1, vST = 1, 2, 3, 4, 5, 6, 7, 8, 9
TMP = 10
vRW2 = 22
vPF = 23
FR = 24
ACC = 48
WR = 112

def slot_addr(q): return RSLOT[(q - 9) % 6]

def gemm1n(a, name="gemm1_kernel", stamp=False, do_epi=True, AB=1, prio=1, pf=0, stmod="sc0 sc1", MV=144, rot=1, il=1, st4=1, w2pf=1, do_prep=1, PF0=9, PFS=2, PL0=-5, BGS=2, BGE=2, kvpf=1, xm=0, hm=1, ph=0, R=3, nm=1):
    stmod = ['', 'sc0 sc1', 'nt', 'sc1', 'sc0 sc1 nt', 'sc1 nt', 'sc0', 'sc0 nt'][hm]
    kernel_header(a, name)
    a("s_cmp_ge_u32 s2, 256")
    a(f"s_cbranch_scc1 {name}_done")
    a("s_and_b32 s23, s2, 7")
    a("s_lshr_b32 s29, s2, 3")
    if nm:
        a("s_lshr_b32 s49, s23, 1")
        a("s_and_b32 s57, s23, 1")
        a("s_lshl_b32 s28, s57, 5")
        a("s_add_u32 s28, s28, s29")
        a("s_cmp_eq_u32 s28, 63")
        a(f"s_cbranch_scc1 {name}_side")
        a("s_mul_i32 s30, s49, 63")
        a("s_add_u32 s28, s28, s30")
    else:
        a("s_lshl_b32 s28, s23, 5")
        a("s_add_u32 s28, s28, s29")
        a("s_cmp_ge_u32 s28, 252")
        a(f"s_cbranch_scc1 {name}_side")
    if stamp:
        a("s_memtime s[70:71]")
        a("s_memrealtime s[72:73]")
        a("s_mov_b32 s20, 0"); a("s_mov_b32 s48, 0"); a("s_mov_b32 s59, 0")
    a(f"s_load_dwordx2 s[4:5], s[0:1], {KA['q']}")
    a(f"s_load_dwordx4 s[24:27], s[0:1], {KA['w1']}")
    a(f"s_load_dwordx2 s[6:7], s[0:1], {KA['ws']}")
    a(f"s_load_dwordx2 s[76:77], s[0:1], {KA['k']}")
    a(f"s_load_dwordx2 s[84:85], s[0:1], {KA['v']}")
    a(f"s_load_dwordx2 s[88:89], s[0:1], {KA['shift_k']}")
    a("v_lshrrev_b32 v10, 6, v0")
    a("v_and_b32 v11, 63, v0")
    a("v_readfirstlane_b32 s22, v10")
    a("s_mul_i32 s29, s28, 9363")
    a("s_lshr_b32 s30, s29, 16")
    a("s_mul_i32 s29, s30, 7")
    a("s_sub_u32 s31, s28, s29")
    a("s_mul_i32 s32, s31, 18")
    a("s_cmp_eq_u32 s31, 6")
    a("s_cselect_b32 s29, 1, 0")
    a("s_add_u32 s32, s32, s29")
    a("s_lshl_b32 s34, s31, 2")
    a("s_lshl_b32 s35, s30, 1")
    a("s_add_u32 s34, s34, s35")
    a("s_mul_i32 s35, s34, 7282")
    a("s_lshr_b32 s35, s35, 16")
    a("s_mul_i32 s35, s35, 9")
    a("s_sub_u32 s49, s34, s35")
    if not rot: a("s_mov_b32 s49, 0")
    if R in (2, 3, 4, 5):
        a("s_add_u32 s34, s30, s31")
        a(f"s_mul_i32 s35, s34, {65536 // R + 1}")
        a("s_lshr_b32 s35, s35, 16")
        a(f"s_mul_i32 s35, s35, {R}")
        a("s_sub_u32 s34, s34, s35")
        a(f"s_mul_i32 s49, s34, {dict([(2,9),(3,6),(4,5),(5,4)])[R]}")
        a("s_lshr_b32 s49, s49, 1")
    for s in range(9):
        a(f"s_add_u32 s34, s49, {s}")
        a("s_sub_u32 s35, s34, 9")
        a("s_cmp_ge_u32 s34, 9")
        a("s_cselect_b32 s34, s35, s34")
        a(f"s_mul_i32 s{50+s}, s34, {64*9216}")
        a(f"s_lshl_b32 s{92+s}, s34, 7")
    a("v_lshrrev_b32 v12, 4, v11")
    a("v_and_b32 v13, 15, v11")
    a("s_and_b32 s33, s22, 3")
    a("s_lshl_b32 s33, s33, 4")
    a("v_add_u32 v14, s33, v12")
    a("v_mul_u32_u24 v14, 9216, v14")
    a("s_lshl_b32 s33, s30, 8")
    a("v_add_u32 v14, s33, v14")
    a("v_lshlrev_b32 v15, 1, v12")
    a("v_xor_b32 v15, v15, v13")
    a(f"v_lshl_add_u32 v{vW0}, v15, 4, v14")
    a("v_xor_b32 v15, 8, v15")
    a("v_lshl_add_u32 v14, v15, 4, v14")
    a(f"v_add_u32 v{vW1}, {8*9216 - 2048}, v14")
    a("v_lshrrev_b32 v14, 3, v11")
    a("v_and_b32 v15, 7, v11")
    a("v_xor_b32 v15, v15, v12")
    a("v_mul_u32_u24 v14, 1152, v14")
    a(f"v_lshl_add_u32 v{vX0}, v15, 4, v14")
    a("v_xor_b32 v15, 4, v15")
    a("v_lshl_add_u32 v14, v15, 4, v14")
    a(f"v_add_u32 v{vX1}, {8*1152 - 1024}, v14")
    a("s_lshr_b32 s33, s22, 2")
    a("s_and_b32 s34, s22, 3")
    a("s_lshl_b32 s34, s34, 12")
    a("s_lshl_b32 s40, s33, 14")
    a("s_add_u32 s40, s40, s34")
    a("s_xor_b32 s60, s40, 16384")
    a("s_add_u32 s34, s32, s22")
    a(f"s_mul_i32 s41, s34, {SLOT}")
    a("s_xor_b32 s35, s22, 4")
    a("s_add_u32 s34, s32, s35")
    a(f"s_mul_i32 s61, s34, {SLOT}")
    a("s_lshl_b32 s42, s22, 11")
    a("s_lshl_b32 s62, s35, 11")
    a("s_cmp_eq_u32 s22, 7")
    a("s_cselect_b64 s[64:65], 0, -1")
    a("s_cmp_eq_u32 s35, 7")
    a("s_cselect_b64 s[66:67], 0, -1")
    if ph == 2: a("s_memtime s[80:81]")
    a("s_waitcnt lgkmcnt(0)")
    if ph == 2:
        a("s_sub_u32 s83, s80, s70")
        a("s_memtime s[80:81]"); a("s_waitcnt lgkmcnt(0)"); a("s_sub_u32 s48, s80, s70")
    srd(a, 8, 4, 5, 2048 * 1152)
    a("s_cmp_eq_u32 s33, 0")
    a("s_cselect_b32 s12, s24, s26")
    a("s_cselect_b32 s13, s25, s27")
    a("s_cselect_b32 s36, s26, s24")
    a("s_cselect_b32 s37, s27, s25")
    a("s_and_b32 s13, s13, 0xffff")
    a("s_and_b32 s37, s37, 0xffff")
    a(f"s_mov_b32 s14, {576*9216}")
    a("s_mov_b32 s15, 0x00020000")
    a(f"s_mov_b32 s38, {576*9216}")
    a("s_mov_b32 s39, 0x00020000")
    a(f"s_load_dwordx2 s[24:25], s[0:1], {KA['w2']}")
    a(f"s_load_dwordx2 s[26:27], s[0:1], {KA['ssm_k']}")

    def stageA_dma(s, own=True):
        sr = "s[12:15]" if own else "s[36:39]"
        mW, sX, mX, ex = ("s40", "s41", "s42", "s[64:65]") if own else ("s60", "s61", "s62", "s[66:67]")
        g = []
        g.append([f"s_add_u32 m0, {mW}, {(s % 3) * WBUF}", f"s_add_u32 s21, s{50+s}, {4*9216 - 1024}",
                  f"buffer_load_dwordx4 v{vW0}, {sr}, s{50+s} offen lds"])
        g.append([f"buffer_load_dwordx4 v{vW0}, {sr}, s21 offen offset:1024 lds"])
        g.append([f"buffer_load_dwordx4 v{vW1}, {sr}, s{50+s} offen offset:2048 lds"])
        g.append([f"buffer_load_dwordx4 v{vW1}, {sr}, s21 offen offset:3072 lds"])
        g.append([f"s_add_u32 m0, {mX}, {XA0 + (s % 4) * XAS}", f"s_add_u32 s45, {sX}, s{92+s}", f"s_mov_b64 exec, {ex}",
                  f"buffer_load_dwordx4 v{vX0}, s[8:11], s45 offen lds", "s_mov_b64 exec, -1"])
        g.append([f"s_mov_b64 exec, {ex}", f"buffer_load_dwordx4 v{vX1}, s[8:11], s45 offen offset:1024 lds", "s_mov_b64 exec, -1"])
        return g
    def subB_dma(q):
        sa = slot_addr(q); j = q - 2
        g = []
        g.append([f"s_add_u32 m0, s42, {sa}", f"s_add_u32 s45, s44, {j*SLOT}", f"buffer_load_dwordx4 v{vX0}, s[8:11], s45 offen lds"])
        g.append([f"buffer_load_dwordx4 v{vX1}, s[8:11], s45 offen offset:1024 lds"])
        g.append([f"s_add_u32 m0, s43, {sa}", f"s_add_u32 s45, s68, {j*SLOT}", "s_mov_b64 exec, 0xffff", f"buffer_load_dwordx4 v{vX2}, s[8:11], s45 offen lds", "s_mov_b64 exec, -1"])
        return g
    def emit(groups):
        for g in groups:
            for x in g: a(x)

    def rest_setup():
        a("v_bfe_u32 v14, v11, 3, 1")
        a("s_lshl_b32 s34, s22, 1")
        a("v_add_u32 v14, s34, v14")
        a("v_mul_u32_u24 v14, 1152, v14")
        a("v_and_b32 v15, 7, v11")
        a("v_xor_b32 v15, s22, v15")
        a("v_lshl_add_u32 v14, v15, 4, v14")
        a("s_add_u32 s34, s49, s22")
        a("s_sub_u32 s35, s34, 9")
        a("s_cmp_ge_u32 s34, 9")
        a("s_cselect_b32 s34, s35, s34")
        a("s_lshl_b32 s63, s34, 7")
        a(f"v_mov_b32 v{vX2}, v14")
        a("v_lshrrev_b32 v14, 2, v13")
        a("v_and_b32 v15, 1, v12")
        a("v_lshl_add_u32 v15, v15, 2, v14")
        a("v_xor_b32 v15, s22, v15")
        a("v_lshl_add_u32 v14, v12, 3, v14")
        a("v_lshlrev_b32 v14, 8, v14")
        a("v_lshl_add_u32 v14, v15, 5, v14")
        a("v_and_b32 v15, 3, v11")
        a(f"v_lshl_add_u32 v{vRW}, v15, 3, v14")
        a(f"v_add_u32 v{vRW2}, 0x10000, v{vRW}")
        a("v_lshrrev_b32 v14, 1, v13")
        a("v_xor_b32 v14, v14, v12")
        a("v_lshlrev_b32 v15, 7, v13")
        a("v_lshl_add_u32 v14, v14, 4, v15")
        a(f"v_add_u32 v{vRX0}, {XA0}, v14")
        a(f"v_xor_b32 v{vRX1}, 64, v{vRX0}")
        a("s_lshl_b32 s34, s30, 3")
        a("s_add_u32 s34, s34, s22")
        a("s_lshr_b32 s35, s34, 2")
        a("s_lshl_b32 s35, s35, 18")
        a("s_and_b32 s34, s34, 3")
        a("s_lshl_b32 s34, s34, 9")
        a("s_add_u32 s34, s34, s35")
        a("v_lshlrev_b32 v14, 5, v13")
        a("v_lshl_add_u32 v14, v12, 3, v14")
        a(f"v_add_u32 v{vST}, s34, v14")
        a("v_lshlrev_b32 v14, 5, v13")
        a("v_lshrrev_b32 v15, 1, v12")
        a("v_lshl_add_u32 v14, v15, 4, v14")
        a("v_and_b32 v15, 1, v12")
        a("v_lshl_add_u32 v14, v15, 11, v14")
        a(f"v_add_u32 v{vPF}, s34, v14")
        a("s_lshl_b32 s43, s22, 8")
        a("s_add_u32 s43, s43, 16384")
        a(f"s_mul_i32 s44, s32, {SLOT}")
        a("s_add_u32 s68, s44, s100")
        a("s_add_u32 s44, s44, s63")
        a("s_mov_b32 s46, 0xbfb8aa3b")
        a("s_lshl_b32 s47, s32, 11")
        srd(a, 16, 6, 7, H_BYTES)

    def prefetch():
        a("s_mul_i32 s50, s30, 7")
        a("s_lshl_b32 s51, s23, 5")
        a("s_max_u32 s52, s50, s51")
        a("s_add_u32 s50, s50, 7")
        a("s_add_u32 s51, s51, 32")
        a("s_min_u32 s50, s50, s51")
        a("s_sub_u32 s50, s50, s52")
        a("s_sub_u32 s52, s28, s52")
        a("v_subrev_u32 v14, 256, v0")
        a("v_mul_lo_u32 v15, v14, s50")
        a("v_add_u32 v15, s52, v15")
        a("s_lshl_b32 s51, s50, 8")
        a("s_lshl_b32 s53, s30, 8")
        a(f"s_add_u32 s53, s53, {192*9216}")
        n = 0
        for it in range(3):
            a("v_cmp_gt_u32 vcc, 768, v15")
            a("v_lshrrev_b32 v16, 1, v15")
            a("v_mul_u32_u24 v16, 9216, v16")
            a("v_and_b32 v17, 1, v15")
            a("v_lshl_add_u32 v16, v17, 7, v16")
            a("s_and_b64 exec, exec, vcc")
            a(f"buffer_load_dword v{vPF}, v16, s[12:15], s53 offen")
            a(f"buffer_load_dword v{vPF}, v16, s[36:39], s53 offen")
            n += 2
            if it < 2: a("v_add_u32 v15, s51, v15")
        a("s_mov_b64 exec, -1")
        a("s_and_b32 s50, s28, 31")
        a(f"s_mul_i32 s50, s50, {576*128}")
        a("v_lshlrev_b32 v16, 7, v14")
        a(f"buffer_load_dword v{vPF}, v16, s[8:11], s50 offen")
        a(f"s_add_u32 s50, s50, {256*128}")
        a(f"buffer_load_dword v{vPF}, v16, s[8:11], s50 offen")
        a(f"s_add_u32 s50, s50, {256*128}")
        a("v_cmp_gt_u32 vcc, 64, v14")
        a("s_and_b64 exec, exec, vcc")
        a(f"buffer_load_dword v{vPF}, v16, s[8:11], s50 offen")
        a("s_mov_b64 exec, -1")
        return n + 3

    a("s_cmp_eq_u32 s33, 0")
    a(f"s_cbranch_scc0 {name}_proY")
    def with_prep(tag, wait):
        if ph == 2:
            a("s_memtime s[80:81]"); a("s_waitcnt lgkmcnt(0)"); a("s_sub_u32 s59, s80, s70")
        rest_setup()
        a(wait)
        if ph == 2:
            a("s_memtime s[80:81]"); a("s_waitcnt lgkmcnt(0)"); a("s_mov_b32 s82, s80")
    emit(stageA_dma(0, True)); emit(stageA_dma(0, False))
    with_prep("x", "s_waitcnt vmcnt(0) lgkmcnt(0)")
    a("s_barrier")
    a(f"s_branch {name}_pro_end")
    a.label(f"{name}_proY")
    emit(stageA_dma(1, True)); emit(stageA_dma(1, False))
    with_prep("y", "s_waitcnt lgkmcnt(0)")
    a("s_barrier")
    emit(stageA_dma(2, True)); emit(stageA_dma(2, False))
    a.label(f"{name}_pro_end")
    a("s_cmp_ge_u32 s31, 5")
    a(f"s_cbranch_scc1 {name}_v19")

    def body(NSUB, prep=False):
        R = []; plidx = []; used_slots = set(); bq = []
        def pop_bg():
            if bq:
                for x in bq.pop(0): a(x)
                vm['n'] += 1; plidx.append(vm['n'])
        NPER = 9 + NSUB - P
        vm = dict(n=0)
        landed = {2: 0}
        lg = dict(n=0); lgidx = {}; waited = dict(lg=0)
        def wreg(mat, ks): return WR + (mat * 18 + ks) * 4
        def acc(sub, mat): return ACC + (sub % 8) * 8 + mat * 4
        def frags(p):
            if p < 9: return [(tt, sub, 2 * p + tt) for tt in range(2) for sub in range(P)]
            return [(ks & 1, p - 2, ks) for ks in range(18)]
        cur_base = dict(v=XA0)
        ring = dict(n=0)
        rslot = {}
        def emit_read(p, i):
            tt, sub, ks = frags(p)[i]
            if p < 9:
                off = XA0 + (p % 4) * XAS + sub * 2048
            else:
                sa = slot_addr(p)
                if i == 0 and not (sa >= cur_base['v'] and sa + SLOT - cur_base['v'] <= 65536):
                    d = sa - cur_base['v']
                    a(f"v_add_u32 v{vRX0}, {d & 0xffffffff}, v{vRX0}")
                    a(f"v_add_u32 v{vRX1}, {d & 0xffffffff}, v{vRX1}")
                    cur_base['v'] = sa
                off = sa + (ks >> 1) * 2048
            off -= cur_base['v']
            assert 0 <= off < 65536
            r = FR + (ring['n'] % RING) * 4; ring['n'] += 1
            rslot[(p, i)] = r
            a(f"ds_read_b128 {vr(r, 4)}, v{vRX1 if tt else vRX0} offset:{off}")
            lg['n'] += 1; lgidx[("X", p, i)] = lg['n']
        def emit_wread(s, tt, mat):
            b = s % 3
            base = f"v{vRW2}" if b == 2 else f"v{vRW}"
            off = ((b & 1) * WBUF if b < 2 else 0) + mat * 16384 + tt * 8192
            r = wreg(mat, 2 * s + tt)
            a(f"ds_read_b64_tr_b16 {vr(r,2)}, {base} offset:{off}")
            a(f"ds_read_b64_tr_b16 {vr(r+2,2)}, {base} offset:{off + 1024}")
            lg['n'] += 2; lgidx[("W", 2 * s + tt, mat)] = lg['n']
        def wait_lg(tag):
            need = lgidx[tag]
            if need <= waited['lg']: return
            n = lg['n'] - need
            a(f"s_waitcnt lgkmcnt({min(n, 15)})")
            waited['lg'] = need if n <= 15 else lg['n'] - 15
        def preload_list(p):
            o = []
            if p < 9:
                o += [lambda: emit_wread(p, 0, 0), lambda: emit_read(p, 0), lambda: emit_wread(p, 0, 1)]
                for i in range(1, RING): o.append(lambda i=i: emit_read(p, i))
                o += [lambda: emit_wread(p, 1, 0), lambda: emit_wread(p, 1, 1)]
            else:
                for i in range(RING): o.append(lambda i=i: emit_read(p, i))
            return o
        def preload(p):
            for f in preload_list(p): f()
        epq = []
        def add_epi(sub, avail):
            G = acc(sub, 0); U = acc(sub, 1); T = TMP; O = TMP + 8 + (sub & 1) * 2
            ops = []
            for r in range(4): ops.append((4, [f"v_mul_f32 v{T+r}, s46, v{G+r}"]))
            for r in range(4): ops.append((8, [f"v_exp_f32 v{T+r}, v{T+r}"]))
            for r in range(4): ops.append((4, [f"v_mul_f32 v{T+4+r}, v{G+r}, v{U+r}"]))
            for r in range(4): ops.append((4, [f"v_add_f32 v{T+r}, 1.0, v{T+r}"]))
            for r in range(4): ops.append((8, [f"v_rcp_f32 v{T+r}, v{T+r}"]))
            for r in range(4): ops.append((4, [f"v_mul_f32 v{T+4+r}, v{T+4+r}, v{T+r}"]))
            ops.append((4, [f"v_cvt_pk_bf16_f32 v{O}, v{T+4}, v{T+5}"]))
            ops.append((4, [f"v_cvt_pk_bf16_f32 v{O+1}, v{T+6}, v{T+7}"]))
            if st4 and (sub & 1):
                O0 = TMP + 8
                ops.append((8, ["s_nop 0", f"v_permlane16_swap_b32 v{O0}, v{O0+2}", f"v_permlane16_swap_b32 v{O0+1}, v{O0+3}"]))
                st = ["s_nop 0", f"buffer_store_dwordx4 {vr(O0,4)}, v{vPF}, s[16:19], s47 offen {stmod}", "s_add_u32 s47, s47, 4096"]
                ops.append((0, st, "vm"))
            elif st4 and sub < NSUB - 1:
                ops.append((0, [], "novm"))
            else:
                st = [f"buffer_store_dwordx2 {vr(O,2)}, v{vST}, s[16:19], s47 offen offset:{(sub&1)*2048} {stmod}"]
                if sub & 1: st.append("s_add_u32 s47, s47, 4096")
                ops.append((0, st, "vm"))
            for o in ops: epq.append((o[0], o[1], avail, len(o) > 2, sub))
        if do_epi:
            for sub in range(NSUB): add_epi(sub, max(8, sub + 2))
        done_sub = set()
        sched = {p: [] for p in range(NPER)}
        for p in range(NPER):
            if p + 3 <= 11: sched[p] = [p + 3]
        nq = 12
        for p in range(9, NPER):
            k = 0
            while nq < NPER and nq - 6 <= p - 1 and k < 2:
                sched[p].append(nq); nq += 1; k += 1
        preload(0)
        a(f"s_cmp_eq_u32 s33, 0")
        a(f"s_cbranch_scc1 {name}_skipY{NSUB}")
        a("s_waitcnt vmcnt(12) lgkmcnt(0)")
        a("s_barrier")
        a.label(f"{name}_skipY{NSUB}")
        for p in range(NPER):
            fr = frags(p); nf = len(fr); mcred = 0.0
            if ph and p < 18:
                a("s_memtime s[80:81]"); a("s_waitcnt lgkmcnt(0)"); a(f"s_sub_u32 s{50+p if p < 9 else 92+p-9}, s80, s70")
            if stamp and p == NPER - 1 and ph != 2:
                a("s_memtime s[80:81]"); a("s_waitcnt lgkmcnt(0)"); a("s_sub_u32 s48, s80, s70")
            if prio: a("s_setprio 1")
            for i in range(nf):
                tt, sub, ks = fr[i]
                if ks == 0 and do_epi and sub >= 8: assert (sub - 8) in done_sub
                for mat in range(2):
                    wait_lg(("X", p, i))
                    if p < 9: wait_lg(("W", ks, mat))
                    c = "0" if ks == 0 else vr(acc(sub, mat), 4)
                    a(f"v_mfma_f32_16x16x32_bf16 {vr(acc(sub,mat),4)}, {vr(wreg(mat,ks),4)}, {vr(rslot[(p,i)],4)}, {c}")
                    if mat == 0 and p >= 9:
                        mcred = min(mcred + MV / 18.0, 12); u = 0
                        while epq and epq[0][2] <= p - 1 and not epq[0][3] and epq[0][0] <= mcred and u + epq[0][0] <= 8:
                            c_, ins, av, isvm, sb = epq.pop(0)
                            for x in ins: a(x)
                            mcred -= c_; u += c_
                if i + RING < nf: emit_read(p, i + RING)
                if i % BGS == BGS - 1 and i < nf - 1 - AB: pop_bg()
                if i == nf - 1 - AB:
                    a("s_waitcnt lgkmcnt(0)"); waited['lg'] = lg['n']
                    if prio: a("s_setprio 3")
                    if p == NPER - 1:
                        a(f"s_cmp_eq_u32 s33, 0")
                        a(f"s_cbranch_scc0 {name}_skipA{NSUB}")
                        a("s_barrier")
                        a.label(f"{name}_skipA{NSUB}")
                    else:
                        a("s_barrier")
            if prio: a("s_setprio 0")
            if stamp and p == 8 and ph != 2:
                a("s_memtime s[82:83]"); a("s_memrealtime s[80:81]"); a("s_waitcnt lgkmcnt(0)"); a("s_sub_u32 s59, s80, s72")
            if p == NPER - 1: break
            pl = preload_list(p + 1)
            if not il:
                for f in pl: f()
                pl = []
            dq = []
            for q in sched[p]:
                gs = stageA_dma(q) if q < 9 else subB_dma(q)
                for k, gg in enumerate(gs): dq.append((gg, q if k == len(gs) - 1 else None))
            if p == 1:
                pre = []
                if prep: pre += prep7_scal()
                pre += ["s_lshl_b32 s62, s28, 1", "s_add_u32 s62, s62, s33", "s_lshl_b32 s62, s62, 1", "s_and_b32 s60, s22, 1", "s_add_u32 s62, s62, s60",
                       "s_sub_u32 s60, s62, 648", f"s_mov_b32 s38, {576*4096}",
                       "s_cmp_lt_u32 s62, 648",
                       "s_cselect_b32 s62, s62, s60", "s_cselect_b32 s36, s24, s26", "s_cselect_b32 s37, s25, s27",
                       f"s_cselect_b32 s38, {4608*1152}, s38", "s_and_b32 s37, s37, 0xffff", "s_lshl_b32 s62, s62, 13",
                       "s_and_b32 s60, s22, 3"]
                if prep:
                    pre += ["s_cmp_eq_u32 s60, 0", "s_cselect_b32 s36, s76, s36", "s_cselect_b32 s37, s77, s37", "s_cselect_b32 s38, s78, s38",
                            "s_cmp_eq_u32 s60, 1", "s_cselect_b32 s36, s84, s36", "s_cselect_b32 s37, s85, s37", "s_cselect_b32 s38, s86, s38",
                            "s_lshl_b32 s61, s30, 2", "s_add_u32 s61, s61, s31", "s_lshl_b32 s61, s61, 1", "s_add_u32 s61, s61, s33", "s_lshl_b32 s61, s61, 2"]
                dq[0] = (pre + dq[0][0], dq[0][1])
            if p == 6:
                pre = ["v_and_b32 v10, 63, v0", "v_lshlrev_b32 v1, 7, v10", "v_add_u32 v1, s62, v1"]
                if prep:
                    pre += ["s_cmp_lt_u32 s60, 2", "s_cselect_b64 exec, -1, 0",
                            "v_lshrrev_b32 v11, 4, v10", "v_add_u32 v11, s61, v11", "v_mul_u32_u24 v12, 7282, v11", "v_lshrrev_b32 v12, 16, v12",
                            "v_mul_u32_u24 v13, 9, v12", "v_sub_u32 v11, v11, v13", "v_and_b32 v10, 15, v10", "v_lshl_add_u32 v10, v12, 4, v10",
                            "v_mul_u32_u24 v10, 1152, v10", "v_lshl_add_u32 v1, v11, 7, v10", "s_mov_b64 exec, -1"]
                dq[0] = (pre + dq[0][0], dq[0][1])
            if p >= PF0 and (p - PF0) % PFS == 0 and (p - PF0) // PFS < 4:
                k = (p - PF0) // PFS
                if (k >= 2 and w2pf) or (k < 2 and prep and kvpf):
                    dq.append(([f"s_cmp_eq_u32 s60, {k}", "s_cselect_b64 exec, -1, 0", f"buffer_load_dword v{9 if prep else 2}, v1, s[36:39], 0 offen", "s_mov_b64 exec, -1"], None))
            def pop_dma():
                gg, q = dq.pop(0)
                for x in gg: a(x)
                vm['n'] += 1
                if q is not None: landed[q] = vm['n']
            if p >= 8 and epq:
                rem = sum(o[0] for o in epq if o[4] < NSUB - 1)
                budget = rem / (NPER - 1 - p) - MV * 0.9
                used = 0
                step = budget / (len(dq) + 0.5) if dq else 1e9
                nxt_d = 0; nxt_p = 8
                while epq and epq[0][2] <= p and (used + epq[0][0] <= budget + 3 or epq[0][0] == 0):
                    if dq and used >= nxt_d:
                        pop_dma(); nxt_d += step
                    elif pl and used >= nxt_p:
                        pl.pop(0)(); nxt_p = used + 8
                    c, ins, av, isvm, sub = epq.pop(0)
                    for x in ins: a(x)
                    used += c
                    if isvm:
                        done_sub.add(sub)
                        if ins: vm['n'] += 1
            while dq:
                pop_dma()
                for k in range(2):
                    if pl: pl.pop(0)()
            for f in pl: f()
            if prep and p >= NPER + PL0 and len(R) < 20:
                assert all(not sched[pp] for pp in range(p, NPER))
                busy = set(sb % 8 for sb in range(NSUB) if sb not in done_sub)
                for sl in range(8):
                    if sl in busy or sl in used_slots or len(R) >= 20: continue
                    used_slots.add(sl)
                    if not R:
                        assert p >= PF0 + 3 * PFS
                        for x in prep7_vec(): a(x)
                    r = ACC + sl * 8
                    while r < ACC + sl * 8 + 8 and len(R) < 20:
                        bq.append(prep6_load(len(R), r))
                        R.append(r); r += 4 if len(R) == 1 else 1
            for _ in range(BGE): pop_bg()
            if p + 2 < NPER:
                a(f"s_waitcnt vmcnt({min(63, vm['n'] - landed[p + 2])}) lgkmcnt(0)")
            else:
                a("s_waitcnt lgkmcnt(0)")
            waited['lg'] = lg['n']
            a("s_barrier")
        if stamp:
            a("s_memtime s[74:75]")
        a("s_nop 7")
        a("s_nop 3")
        while epq:
            c, ins, av, isvm, sub = epq.pop(0)
            for x in ins: a(x)
            if isvm and ins: vm['n'] += 1
        if prep:
            a("s_nop 1")
            assert len(R) == 20 and not bq
            prep6_compute(a, R, [vm['n'] - x for x in plidx], ['', 'sc0 sc1', 'nt', 'none', 'sc1'][xm])
        if stamp:
            a("s_memtime s[80:81]"); a("s_waitcnt lgkmcnt(0)"); a("s_sub_u32 s20, s80, s70")
            if ph == 2: a("s_mov_b32 s20, s83")
            a("s_waitcnt vmcnt(0)")
            a("s_memrealtime s[80:81]")
            a("s_waitcnt lgkmcnt(0)")
            for d, s in ((74, 70), (82, 70)): a(f"s_sub_u32 s{d}, s{d}, s{s}")
            for k, s in enumerate((72, 80, 59, 82, 74, 28, 20, 48)): a(f"v_mov_b32 v{24+k}, s{s}")
            a("s_lshl_b32 s70, s2, 3")
            a("s_add_u32 s70, s70, s22")
            a("s_lshl_b32 s70, s70, 5")
            a("s_add_u32 s70, s70, 0x8000000")
            a("v_mov_b32 v32, s70")
            a("s_mov_b64 exec, 1")
            a("global_store_dwordx4 v32, v[24:27], s[6:7]")
            a("global_store_dwordx4 v32, v[28:31], s[6:7] offset:16")
            if ph:
                a("s_sub_u32 s70, s70, 0x8000000"); a("s_lshl_b32 s70, s70, 2"); a("s_add_u32 s70, s70, 0x9000000"); a("v_mov_b32 v32, s70")
                for k in range(18): a(f"v_mov_b32 v{40+k}, s{50+k if k < 9 else 92+k-9}")
                a("v_mov_b32 v58, s28"); a("v_mov_b32 v59, s22")
                for k in range(5): a(f"global_store_dwordx4 v32, v[{40+4*k}:{43+4*k}], s[6:7] offset:{16*k}")
        a("s_endpgm")
    body(18, bool(do_prep))
    a.label(f"{name}_v19")
    body(19)
    a.label(f"{name}_side")
    if nm: a("s_add_u32 s28, s49, 252")
    gate(a, name)
    a.label(f"{name}_done")
    a("s_endpgm")
    kernel_desc(a, name, 256, 102)

if __name__ == "__main__":
    import sys
    opts = sys.argv[2:]
    a = Asm()
    a.raw(f"; @launch kernel=gemm1_kernel grid=(256,1,1) block=(512,1,1) lds={G1_LDS}")
    a.raw('.amdgcn_target "amdgcn-amd-amdhsa--gfx950"')
    kw = {}
    for o in opts:
        if "=" in o:
            k, v = o.split("="); kw[k] = float(v) if "." in v else int(v)
    gemm1n(a, stamp="stamp" in opts, do_epi="noepi" not in opts, **kw)
    open(sys.argv[1], "w").write(a.text())
```

```python
import sys
from gen_common import *
from gen_gemm1n import gemm1n, G1_LDS
from gen_gemm2e import gemm2e, G2_LDS
from gen_conv4 import *
opts = sys.argv[2:]
kw = {}
for o in opts:
    if "=" in o:
        k, v = o.split("="); kw[k] = int(v)
hdr = open('gated_mix__ssm_conv_h3__glu_gated_swiglu__prompt.s.ref').read().split('\n')
hdr = [l for l in hdr if l.startswith(';') and '@launch' not in l]
a = Asm()
for l in hdr: a.raw(l)
a.raw(f"; @launch kernel=gemm1_kernel grid=(256,1,1) block=(512,1,1) lds={G1_LDS}")
a.raw(f"; @launch kernel=gemm2_kernel grid=(256,1,1) block=(512,1,1) lds={G2_LDS}")
NW = kw.get("NW", 9)
a.raw(f"; @launch kernel=final_kernel grid=({2304//NW},1,1) block=({64*NW},1,1) lds={kw.get('FL',0)}")
a.raw('.amdgcn_target "amdgcn-amd-amdhsa--gfx950"')
kw1 = {k[2:]: v for k, v in kw.items() if k.startswith("1_")}
kw2 = {k[2:]: v for k, v in kw.items() if k.startswith("2_")}
gemm1n(a, stamp="stamp1" in opts, **kw1)
gemm2e(a, stamp="stamp2" in opts, **kw2)
final4(a, stamp='stamp3' in opts, NW=NW, fm=kw.get('fm',0), om=kw.get('om',0))
open(sys.argv[1], "w").write(a.text())
```

```python
from gen_fy_common import *

WBUF = 32768
XA0 = 98304
XAS = 14336
SLOT = 18432
S3 = 90112
P = 7
RING = 6
vW0, vW1, vX0, vX1, vX2, vRW, vRX0, vRX1 = 1, 2, 3, 4, 5, 6, 7, 8
TMP = 10
vRW2 = 22
vPF = 23
FR = 24
ACC = 48
WR = 112
PRE = 104
sWS = [36, 37, 38]; sXS = [4, 5, 48]; sXR = 39; sMW = 97
sSM, sSS, sA2, sB1, sB2 = 52, 53, 50, 51, 90
sPFT = 91
POOLB = 65536

def stamp_to(a, d):
    a("s_memtime s[80:81]"); a("s_waitcnt lgkmcnt(0)"); a(f"s_sub_u32 s{d}, s80, s70")

def clear_setup():
    return p2_ids(76, 77, 78, 34, 35) + [f"s_lshl_b32 s{sTFO}, s77, 7", f"s_add_u32 s{sTFO}, s{sTFO}, 32768", f"s_mul_i32 s69, s77, {OBS}",
            "s_mul_i32 s34, s22, 5120", "s_add_u32 s69, s69, s34"] + ws_srd(56, WS_OB, OB_BYTES)

def conv_srd(t, d):
    return ws_srd(12, WS_XR, XR_BYTES) + ["s_lshl_b32 s79, s78, 3", "s_add_u32 s79, s79, s22", "s_lshl_b32 s79, s79, 12",
            "s_lshr_b32 s34, s78, 3", "s_add_u32 s34, s34, 64", "s_lshl_b32 s34, s34, 3", "s_add_u32 s34, s34, s22", "s_lshl_b32 s40, s34, 12",
            f"v_and_b32 v{t}, 63, v0", f"v_lshlrev_b32 v{d}, 4, v{t}", f"v_lshrrev_b32 v{t+1}, 1, v{t}", f"v_xor_b32 v{t+1}, s78, v{t+1}", f"v_and_b32 v{t+1}, 7, v{t+1}",
            f"v_lshlrev_b32 v{t}, 7, v{t}", f"v_lshl_add_u32 v{d+1}, v{t+1}, 4, v{t}"] + kv_addr(t, d + 3)
def img_dma():
    g = [[f"s_lshl_b32 s45, s22, 12", f"s_add_u32 m0, s45, {PB}", "s_nop 0", f"buffer_load_dwordx4 v1, s[12:15], s79 offen {SC} lds"]]
    for j in range(1, 4): g.append([f"buffer_load_dwordx4 v1, s[12:15], s79 offen offset:{1024*j} {SC} lds"])
    g.append(["s_lshl_b32 m0, s22, 9", "s_mov_b32 exec_hi, 0", f"buffer_load_dwordx4 v2, s[12:15], s40 offen {SC} lds", "s_mov_b64 exec, -1"])
    return g
def img_zero(t):
    return [f"v_mov_b32 v{t}, 0", f"v_mov_b32 v{t+1}, 0", f"v_lshrrev_b32 v{t+2}, 1, v1", f"ds_write_b64 v{t+2}, {vr(t,2)} offset:4096",
            f"v_lshrrev_b32 v{t+3}, 2, v1", f"ds_write_b32 v{t+3}, v{t} offset:{PB + 32768}"]
def conv_ptrs():
    return [f"s_load_dwordx4 s[36:39], s[0:1], {KA['ssm_k']}"]
def conv_ssm():
    return ["s_sub_u32 s24, s36, 16", "s_subb_u32 s25, s37, 0", "s_and_b32 s25, s25, 0xffff", f"s_mov_b32 s26, {576*4096 + 16}", "s_mov_b32 s27, 0x00020000",
            "s_lshl_b32 s34, s78, 3", "s_add_u32 s34, s34, s22", "s_lshl_b32 s34, s34, 1", "s_and_b32 s34, s34, 0xfffffffc", "s_load_dword s60, s[38:39], s34",
            "s_lshl_b32 s34, s78, 1", "s_and_b32 s34, s34, 0xfffffffc", "s_add_u32 s34, s34, 1024", "s_load_dword s61, s[38:39], s34"]
QA = WR + 56; QB = WR + 128
QK = QA; QT = QA + 12; QV = QB; QE = QB + 8; QO = QB + 12
vO1, vO2, vTA, vSA = PRE + 4, PRE + 5, 21, PRE + 7
QP = [17, 18, 19, 20, 21, 10]; QC = [11, QA + 11, vO1, vO2]
def prep_addr(t):
    return ["s_lshl_b32 s34, s30, 2", "s_add_u32 s34, s34, s31", "s_min_u32 s34, s34, 143", "s_mul_i32 s35, s34, 7282", "s_lshr_b32 s35, s35, 16",
            "s_mul_i32 s29, s35, 9", "s_sub_u32 s34, s34, s29",
            "s_lshl_b32 s35, s35, 3", "s_add_u32 s35, s35, s22",
            f"v_and_b32 v{t}, 31, v11", f"v_lshrrev_b32 v{t+1}, 5, v11",
            f"s_mul_i32 s29, s35, {16*1152}", "s_lshl_b32 s3, s34, 7", "s_add_u32 s29, s29, s3",
            f"v_mul_u32_u24 v{t+2}, {8*1152}, v{t+1}", f"v_lshl_add_u32 v{t+2}, v{t}, 2, v{t+2}", f"v_add_u32 v{vO1}, s29, v{t+2}",
            f"v_add_u32 v{vO2}, {7*1152}, v{vO1}",
            "s_lshl_b32 s3, s34, 9", f"v_lshl_add_u32 v{vTA}, v{t}, 4, s3",
            "s_sub_u32 s35, 127, s35", "s_lshl_b32 s29, s35, 8", "s_lshl_b32 s3, s34, 18", "s_add_u32 s29, s29, s3", f"s_add_u32 s29, s29, {WS_XR + 128}",
            f"v_and_b32 v{t+2}, 3, v{t}", f"v_lshl_add_u32 v{t+2}, v{t+2}, 1, v{t+1}", f"v_xor_b32 v{t+2}, s35, v{t+2}", f"v_and_b32 v{t+2}, 7, v{t+2}",
            f"v_lshrrev_b32 v{t}, 2, v{t}", f"v_lshlrev_b32 v{t}, 15, v{t}", f"v_lshl_add_u32 v{t}, v{t+2}, 4, v{t}", f"v_add_u32 v{vSA}, s29, v{t}"]
def prep_loads(n):
    g = [([f"v_mov_b32 v{QK+i}, 0" for i in range(3)] + [f"v_cmp_le_u32 vcc, {3*1152}, v{vO1}"], f"global_load_dwordx4 {vr(QT,4)}, v{vTA}, s[88:89]")]
    for r in range(-3, 8):
        v, o = (vO1, r * 1152) if r < 4 else (vO2, (r - 7) * 1152)
        g.append((["s_and_b64 exec, exec, vcc"] if r == -3 else ["s_mov_b64 exec, s[66:67]"] if r == 0 else [], f"global_load_dword v{QK+r+3}, v{v}, s[84:85] offset:{o}"))
    for r in range(8):
        v, o = (vO1, r * 1152) if r < 4 else (vO2, (r - 7) * 1152)
        g.append(([], f"global_load_dword v{QV+r}, v{v}, s[86:87] offset:{o}"))
    out = []
    m = -(-len(g) // n)
    for b in range(n):
        o = []
        for k, (pre, ld) in enumerate(g[b*m:(b+1)*m]):
            o += pre + (["s_mov_b64 exec, s[66:67]"] if k == 0 else []) + [ld]
        out.append((o + ["s_mov_b64 exec, -1"], len(g[b*m:(b+1)*m])))
    return out
def prep_valu():
    o = ["s_mov_b32 s88, 0x05040100", "s_mov_b32 s89, 0x07060302"]
    for h in range(2):
        O = QO if h else QE
        for hf in range(2):
            b = 4 * hf
            o += [f"v_perm_b32 v{QP[i]}, v{QK+b+i}, v{QK+b+i+1}, s{88+h}" for i in range(6)]
            o += [f"v_dot2_f32_bf16 v{QC[i]}, v{QP[i]}, v{QT+2*h+1}, 0" for i in range(4)]
            o += [f"v_dot2_f32_bf16 v{QC[i]}, v{QP[i+2]}, v{QT+2*h}, v{QC[i]}" for i in range(4)]
            o += [(f"v_and_b32 v{QP[i]}, 0xffff0000, v{QV+b+i}" if h else f"v_lshlrev_b32 v{QP[i]}, 16, v{QV+b+i}") for i in range(4)]
            o += [f"v_mul_f32 v{QP[i]}, v{QP[i]}, v{QC[i]}" for i in range(4)]
            o += [f"v_cvt_pk_bf16_f32 v{O+2-2*hf}, v{QP[3]}, v{QP[2]}", f"v_cvt_pk_bf16_f32 v{O+3-2*hf}, v{QP[1]}, v{QP[0]}"]
    o += ["s_nop 1"] + [f"v_permlane32_swap_b32 v{QE+i}, v{QO+i}" for i in range(4)]
    return o
def prep_stores():
    return [["s_mov_b64 exec, s[66:67]", f"global_store_dwordx4 v{vSA}, {vr(QE,4)}, s[6:7] {SC}"],
            [f"global_store_dwordx4 v{vSA}, {vr(QO,4)}, s[6:7] offset:-128 {SC}", "s_mov_b64 exec, -1"]]

def phase1(a, name, tails, stamp=False, AB=1, MV=144, PF0=9, PFS=2, w2pf=1, AB0=4, verbose=0, C0=2, DC=4, ph=0, BSE=5, st2=1, vmm=1, B1D=4, SGE=4, clrm=0, dbgB=0, nokv=0, PL0=1, PLN=2, PC=5, PVM=28):
    stmod = SC
    a(f"s_and_b32 s23, s{sT}, 7")
    a(f"s_lshr_b32 s29, s{sT}, 3")
    a("s_lshr_b32 s49, s23, 1")
    a("s_and_b32 s32, s23, 1")
    a("s_lshl_b32 s28, s32, 5")
    a("s_add_u32 s28, s28, s29")
    a("s_cmp_eq_u32 s28, 63")
    a(f"s_cbranch_scc1 {name}_gate")
    a(f"s_load_dwordx2 s[8:9], s[0:1], {KA['q']}")
    a(f"s_load_dwordx4 s[24:27], s[0:1], {KA['w1']}")
    a(f"s_load_dwordx2 s[6:7], s[0:1], {KA['ws']}")
    a(f"s_load_dwordx2 s[92:93], s[0:1], {KA['dbg']}")
    a(f"s_load_dwordx2 s[12:13], s[0:1], {KA['w2']}")
    a(f"s_load_dwordx2 s[88:89], s[0:1], {KA['ssm_k']}")
    a("s_mul_i32 s30, s49, 63")
    a("s_add_u32 s28, s28, s30")
    a("v_lshrrev_b32 v10, 6, v0")
    a("v_and_b32 v11, 63, v0")
    a("v_readfirstlane_b32 s22, v10")
    a("s_mul_i32 s29, s28, 9363")
    a("s_lshr_b32 s30, s29, 16")
    a("s_mul_i32 s29, s30, 7")
    a("s_sub_u32 s31, s28, s29")
    a(f"s_mul_i32 s{sSM}, s31, 18")
    a("s_cmp_eq_u32 s31, 6")
    a("s_cselect_b32 s29, 2, 0")
    a(f"s_add_u32 s{sSM}, s{sSM}, s29")
    a("s_add_u32 s34, s49, s30")
    a("s_and_b32 s34, s34, 1")
    a("s_lshl_b32 s34, s34, 2")
    a("s_xor_b32 s35, s34, 4")
    a("s_mul_i32 s29, s32, 10")
    a(f"s_add_u32 s{sA2}, s{sSM}, s29")
    a(f"s_add_u32 s47, s{sA2}, s34")
    a(f"s_add_u32 s{sA2}, s{sA2}, s35")
    a("s_sub_u32 s29, 10, s29")
    a(f"s_add_u32 s{sB2}, s{sSM}, s29")
    a(f"s_add_u32 s{sB1}, s{sB2}, s34")
    a(f"s_add_u32 s{sB2}, s{sB2}, s35")
    a(f"s_add_u32 s{sSM}, s{sSM}, 8")
    a(f"s_add_u32 s{sSS}, s31, 103")
    a("s_add_u32 s34, s47, s22")
    a(f"s_add_u32 s35, s{sSM}, s22")
    a("s_sub_u32 s35, s35, 4")
    a("s_cmp_lt_u32 s22, 4")
    a("s_cselect_b32 s34, s34, s35")
    a("s_cmp_lt_u32 s31, 5")
    a(f"s_cselect_b32 s35, s{sA2}, s{sSS}")
    a("s_cmp_lt_u32 s22, 6")
    a("s_cselect_b32 s34, s34, s35")
    a(f"s_mul_i32 s{sXR}, s34, {SLOT}")
    a("s_add_u32 s34, s30, s31")
    a("s_mul_i32 s35, s34, 21846")
    a("s_lshr_b32 s35, s35, 16")
    a("s_mul_i32 s35, s35, 3")
    a("s_sub_u32 s34, s34, s35")
    a("s_mul_i32 s49, s34, 3")
    for sg in range(3):
        if sg:
            a("s_add_u32 s34, s34, 1")
            a("s_cmp_eq_u32 s34, 3")
            a("s_cselect_b32 s34, 0, s34")
        a(f"s_mul_i32 s{sWS[sg]}, s34, {3*64*9216}")
        a(f"s_mul_i32 s{sXS[sg]}, s34, 384")
    a("v_lshrrev_b32 v12, 4, v11")
    a("v_and_b32 v13, 15, v11")
    a("s_and_b32 s33, s22, 3")
    a("s_lshl_b32 s33, s33, 4")
    a("v_add_u32 v14, s33, v12")
    a("v_mul_u32_u24 v14, 9216, v14")
    a("s_lshl_b32 s33, s30, 8")
    a("v_add_u32 v14, s33, v14")
    a("v_lshlrev_b32 v15, 1, v12")
    a("v_xor_b32 v15, v15, v13")
    a(f"v_lshl_add_u32 v{vW0}, v15, 4, v14")
    a("v_xor_b32 v15, 8, v15")
    a("v_lshl_add_u32 v14, v15, 4, v14")
    a(f"v_add_u32 v{vW1}, {8*9216 - 2048}, v14")
    a("v_lshrrev_b32 v14, 3, v11")
    a("v_and_b32 v15, 7, v11")
    a("v_xor_b32 v15, v15, v12")
    a("v_mul_u32_u24 v14, 1152, v14")
    a(f"v_lshl_add_u32 v{vX0}, v15, 4, v14")
    a("v_xor_b32 v15, 4, v15")
    a("v_lshl_add_u32 v14, v15, 4, v14")
    a(f"v_add_u32 v{vX1}, {8*1152 - 1024}, v14")
    a("s_lshr_b32 s33, s22, 2")
    a(f"s_lshl_b32 s{sMW}, s22, 12")
    a("s_lshl_b32 s42, s22, 11")
    a("s_cmp_eq_u32 s22, 7")
    a("s_cselect_b64 s[64:65], 0, -1")
    a(f"s_mov_b32 s10, {2048*1152}")
    a("s_mov_b32 s11, 0x00020000")
    a("s_cmp_eq_u32 s33, 0")
    a("s_waitcnt lgkmcnt(0)")
    a("s_cselect_b32 s24, s24, s26")
    a("s_cselect_b32 s25, s25, s27")
    a("s_and_b32 s25, s25, 0xffff")
    a(f"s_mov_b32 s26, {576*9216}")
    a("s_mov_b32 s27, 0x00020000")
    a("s_and_b32 s9, s9, 0xffff")

    def stageA_dma(s):
        sr = "s[24:27]"
        sg = s // 3; o = (s % 3) * 64 * 9216
        g = []
        g.append([f"s_add_u32 m0, s{sMW}, {(s % 3) * WBUF}", f"s_add_u32 s21, s{sWS[sg]}, {o + 4*9216 - 1024}", f"s_add_u32 s20, s{sWS[sg]}, {o}",
                  f"buffer_load_dwordx4 v{vW0}, {sr}, s20 offen lds"])
        g.append([f"buffer_load_dwordx4 v{vW0}, {sr}, s21 offen offset:1024 lds"])
        g.append([f"buffer_load_dwordx4 v{vW1}, {sr}, s20 offen offset:2048 lds"])
        g.append([f"buffer_load_dwordx4 v{vW1}, {sr}, s21 offen offset:3072 lds"])
        g.append([f"s_add_u32 m0, s42, {XA0 + (s % 4) * XAS}", f"s_add_u32 s45, s{sXR}, s{sXS[sg]}", f"s_add_u32 s45, s45, {(s % 3) * 128}", "s_mov_b64 exec, s[64:65]",
                  f"buffer_load_dwordx4 v{vX0}, s[8:11], s45 offen lds", "s_mov_b64 exec, -1"])
        g.append(["s_mov_b64 exec, s[64:65]", f"buffer_load_dwordx4 v{vX1}, s[8:11], s45 offen offset:1024 lds", "s_mov_b64 exec, -1"])
        return g
    def emit(groups):
        for g in groups:
            for x in g: a(x)

    def rest_setup():
        a("v_bfe_u32 v14, v11, 3, 1")
        a("s_lshl_b32 s34, s22, 1")
        a("v_add_u32 v14, s34, v14")
        a("v_mul_u32_u24 v14, 1152, v14")
        a("v_and_b32 v15, 7, v11")
        a("v_xor_b32 v15, s22, v15")
        a(f"v_lshl_add_u32 v{vX2}, v15, 4, v14")
        a("s_add_u32 s34, s49, s22")
        a("s_sub_u32 s35, s34, 9")
        a("s_cmp_ge_u32 s34, 9")
        a("s_cselect_b32 s34, s35, s34")
        a("s_lshl_b32 s63, s34, 7")
        a(f"s_add_u32 s49, s{sXS[2]}, 256")
        a("v_lshrrev_b32 v14, 2, v13")
        a("v_and_b32 v15, 1, v12")
        a("v_lshl_add_u32 v15, v15, 2, v14")
        a("v_xor_b32 v15, s22, v15")
        a("v_lshl_add_u32 v14, v12, 3, v14")
        a("v_lshlrev_b32 v14, 8, v14")
        a("v_lshl_add_u32 v14, v15, 5, v14")
        a("v_and_b32 v15, 3, v11")
        a(f"v_lshl_add_u32 v{vRW}, v15, 3, v14")
        a(f"v_add_u32 v{vRW2}, 0x10000, v{vRW}")
        a("v_lshrrev_b32 v14, 1, v13")
        a("v_xor_b32 v14, v14, v12")
        a("v_lshlrev_b32 v15, 7, v13")
        a("v_lshl_add_u32 v14, v14, 4, v15")
        a(f"v_add_u32 v{vRX0}, {XA0}, v14")
        a(f"v_xor_b32 v{vRX1}, 64, v{vRX0}")
        a("s_lshl_b32 s34, s30, 3")
        a("s_add_u32 s34, s34, s22")
        a("s_lshr_b32 s35, s34, 2")
        a("s_lshl_b32 s35, s35, 18")
        a("s_and_b32 s34, s34, 3")
        a("s_lshl_b32 s34, s34, 9")
        a("s_add_u32 s34, s34, s35")
        a("v_lshlrev_b32 v14, 5, v13")
        a("v_lshrrev_b32 v15, 1, v12")
        a("v_lshl_add_u32 v14, v15, 4, v14")
        a("v_and_b32 v15, 1, v12")
        a("v_lshl_add_u32 v14, v15, 11, v14")
        a(f"v_add_u32 v{vPF}, s34, v14")
        a("s_lshl_b32 s43, s22, 8")
        a("s_add_u32 s43, s43, 16384")
        a("s_mov_b32 s46, 0xbfb8aa3b")
        for s in (47, sSM, sSS, sA2, sB1, sB2): a(f"s_lshl_b32 s{s}, s{s}, 11")
        srd(a, 16, 6, 7, H_BYTES)
        a("s_and_b32 s93, s93, 0xffff")
        a("s_movk_i32 s94, 256")
        a("s_mov_b32 s95, 0x00020000")
        a(f"s_lshl_b32 s{sPFO}, s28, 7")
        for x in pubmask(22) + clear_setup(): a(x)
        for k in range(4): a(f"v_mov_b32 v{12+k}, -1")
        a("v_lshlrev_b32 v16, 4, v11")
        for x in prep_addr(FR): a(x)
        a(f"s_mov_b32 s{sCNT}, s31")
        a("s_cmp_lt_u32 s31, 4")
        a("s_cselect_b64 s[66:67], -1, 0")
        for x in [f"s_lshr_b32 s34, s{sT}, 3", "s_lshl_b32 s34, s34, 3", "s_add_u32 s34, s34, s22",
                  "s_lshr_b32 s35, s23, 1", "s_mul_i32 s35, s35, 162", f"s_add_u32 s{sPFT}, s35, s34",
                  "s_lshl_b32 s35, s23, 5", "s_add_u32 s35, s35, s34", "s_sub_u32 s35, s35, 162",
                  "s_lshl_b32 s29, s23, 2", "s_add_u32 s29, s29, s34", f"s_add_u32 s29, s29, {256 - 194}",
                  "s_cmp_lt_u32 s34, 194", "s_cselect_b32 s35, s35, s29", f"s_mov_b32 s30, {576*4096}",
                  "s_cmp_lt_u32 s34, 162", f"s_cselect_b32 s{sPFT}, s{sPFT}, s35", "s_cselect_b32 s28, s12, s88", "s_cselect_b32 s29, s13, s89",
                  f"s_cselect_b32 s30, {4608*1152}, s30", "s_and_b32 s29, s29, 0xffff", f"s_lshl_b32 s{sPFT}, s{sPFT}, 13",
                  "s_cmp_lt_u32 s34, 198", "s_cselect_b32 s30, s30, 0", "s_mov_b32 s31, 0x00020000"]: a(x)

    def pro_end(tg):
        if st2 == 1: emit(stageA_dma(2))
        a(f"s_cmp_ge_u32 s{sCNT}, 5")
        a("s_waitcnt vmcnt(12) lgkmcnt(0)")
        a("s_barrier")
    emit(stageA_dma(0))
    emit(stageA_dma(1))
    if st2 == 0: emit(stageA_dma(2))
    rest_setup()
    a("s_cmp_eq_u32 s76, 1")
    a(f"s_cbranch_scc1 {name}_rsc")
    for x in g2_scal() + b_off(0, FR, PRE) + b_off(1, FR + 4, PRE + 1) + b_off(2, FR + 8, PRE + 2) + poll_addr(FR + 12, PRE + 3) + poll_init(FR, PRE + 6): a(x)
    pro_end("g")
    a(f"s_cbranch_scc1 {name}_g19")

    def body(kind):
        NSUB = int(kind[1:]); conv = kind[0] == 'c'
        E = 9 + NSUB - P
        BS0 = E - BSE; SG0 = E - SGE
        segs = [("A1", 0, 4, None), ("M", 4, 2, sSM)]
        p0 = 6
        if NSUB == 19: segs.append(("S", 6, 1, sSS)); p0 = 7
        segs += [("A2", p0, 4, sA2), ("B1", p0 + 4, 4, sB1), ("B2", p0 + 8, 4, sB2)]
        def seg_of(pos):
            for s in segs:
                if s[1] <= pos < s[1] + s[2]: return s
        def slot_addr(q): return (q - 9) * WBUF if q < 12 else S3 + ((q - E) % 4) * SLOT
        def subB_dma(q):
            sa = slot_addr(q); pos = q - 2; sg = seg_of(pos); j = pos - sg[1]
            pre = []
            if j == 0 or pos == P: pre = [f"s_mul_i32 s44, s{sg[3]}, 9", "s_add_u32 s68, s44, s49", "s_add_u32 s44, s44, s63"]
            g = []
            g.append(pre + [f"s_add_u32 m0, s42, {sa}", f"s_add_u32 s45, s44, {j*SLOT}", f"buffer_load_dwordx4 v{vX0}, s[8:11], s45 offen lds"])
            g.append([f"buffer_load_dwordx4 v{vX1}, s[8:11], s45 offen offset:1024 lds"])
            g.append([f"s_add_u32 m0, s43, {sa}", f"s_add_u32 s45, s68, {j*SLOT}", "s_mov_b64 exec, 0xffff", f"buffer_load_dwordx4 v{vX2}, s[8:11], s45 offen lds", "s_mov_b64 exec, -1"])
            return g
        vm = dict(n=18, known=6)
        landed = {1: 12, 2: 18}
        mark = {}
        pend = []
        pubs = {}
        level = dict(v=0)
        lg = dict(n=0); lgidx = {}; waited = dict(lg=0)
        def wreg(mat, ks): return WR + (mat * 18 + ks) * 4
        def acc(sub, mat): return ACC + (sub % 8) * 8 + mat * 4
        def frags(p):
            if p < 9: return [(tt, sub, 2 * p + tt) for tt in range(2) for sub in range(P)]
            return [(ks & 1, p - 2, ks) for ks in range(18)]
        cur_base = dict(v=XA0)
        ring = dict(n=0)
        rslot = {}
        def emit_read(p, i):
            tt, sub, ks = frags(p)[i]
            if p < 9:
                off = XA0 + (p % 4) * XAS + sub * 2048
            else:
                sa = slot_addr(p)
                if i == 0 and not (sa >= cur_base['v'] and sa + SLOT - cur_base['v'] <= 65536):
                    d = sa - cur_base['v']
                    a(f"v_add_u32 v{vRX0}, {d & 0xffffffff}, v{vRX0}")
                    a(f"v_add_u32 v{vRX1}, {d & 0xffffffff}, v{vRX1}")
                    cur_base['v'] = sa
                off = sa + (ks >> 1) * 2048
            off -= cur_base['v']
            assert 0 <= off < 65536
            r = FR + (ring['n'] % RING) * 4; ring['n'] += 1
            rslot[(p, i)] = r
            a(f"ds_read_b128 {vr(r, 4)}, v{vRX1 if tt else vRX0} offset:{off}")
            lg['n'] += 1; lgidx[("X", p, i)] = lg['n']
        def emit_wread(s, tt, mat):
            b = s % 3
            base = f"v{vRW2}" if b == 2 else f"v{vRW}"
            off = ((b & 1) * WBUF if b < 2 else 0) + mat * 16384 + tt * 8192
            r = wreg(mat, 2 * s + tt)
            a(f"ds_read_b64_tr_b16 {vr(r,2)}, {base} offset:{off}")
            a(f"ds_read_b64_tr_b16 {vr(r+2,2)}, {base} offset:{off + 1024}")
            lg['n'] += 2; lgidx[("W", 2 * s + tt, mat)] = lg['n']
        def wait_lg(tag):
            need = lgidx[tag]
            if need <= waited['lg']: return
            n = lg['n'] - need
            a(f"s_waitcnt lgkmcnt({min(n, 15)})")
            waited['lg'] = need if n <= 15 else lg['n'] - 15
        def preload_list(p):
            o = []
            if p < 9:
                o += [lambda: emit_wread(p, 0, 0), lambda: emit_read(p, 0), lambda: emit_wread(p, 0, 1)]
                for i in range(1, RING): o.append(lambda i=i: emit_read(p, i))
                o += [lambda: emit_wread(p, 1, 0), lambda: emit_wread(p, 1, 1)]
            else:
                for i in range(RING): o.append(lambda i=i: emit_read(p, i))
            return o
        epq = []
        def add_epi(sub, avail):
            sg = seg_of(sub); j = sub - sg[1]; second = j & 1; single = sg[2] == 1
            G = acc(sub, 0); U = acc(sub, 1); T = TMP; O = TMP + 8 + second * 2
            ops = []
            for r in range(4): ops.append((4, [f"v_mul_f32 v{T+r}, s46, v{G+r}"]))
            for r in range(4): ops.append((8, [f"v_exp_f32 v{T+r}, v{T+r}"]))
            for r in range(4): ops.append((4, [f"v_mul_f32 v{T+4+r}, v{G+r}, v{U+r}"]))
            for r in range(4): ops.append((4, [f"v_add_f32 v{T+r}, 1.0, v{T+r}"]))
            for r in range(4): ops.append((8, [f"v_rcp_f32 v{T+r}, v{T+r}"]))
            for r in range(4): ops.append((4, [f"v_mul_f32 v{T+4+r}, v{T+4+r}, v{T+r}"]))
            ops.append((4, [f"v_cvt_pk_bf16_f32 v{O}, v{T+4}, v{T+5}"]))
            ops.append((4, [f"v_cvt_pk_bf16_f32 v{O+1}, v{T+6}, v{T+7}"]))
            pre = []
            if sg[3] is not None and j < 2: pre = [f"s_mov_b32 s47, s{sg[3]}"]
            if single:
                ops.append((8, [f"v_bfe_u32 v{T}, v0, 4, 1", f"v_mul_u32_u24 v{T}, 2040, v{T}"]))
                ops.append((4, [f"v_sub_u32 v{T}, v{vPF}, v{T}"]))
                ops.append((0, pre + [f"buffer_store_dwordx2 {vr(O,2)}, v{T}, s[16:19], s47 offen {stmod}", "s_nop 0"], "vm"))
            elif second:
                O0 = TMP + 8
                ops.append((8, ["s_nop 0", f"v_permlane16_swap_b32 v{O0}, v{O0+2}", f"v_permlane16_swap_b32 v{O0+1}, v{O0+3}"]))
                ops.append((0, pre + ["s_nop 0", f"buffer_store_dwordx4 {vr(O0,4)}, v{vPF}, s[16:19], s47 offen {stmod}", "s_add_u32 s47, s47, 4096"], "vm"))
            else:
                ops.append((0, [], "novm"))
            for o in ops: epq.append((o[0], o[1], avail, len(o) > 2, sub))
        for sub in range(NSUB): add_epi(sub, max(8, sub + 2))
        done_sub = set()
        lvl_pos = {3: I_A1, p0 - 1: I_MID, p0 + 3: I_A2, p0 + 7: I_B1}
        def pop_epi(p):
            c, ins, av, isvm, sub = epq.pop(0)
            for x in ins: a(x)
            if isvm:
                done_sub.add(sub)
                if ins:
                    vm['n'] += 1
                    if sub in lvl_pos:
                        pend.append((lvl_pos[sub], vm['n']))
                        if verbose: print(f"{kind}: level {lvl_pos[sub]} stored at {p}")
            return c
        def vmop(ins):
            for x in ins: a(x)
            vm['n'] += 1
        def vmwait(idx, extra=""):
            if idx > vm['known']:
                a(f"s_waitcnt vmcnt({min(63, vm['n'] - idx)}){extra}")
                vm['known'] = idx
            elif extra: a(f"s_waitcnt{extra}")
        bg = {p: [] for p in range(E)}
        bg[8] = [f"v_mov_b32 v{d}, v{PRE+i}" for i, d in enumerate(vB + [vPA]) if not (conv and i == 2)]
        if not conv: bg[8].append(f"v_mov_b32 v{vPL}, v{PRE+6}")
        prep = NSUB == 18 and not nokv
        pvs = []
        if prep:
            pv = prep_valu(); plb = prep_loads(PLN)
            bg[PC] = pv[:PVM]; bg[PC + 1] = pv[len(pv)-PVM:]; pvs = pv[PVM:len(pv)-PVM]
            if not conv: bg[7] = g2_ids()
        elif NSUB == 18: pend.append((I_KV, 18))

        a.label(f"{name}_{kind}")
        for f in preload_list(0): f()
        a(f"s_cmp_eq_u32 s33, 0")
        a(f"s_cbranch_scc1 {name}_skipY{kind}")
        a("s_waitcnt vmcnt(6) lgkmcnt(0)")
        a("s_barrier")
        a.label(f"{name}_skipY{kind}")
        for p in range(E):
            fr = frags(p); nf = len(fr); mcred = 0.0
            if stamp and p == 9: stamp_to(a, 71)
            a("s_setprio 1")
            for i in range(nf):
                tt, sub, ks = fr[i]
                if ks == 0 and sub >= 8: assert (sub - 8) in done_sub, (NSUB, sub)
                for mat in range(2):
                    wait_lg(("X", p, i))
                    if p < 9: wait_lg(("W", ks, mat))
                    c = "0" if ks == 0 else vr(acc(sub, mat), 4)
                    a(f"v_mfma_f32_16x16x32_bf16 {vr(acc(sub,mat),4)}, {vr(wreg(mat,ks),4)}, {vr(rslot[(p,i)],4)}, {c}")
                    if bg[p]: a(bg[p].pop(0))
                    if mat == 0 and clrm and C0 <= p <= C0 + 4 and i == 8:
                        vmop([f"buffer_store_dwordx4 v[12:15], v16, s[56:59], s69 offen {SC}", "s_add_u32 s69, s69, 1024"])
                        if p == C0 + 4: pend.append((-1, vm['n']))
                    if mat == 0 and p >= 9:
                        mcred = min(mcred + MV / 18.0, 12); u = 0
                        while epq and epq[0][2] <= p - 1 and (vmm or not epq[0][3]) and epq[0][0] <= mcred and u + epq[0][0] <= 8:
                            c_ = pop_epi(p - 0.5); mcred -= c_; u += c_
                if i + RING < nf: emit_read(p, i + RING)
                if p == E - 1 and i == nf - 1 - AB0:
                    a("s_waitcnt lgkmcnt(0)"); waited['lg'] = lg['n']
                    a(f"s_cmp_eq_u32 s33, 0")
                    a(f"s_cbranch_scc1 {name}_skipB{kind}")
                    a("s_barrier")
                    a.label(f"{name}_skipB{kind}")
                if i == nf - 1 - AB:
                    if p == 0: vmwait(12, " lgkmcnt(0)")
                    else: a("s_waitcnt lgkmcnt(0)")
                    waited['lg'] = lg['n']
                    a("s_setprio 3")
                    if p == E - 1:
                        a(f"s_cmp_eq_u32 s33, 0")
                        a(f"s_cbranch_scc0 {name}_skipA{kind}")
                        a("s_barrier")
                        a.label(f"{name}_skipA{kind}")
                    else:
                        a("s_barrier")
            assert not bg[p]
            a("s_setprio 0")
            if p == E - 1: break
            if ph:
                vmop(["s_memtime s[80:81]", f"s_lshl_b32 s34, s{sT}, 3", "s_add_u32 s34, s34, s22", "s_lshl_b32 s34, s34, 7", f"s_add_u32 s34, s34, {0x9000000 + 4*p}",
                      f"v_mov_b32 v{FR+1}, s34", "s_waitcnt lgkmcnt(0)", "s_sub_u32 s80, s80, s70", f"v_mov_b32 v{FR}, s80", "s_mov_b64 exec, 1",
                      f"global_store_dword v{FR+1}, v{FR}, s[6:7]", "s_mov_b64 exec, -1", "s_nop 0"])
            dq = []
            if p + 3 < E:
                q = p + 3
                gs = stageA_dma(q) if q < 9 else subB_dma(q)
                for k, gg in enumerate(gs): dq.append((gg, q if k == len(gs) - 1 else None))
            nslot = len(dq)
            def pop_dma():
                gg, q = dq.pop(0)
                for x in gg: a(x)
                vm['n'] += 1
                if q is not None:
                    landed[q] = vm['n']
                    if q == "clr": pend.append((-1, vm['n']))
            if dq: pop_dma()
            if p == DC + 2:
                tg = f"{name}_dc{kind}"
                vmwait(mark['dc'])
                for x in ["s_cmp_eq_u32 s100, 0", f"s_cbranch_scc1 {tg}_ok", f"s_movk_i32 s{sCNT}, 0x4000"]: a(x)
                a.label(f"{tg}_l")
                for x in [f"v_readfirstlane_b32 s34, v{vPL}", "s_cmp_lg_u32 s34, 0", f"s_cbranch_scc1 {tg}_ok", "s_sleep 2", "s_mov_b64 exec, 1",
                          f"buffer_load_dword v{vPL}, off, s[92:95], 0 {SC}", "s_mov_b64 exec, -1", "s_waitcnt vmcnt(0)",
                          f"s_sub_u32 s{sCNT}, s{sCNT}, 1", f"s_cbranch_scc0 {tg}_l"]: a(x)
                a.label(f"{tg}_ok")
                for x in ws_srd(92, WS_FL, FL_BYTES): a(x)
            if p in pubs:
                assert p > DC + 2
                if -1 in pubs[p]: vmop(publish(1, FR, sTFO))
                bits = [b for b in pubs[p] if b >= 0]
                for b in bits: level['v'] |= 1 << b
                if bits: vmop(publish(level['v'], FR + 2))
                if verbose: print(f"{kind}: publish {pubs[p]} at side {p}")
            if p == DC:
                vmop(["s_and_b64 exec, s[100:101], 1", f"buffer_load_dword v{vPL}, off, s[92:95], 0 {SC}", "s_mov_b64 exec, -1"])
                mark['dc'] = vm['n']
            if w2pf and p >= PF0 and (p - PF0) % PFS == 0 and (p - PF0) // PFS < 4:
                k = (p - PF0) // PFS
                assert p < E - 3
                while dq: pop_dma()
                vmop([f"v_and_b32 v{FR+4}, 63, v0", f"v_lshlrev_b32 v{FR+4}, 7, v{FR+4}", f"s_mov_b32 m0, {LDS_SCR}", "s_and_b32 s34, s22, 3", f"s_cmp_eq_u32 s34, {k}", "s_cselect_b64 exec, -1, 0",
                      f"buffer_load_dword v{FR+4}, s[28:31], s{sPFT} offen lds", "s_mov_b64 exec, -1"])
            if prep:
                if p == PL0 - 1:
                    a(f"s_load_dwordx4 s[84:87], s[0:1], {KA['k']}"); a(f"s_load_dwordx2 s[88:89], s[0:1], {KA['shift_k']}")
                if p == PC + 1:
                    for x in prep_stores(): vmop(x)
                    pend.append((I_KV, vm['n']))
            if conv:
                if p == 8:
                    for x in conv_ptrs(): a(x)
                if p == 9:
                    for x in conv_ssm(): a(x)
                if p == SG0 - 3:
                    vmop(kv_issue()); mark['poll'] = vm['n']
                if p == SG0 - 1:
                    vmwait(mark['poll'])
                    kv_wait(a, f"{name}_kw", FR)
                if p == SG0:
                    for x in img_zero(FR): a(x)
                    dq += [(x, "stg") for x in img_dma()]
            else:
                if p in (BS0, BS0 + 1):
                    hh = p - BS0
                    pre = ["s_and_b32 s3, s54, 15", "s_lshl_b32 s3, s3, 1", "s_add_u32 s3, s3, s33"] + offB() + [f"s_mul_i32 s21, s33, {G2_STAGE}", "s_add_u32 s21, s21, s41"]
                    if hh: pre += [f"s_add_u32 s3, s3, {16*1152}"]
                    pre += [f"s_add_u32 m0, s21, {6144*hh}", "s_nop 0"]
                    if dbgB == 1: pre += ["s_and_b32 s3, s3, 0xfff80"]
                    for j in range(3):
                        if dbgB == 2: continue
                        dq.append(((pre if j == 0 else []) + [f"buffer_load_dwordx4 v{vB[j]}, {'s[8:11]' if dbgB else 's[12:15]'}, s3 offen offset:{1024*j} lds"], None))
                if p == E - 4: a("s_mov_b32 s67, 0")
                if p in (E - 3, E - 2):
                    vmwait(mark['poll'])
                    for x in poll_eval(FR) + [f"s_and_b32 s34, s66, {1 << (p - E + 3)}", "s_or_b32 s67, s67, s34"]: a(x)
                if p in (E - 4, E - 3, E - 2):
                    vmop(poll_issue(7)); mark['poll'] = vm['n']
                if p == E - 3:
                    pre = a_off() + ["s_and_b32 s3, s54, 15", "s_lshl_b32 s3, s3, 1", "s_add_u32 s3, s3, s33"] + offA() + [f"s_mul_i32 s34, s33, {G2_STAGE}"]
                    g = dmaA("s34"); g[0] = pre + g[0]
                    dq += [(x, "e3") for x in g]
                if p == E - 2:
                    g = dmaA_half(2 * G2_STAGE); g[0] = st_off(2) + g[0]
                    dq += [(x, "e2") for x in g + dmaB_half(2 * G2_STAGE)]
            pl = preload_list(p + 1)
            if C0 <= p <= C0 + 4 and not clrm:
                k = p - C0
                dq.append(([f"buffer_store_dwordx4 v[12:15], v16, s[56:59], s69 offen {SC}", "s_add_u32 s69, s69, 1024"], "clr" if k == 4 else None))
            if p >= 8 and epq:
                rem = sum(o[0] for o in epq if o[4] < NSUB - 1)
                budget = rem / (E - 1 - p) - MV * 0.9
                if p <= E - B1D:
                    r2 = sum(o[0] for o in epq if o[4] <= p0 + 7)
                    budget = max(budget, (r2 - MV * 0.9 * (E - B1D - p)) / (E - B1D - p + 1))
                must = p - 1 - 8
                used = 0
                step = max(budget, 40) / (len(dq) + 0.5) if dq else 1e9
                nxt_d = 0; nxt_p = 8
                while epq and epq[0][2] <= p and (used + epq[0][0] <= budget + 3 or epq[0][0] == 0 or epq[0][4] <= must):
                    if dq and used >= nxt_d:
                        pop_dma(); nxt_d += step
                    elif pl and used >= nxt_p:
                        pl.pop(0)(); nxt_p = used + 8
                    if epq[0][3] and epq[0][1]:
                        while p + 3 < E and (p + 3) not in landed: pop_dma()
                    used += pop_epi(p)
            while dq:
                pop_dma()
                for k in range(2):
                    if pl: pl.pop(0)()
                if prep and p == PC:
                    for k in range(8):
                        if pvs: a(pvs.pop(0))
            for f in pl: f()
            if prep and p == PC:
                for x in pvs: a(x)
            if prep and PL0 <= p < PL0 + PLN:
                ins, n_ = plb[p - PL0]
                for x in ins: a(x)
                vm['n'] += n_; landed["pl"] = vm['n']
            req = [0]
            if p + 2 < E: req.append(landed[p + 2])
            if p == E - 3: req += [i_ for b, i_ in pend]
            if prep and p == PC - 1: req.append(landed["pl"])
            if conv and p == E - 2: req.append(landed["stg"])
            vmwait(max(req), " lgkmcnt(0)")
            for b, i_ in list(pend):
                if i_ <= vm['known'] and p + 1 > DC + 2:
                    pubs.setdefault(p + 1, []).append(b); pend.remove((b, i_))
            waited['lg'] = lg['n']
            a("s_barrier")
        if stamp: stamp_to(a, 73)
        left = [(c, ins, isvm and bool(ins)) for c, ins, av, isvm, sub in epq]
        if verbose: print("left epi cycles", sum(x[0] for x in left), "level", level['v'], "pending", pend, {k: v for k, v in pubs.items() if k >= E - 1})
        assert level['v'] & 15 == 15 and not pend
        st = dict(n=vm['n'], e3=landed.get("e3"), e2=landed.get("e2"), poll=mark.get("poll"))
        tailX, tailY = tails[kind[0]]
        a("s_nop 7")
        a("s_cmp_eq_u32 s33, 0")
        a(f"s_cbranch_scc0 {name}_tY{kind}")
        a("s_nop 1")
        tailX(f"{name}_x{kind}", left, dict(st))
        a.label(f"{name}_tY{kind}")
        a("s_nop 1")
        tailY(f"{name}_y{kind}", left, dict(st))
    body("g18")
    a.label(f"{name}_rsc")
    for x in conv_srd(FR, PRE): a(x)
    pro_end("c")
    body("c18")
    body("g19")
```

```python
from gen_fy_common import *
from gen_fy1 import clear_setup, conv_srd, img_dma, img_zero, conv_ptrs, conv_ssm

NST = 18
XCH = 2 * G2_STAGE
INFO = dict(k2=63)

def emit(a, groups):
    n = 0
    for g in groups:
        for x in g: a(x)
        n += 1
    return n

def spin(a, i, tag, t):
    a(f"s_bitcmp1_b32 s66, {i}")
    a(f"s_cbranch_scc1 {tag}_ok")
    a(f"s_movk_i32 s{sCNT}, 0x4000")
    a.label(f"{tag}_l")
    for x in poll_issue((2 << i) - 1): a(x)
    a("s_waitcnt vmcnt(0)")
    for x in poll_eval(t): a(x)
    a(f"s_bitcmp1_b32 s66, {i}")
    a(f"s_cbranch_scc1 {tag}_ok")
    a("s_sleep 2")
    a(f"s_sub_u32 s{sCNT}, s{sCNT}, 1")
    a(f"s_cbranch_scc0 {tag}_l")
    a.label(f"{tag}_ok")

def stamp_out(a, regs):
    a("s_waitcnt vmcnt(0)")
    a("s_memrealtime s[80:81]")
    a("s_memtime s[82:83]")
    a("s_waitcnt lgkmcnt(0)")
    a("s_sub_u32 s82, s82, s70")
    for kk, s in enumerate(regs): a(f"v_mov_b32 v{24+kk}, s{s}")
    a(f"s_lshl_b32 s70, s{sT}, 3")
    a("s_add_u32 s70, s70, s22")
    a("s_lshl_b32 s70, s70, 5")
    a("s_add_u32 s70, s70, 0x8000000")
    a("v_mov_b32 v32, s70")
    a("s_mov_b64 exec, 1")
    a("global_store_dwordx4 v32, v[24:27], s[6:7]")
    a("global_store_dwordx4 v32, v[28:31], s[6:7] offset:16")
def stamp_to(a, d):
    a("s_memtime s[80:81]"); a("s_waitcnt lgkmcnt(0)"); a(f"s_sub_u32 s{d}, s80, s70")

def late(a, tag, g):
    a("s_bitcmp1_b32 s67, 0")
    a(f"s_cbranch_scc1 {tag}_a1")
    spin(a, 0, f"{tag}_s0", 24)
    for x in st_k(g) + offA(): a(x)
    emit(a, dmaA(g * G2_STAGE))
    a.label(f"{tag}_a1")
    a("s_bitcmp1_b32 s67, 1")
    a(f"s_cbranch_scc1 {tag}_a2")
    spin(a, 1, f"{tag}_s1", 24)
    for x in st_k(2) + offA(): a(x)
    emit(a, dmaA_half(2 * G2_STAGE))
    a.label(f"{tag}_a2")
    a("s_waitcnt vmcnt(0)")

def tails(a, name, stamp=False):
    def epi(left):
        n = 0
        for c, ins, isvm in left:
            for x in ins: a(x)
            n += isvm
        return n
    def tailX(tag, left, st):
        n = st['n'] + epi(left)
        INFO['k2'] = min(INFO['k2'], n - st['e2'])
        a("s_cmp_eq_u32 s67, 3")
        a(f"s_cbranch_scc0 {name}_xlate")
        a(f"s_waitcnt vmcnt({min(63, n - st['e3'])})")
        a(f"s_branch {name}_cons")
    def tailY(tag, left, st):
        a(f"s_waitcnt vmcnt({min(63, st['n'] - st['poll'])})")
        for x in poll_eval(24): a(x)
        a("s_cmp_eq_u32 s67, 3")
        a(f"s_cbranch_scc1 {tag}_e")
        late(a, tag, 1)
        a.label(f"{tag}_e")
        for x in poll_issue(31) + st_off(3): a(x)
        emit(a, dmaA(3 * G2_STAGE) + dmaB(3 * G2_STAGE))
        a("s_barrier")
        spin(a, 2, f"{tag}_s2", 24)
        for x in st_off(4): a(x)
        emit(a, dmaA(0) + dmaB(0))
        epi(left)
        a(f"s_branch {name}_prod")
    def ctailX(tag, left, st):
        conv_head(a, stamp)
        epi(left)
        a(f"s_branch {name}_convx")
    def ctailY(tag, left, st):
        conv_head(a, stamp)
        a("s_waitcnt lgkmcnt(0)")
        a("s_barrier")
        epi(left)
        a(f"s_branch {name}_convy")
    return dict(g=(tailX, tailY), c=(ctailX, ctailY))

CA = 32; AF = 64; BF = 96; C9 = 128; AD = 160; AD9 = 164; HL = 168; H9 = 192
KR = 112; VR = 140; PK = 224; PV = 232; XO = 204
def conv_head(a, stamp):
    if stamp: stamp_to(a, 74)
    a("v_and_b32 v2, 63, v0")
    a("v_lshlrev_b32 v5, 4, v2")
    a("s_lshl_b32 s28, s78, 3")
    a("s_add_u32 s28, s28, s22")
    a("s_lshl_b32 s30, s28, 12")
    a("s_add_u32 s29, s78, 512")
    a("s_lshl_b32 s31, s29, 12")
    a("s_lshl_b32 s35, s22, 9")
    a("s_add_u32 s31, s31, s35")
    a(f"v_mov_b32 v{HL}, 0"); a(f"v_mov_b32 v{HL+1}, 0")
    a(f"v_mov_b32 v{H9}, 0"); a(f"v_mov_b32 v{H9+1}, 0")
    a("s_mov_b32 s39, 0")
    a("s_cmp_eq_u32 s22, 0")
    a("s_cselect_b32 s38, -2, -1")
    a("v_lshrrev_b32 v3, 4, v2")
    a("v_and_b32 v4, 15, v2")
    a("v_lshlrev_b32 v6, 1, v4")
    a("v_sub_u32 v6, v3, v6")
    a("v_add_u32 v6, 30, v6")
    a("v_lshrrev_b32 v7, 1, v6")
    a("v_xor_b32 v7, s22, v7")
    a("v_and_b32 v7, 7, v7")
    a("v_lshlrev_b32 v6, 7, v6")
    a("v_lshl_add_u32 v6, v7, 4, v6")
    rd = [f"ds_read_b128 {vr(BF+4*i,4)}, v6 offset:{PB + (7-i)*4096}" for i in range(8)]
    for b in range(4):
        a(f"buffer_load_dwordx4 {vr(HL+6*b+2,4)}, v5, s[24:27], s30 offen offset:{1024*b + 16}")
        a(rd.pop(0))
        if b == 0: a("s_mov_b64 exec, -2")
        a(f"buffer_load_dwordx2 {vr(HL+6*b,2)}, v5, s[24:27], s30 offen offset:{1024*b + 8}")
        if b == 0: a("s_mov_b64 exec, -1")
        a(rd.pop(0))
    a("s_mov_b32 exec_hi, 0")
    a(f"buffer_load_dwordx4 {vr(H9+2,4)}, v5, s[24:27], s31 offen offset:16")
    a("s_mov_b64 exec, s[38:39]")
    a(f"buffer_load_dwordx2 {vr(H9,2)}, v5, s[24:27], s31 offen offset:8")
    a("s_mov_b64 exec, -1")

def phase2(a, name, stamp=False, om=0, AB=1, nsleep=1, pre=0, dly=0, xm=1, TFS=7):
    poll = 1
    XM = ['', 'sc0 sc1', 'sc1', 'nt'][xm]
    OM = ['', 'sc0 sc1', 'nt'][om]
    a.label(f"{name}_xlate")
    late(a, f"{name}_xl", 0)
    a.label(f"{name}_cons")
    if stamp: stamp_to(a, 74)
    a("s_and_b32 s42, s22, 1")
    a("s_lshr_b32 s43, s22, 1")
    a("v_bfe_u32 v3, v0, 4, 2")
    a("v_and_b32 v4, 15, v0")
    a("v_lshrrev_b32 v5, 1, v3")
    a("v_lshlrev_b32 v5, 9, v5")
    a("v_and_b32 v6, 1, v3")
    a("v_lshl_add_u32 v5, v6, 4, v5")
    a("s_lshl_b32 s34, s42, 13")
    a("v_lshl_add_u32 v7, v4, 5, v5")
    a("v_add_u32 v16, s34, v7")
    a(f"v_add_u32 v17, {2*G2_STAGE}, v16")
    a("v_lshrrev_b32 v5, 2, v4")
    a("v_lshl_add_u32 v6, v3, 3, v5")
    a("v_mul_u32_u24 v6, 384, v6")
    a("v_and_b32 v7, 1, v0")
    a("v_lshl_add_u32 v6, v7, 4, v6")
    a("v_add_u32 v6, 16384, v6")
    a("v_lshrrev_b32 v5, 1, v5")
    a("v_and_b32 v7, 1, v3")
    a("v_lshl_add_u32 v5, v7, 1, v5")
    a("v_bfe_u32 v9, v0, 1, 1")
    a("v_xor_b32 v5, v5, v9")
    for jj4 in range(4):
        if jj4 % 2 == 0:
            a("s_mul_i32 s34, s43, 3")
            a(f"s_add_u32 s34, s34, {jj4>>1}")
            a("s_and_b32 s35, s34, 1")
            a("s_lshl_b32 s35, s35, 1")
            a("s_lshr_b32 s34, s34, 1")
            a("s_lshl_b32 s34, s34, 7")
            a("v_xor_b32 v7, s35, v5")
            a("v_lshl_add_u32 v7, v7, 5, v6")
            a("v_lshl_add_u32 v7, v9, 3, v7")
            a(f"v_add_u32 v{18+jj4}, s34, v7")
        else:
            a(f"v_xor_b32 v{18+jj4}, 8, v{17+jj4}")
        a(f"v_add_u32 v{22+jj4}, {2*G2_STAGE}, v{18+jj4}")
    FR = 32; ACC = 128
    def acc(mi, j): return ACC + (mi * 6 + j) * 4
    def fa(t, mi): return FR + (t & 1) * 40 + mi * 4
    def fb(t, j): return FR + (t & 1) * 40 + 16 + j * 4
    def read_ops(t):
        st = t >> 1; b = st % 4; tt = t & 1; bo = (b & 1) * G2_STAGE; bh = b >> 1
        ops = []
        for mi in range(4):
            ops.append(f"ds_read_b128 {vr(fa(t,mi),4)}, v{16+bh} offset:{bo + tt*1024 + mi*2048}")
        for j in range(6):
            off = bo + tt * 32 * 384 + (j >> 2) * 128
            ops.append(f"ds_read_b64_tr_b16 {vr(fb(t,j),2)}, v{18+4*bh+(j&3)} offset:{off}")
            ops.append(f"ds_read_b64_tr_b16 {vr(fb(t,j)+2,2)}, v{18+4*bh+(j&3)} offset:{off + 4*384}")
        A = ops[:4]; B = ops[4:]
        return [A[0], B[0], B[1], A[1], A[2], A[3]] + B[2:]
    a("s_setprio 1")
    a("s_barrier")
    if stamp: stamp_to(a, 75)
    for x in read_ops(0): a(x)
    a("s_waitcnt lgkmcnt(0)")
    extra = ws_srd(56, WS_OB, OB_BYTES) + [f"s_mul_i32 s44, s77, {OBS}", "s_mul_i32 s34, s22, 9216", "s_add_u32 s44, s44, s34",
             "v_and_b32 v5, 63, v0", "v_lshlrev_b32 v5, 4, v5", "s_mul_i32 s34, s22, 6144", f"s_add_u32 s34, s34, {XCH}", "v_add_u32 v6, s34, v5"]
    NT = 2 * NST
    for t in range(NT):
        st = t >> 1
        if (t & 1) and st + 1 < NST:
            if st == 1: a(f"s_waitcnt vmcnt({INFO['k2']})")
            if st == 3: a("s_waitcnt vmcnt(0)")
            a("s_barrier")
        rd = read_ops(t + 1) if t + 1 < NT else []
        order = [(j, mi) for j in range(6) for mi in range(4)]
        if t == NT - 1: order = [(j, mi) for mi in (1, 2, 3, 0) for j in range(6)]
        for j, mi in order:
            c = "0" if t == 0 else vr(acc(mi, j), 4)
            a(f"v_mfma_f32_16x16x32_bf16 {vr(acc(mi,j),4)}, {vr(fb(t,j),4)}, {vr(fa(t,mi),4)}, {c}")
            if rd: a(rd.pop(0))
            elif extra and t >= 2: a(extra.pop(0))
        if t + 1 < NT:
            a("s_waitcnt lgkmcnt(0)")
    assert not extra
    if stamp: stamp_to(a, 71)
    k = 0
    for mi in (1, 2, 3):
        for pq in range(3):
            t0 = acc(mi, 2 * pq); t1 = acc(mi, 2 * pq + 1)
            T = FR + (k % 4) * 4; k += 1
            a(f"v_cvt_pk_bf16_f32 v{T}, v{t0}, v{t0+1}")
            a(f"v_cvt_pk_bf16_f32 v{T+1}, v{t0+2}, v{t0+3}")
            a(f"v_cvt_pk_bf16_f32 v{T+2}, v{t1}, v{t1+1}")
            a(f"v_cvt_pk_bf16_f32 v{T+3}, v{t1+2}, v{t1+3}")
            for r in range(4): a(f"v_min_u32 v{T+r}, -2, v{T+r}")
            a(f"buffer_store_dwordx4 {vr(T,4)}, v5, s[56:59], s44 offen offset:{pq*1024} {XM if LX != 2 or mi == 1 else SC}")
        if mi < 3: a("s_add_u32 s44, s44, 3072")
    for j in range(6): a(f"ds_write_b128 v6, {vr(acc(0,j),4)} offset:{1024*j}")
    a("s_waitcnt lgkmcnt(0)")
    a("s_barrier")
    if stamp: stamp_out(a, (72, 80, 75, 71, 82, sT, 73, 74))
    a("s_endpgm")

    a.label(f"{name}_prod")
    if stamp: stamp_to(a, 74)
    issued = 21; landed = {2: 0, 3: 11, 4: 21}; pidx = 1
    QR = 32; QG = 48; S = 72; PU = 96; ZU = 144; vG = 44; vSL = 45; vSH = 46; vOM = 47
    vQ0, vQ1, vL16, vZ, vP0, vP1, vXR = 26, 27, 28, 29, 30, 31, 25
    for st in range(1, NST - 1):
        need = landed[st + 1]
        ev = st % 2 == 0 and st + 4 < NST
        if ev: need = max(need, pidx)
        a(f"s_waitcnt vmcnt({issued - need})")
        a("s_barrier")
        if st == 3:
            for x in pubmask(84) + publish(63, 24): a(x)
            issued += 1
        if st + 4 < NST:
            if ev and poll:
                for x in poll_eval(24): a(x)
                spin(a, (st + 4) >> 1, f"{name}_ps{st}", 24)
                if st + 6 < NST:
                    for x in poll_issue((8 << ((st + 4) >> 1)) - 1 & 0x1ff): a(x)
                    issued += 1; pidx = issued
            for x in st_off(st + 4): a(x)
            b = (st % 4) * G2_STAGE
            issued += emit(a, dmaA(b) + dmaB(b)); landed[st + 4] = issued
        def tf_loads():
            a("s_mov_b64 exec, s[36:37]")
            a(f"buffer_load_dword v12, v10, s[92:95], 0 offen {SC}")
            a("s_mov_b64 exec, s[38:39]")
            a(f"buffer_load_dword v13, v11, s[92:95], 0 offen {SC}")
            a("s_mov_b64 exec, -1")
        if st == TFS:
            a(f"s_and_b32 s23, s{sT}, 7")
            for i in (1, 2, 3):
                if LX == 1:
                    a(f"s_xor_b32 s34, s79, {i}")
                    a("s_sub_u32 s34, s34, s79")
                    a("s_mul_i32 s34, s34, 3")
                    a(f"s_add_u32 s{49+i}, s34, s77")
                elif LX == 2:
                    a(f"s_xor_b32 s34, s79, {i&1}")
                    a("s_sub_u32 s34, s34, s79")
                    a("s_mul_i32 s34, s34, 3")
                    a(f"s_xor_b32 s35, s23, {2*(i&2)}")
                    a("s_mul_i32 s35, s35, 24")
                    a("s_add_u32 s34, s34, s35")
                    a(f"s_add_u32 s{49+i}, s34, s78")
                else:
                    a(f"s_xor_b32 s34, s23, {2*i}")
                    a("s_mul_i32 s34, s34, 24")
                    a(f"s_add_u32 s{49+i}, s34, s78")
            if poll:
                a("v_and_b32 v10, 63, v0")
                a("v_lshlrev_b32 v10, 7, v10")
                a(f"v_add_u32 v10, {32768 + 192*128}, v10")
                a("v_mov_b32 v11, s50")
                a("v_writelane_b32 v11, s51, 1")
                a("v_writelane_b32 v11, s52, 2")
                a("v_lshlrev_b32 v11, 7, v11")
                a("v_add_u32 v11, 32768, v11")
                a("v_mov_b32 v12, 1")
                a("v_mov_b32 v13, 1")
                a("s_cmp_eq_u32 s86, 0")
                a("s_mov_b32 s36, 0xff008000")
                a("s_cselect_b32 s36, 0x80ffffff, s36")
                a("s_mov_b32 s37, 0x8000ffff")
                a("s_cselect_b32 s37, 0x80008000, s37")
                a("s_cmp_eq_u32 s86, 2")
                a("s_cselect_b64 s[36:37], -1, s[36:37]")
                a("s_lshl_b32 s34, 0x11111111, s84")
                a("s_and_b32 s36, s36, s34")
                a("s_and_b32 s37, s37, s34")
                a("s_and_b32 s38, s34, 7")
                a("s_mov_b32 s39, 0")
                tf_loads()
                issued += 2
        if st == NST - 5 and poll:
            tg = f"{name}_tf"
            a(f"s_movk_i32 s{sCNT}, 0x4000")
            a.label(f"{tg}_l")
            a("v_and_b32 v14, v12, v13")
            a("v_cmp_eq_u32 vcc, 1, v14")
            a("s_nop 1")
            a("s_cmp_eq_u64 vcc, -1")
            a(f"s_cbranch_scc1 {tg}_ok")
            a("s_sleep 4")
            tf_loads()
            a("s_waitcnt vmcnt(0)")
            a(f"s_sub_u32 s{sCNT}, s{sCNT}, 1")
            a(f"s_cbranch_scc0 {tg}_l")
            a.label(f"{tg}_ok")
        if st == NST - 4:
            a(f"s_load_dwordx2 s[44:45], s[0:1], {KA['out']}")
            for x in ws_srd(56, WS_OB, OB_BYTES): a(x)
            a("s_and_b32 s42, s22, 1")
            a("s_lshr_b32 s43, s84, 1")
            a("s_lshl_b32 s42, s42, 1")
            a("s_lshr_b32 s34, s79, 1")
            a("s_add_u32 s42, s42, s34")
            for x in pair_of(42, 29, 87, 88, 89, 34, 35): a(x)
            a("s_lshl_b32 s29, s29, 1")
            a("s_and_b32 s34, s79, 1")
            a("s_add_u32 s29, s29, s34")
            a(f"s_mul_i32 s30, s29, {16*1152}")
            a("s_mul_i32 s34, s86, 384")
            a("s_add_u32 s30, s30, s34")
            a("s_mul_i32 s34, s43, 192")
            a("s_add_u32 s30, s30, s34")
            a("v_bfe_u32 v3, v0, 4, 2")
            a("v_and_b32 v4, 15, v0")
            a(f"v_mul_u32_u24 v{vQ0}, 1152, v4")
            a(f"v_lshl_add_u32 v{vQ0}, v3, 4, v{vQ0}")
            a("v_lshrrev_b32 v5, 1, v3")
            a(f"v_lshl_add_u32 v10, v5, 3, v{vQ0}")
            a(f"v_xor_b32 v{vQ1}, 8, v10")
            for pq in range(3):
                a(f"buffer_load_dwordx2 {vr(QR+4*pq,2)}, v10, s[8:11], s30 offen offset:{64*pq}")
                a(f"buffer_load_dwordx2 {vr(QR+4*pq+2,2)}, v{vQ1}, s[8:11], s30 offen offset:{64*pq}")
            a("v_lshlrev_b32 v10, 2, v4")
            a("s_lshl_b32 s34, s29, 6")
            a(f"s_add_u32 s34, s34, {G_OFF}")
            a(f"buffer_load_dword v{vG}, v10, s[56:59], s34 offen {SC}")
            issued += 7
            a(f"v_and_b32 v{vL16}, 63, v0")
            a(f"v_lshlrev_b32 v{vL16}, 4, v{vL16}")
            a("s_mul_i32 s34, s84, 6144")
            a(f"s_add_u32 s34, s34, {XCH}")
            a(f"v_add_u32 v{vXR}, s34, v{vL16}")
            a(f"v_mul_u32_u24 v{vZ}, {OBS}, v3")
            a(f"v_lshl_add_u32 v{vZ}, v4, 4, v{vZ}")
            a("v_lshl_add_u32 v10, v3, 1, v5")
            a(f"v_mul_u32_u24 v{vP0}, {4*OBS}, v10")
            a(f"v_lshl_add_u32 v{vP0}, v4, 3, v{vP0}")
            a("v_xor_b32 v10, 1, v10")
            a(f"v_mul_u32_u24 v{vP1}, {4*OBS}, v10")
            a(f"v_lshl_add_u32 v{vP1}, v4, 3, v{vP1}")
            for i in (1, 2, 3):
                a(f"s_mul_i32 s{59+i}, s{49+i}, {OBS}")
                a("s_mul_i32 s34, s84, 9216")
                a(f"s_add_u32 s{59+i}, s{59+i}, s34")
                a(f"s_add_u32 s{59+i}, s{59+i}, {(i-1)*3072}")
            a("s_mul_i32 s63, s86, 24")
            a("s_mul_i32 s34, s43, 12")
            a("s_add_u32 s63, s63, s34")
            a("s_add_u32 s34, s63, 192")
            a(f"s_mul_i32 s64, s34, {OBS}")
            a("s_lshr_b32 s34, s29, 4")
            a("s_lshl_b32 s35, s34, 12")
            a("s_add_u32 s64, s64, s35")
            a("s_lshl_b32 s65, s34, 9")
            a("s_and_b32 s34, s29, 3")
            a("s_lshl_b32 s35, s34, 10")
            a("s_add_u32 s64, s64, s35")
            a("s_lshr_b32 s34, s34, 1")
            a("s_lshl_b32 s34, s34, 2")
            a("s_add_u32 s65, s65, s34")
            a("s_bfe_u32 s34, s29, 0x20002")
            a("s_lshl_b32 s35, s34, 8")
            a("s_add_u32 s64, s64, s35")
            a("s_lshl_b32 s34, s34, 7")
            a("s_add_u32 s65, s65, s34")
            a(f"s_add_u32 s65, s65, {192*OBS + 32768}")
            a("s_bitcmp1_b32 s29, 0")
            a("s_mov_b32 s31, 0x05040100")
            a("s_cselect_b32 s31, 0x07060302, s31")
            a("s_waitcnt lgkmcnt(0)")
            a("s_and_b32 s45, s45, 0xffff")
            a(f"s_mov_b32 s46, {2048*1152}")
            a("s_mov_b32 s47, 0x00020000")
    a("s_waitcnt vmcnt(0)")
    a(f"v_sub_f32 v{vOM}, 1.0, v{vG}")
    a(f"v_cvt_pk_bf16_f32 v{vSL}, v{vOM}, v{vOM}")
    a(f"v_and_b32 v{vSH}, 0xffff0000, v{vSL}")
    a(f"v_lshrrev_b32 v{vSL}, 16, v{vSL}")
    for i in range(12):
        a(f"v_lshlrev_b32 v{QG+2*i}, 16, v{QR+i}")
        a(f"v_and_b32 v{QG+2*i+1}, 0xffff0000, v{QR+i}")
    for i in range(24): a(f"v_mul_f32 v{QG+i}, v{QG+i}, v{vG}")
    a("v_cmp_lt_u32 s[52:53], 1, v3")
    def final(tag, pool):
        MK = [36, 38, 40, 54]
        def loads(grp):
            o = []
            if grp < 3:
                for pq in range(3): o.append(f"buffer_load_dwordx4 {vr(PU+16*grp+4*pq,4)}, v{vL16}, s[56:59], s{60+grp} offen offset:{1024*pq} {SC}")
            else:
                o.append(f"buffer_load_dwordx4 {vr(ZU,4)}, v{vZ}, s[56:59], s64 offen {SC}")
                if not pool:
                    for pq in (1, 2):
                        o.append(f"s_add_u32 s34, s64, {4*pq*OBS}")
                        o.append(f"buffer_load_dwordx4 {vr(ZU+4*pq,4)}, v{vZ}, s[56:59], s34 offen {SC}")
                else:
                    for pq in (1, 2):
                        for e in range(4):
                            o.append(f"s_add_u32 s34, s65, {(32*(pq-1) + e)*OBS}")
                            o.append(f"buffer_load_dword v{ZU+4+8*(pq-1)+e}, v{vP0}, s[56:59], s34 offen {SC}")
                            o.append(f"buffer_load_dword v{ZU+4+8*(pq-1)+4+e}, v{vP1}, s[56:59], s34 offen {SC}")
            return o
        def regs(grp):
            if grp < 3: return list(range(PU + 16 * grp, PU + 16 * grp + 12))
            return list(range(ZU, ZU + (20 if pool else 12)))
        if pre:
            for grp in range(4):
                for x in loads(grp): a(x)
        a("s_mov_b32 s67, 15")
        a("s_barrier")
        if stamp: stamp_to(a, 71)
        if dly: a(f"s_sleep {dly}")
        if not pre:
            for grp in range(4):
                for x in loads(grp): a(x)
        for j in range(6): a(f"ds_read_b128 {vr(S+4*j,4)}, v{vXR} offset:{1024*j}")
        a(f"s_movk_i32 s{sCNT}, 0x4000")
        a("s_waitcnt lgkmcnt(0)")
        for i in range(24): a(f"v_mul_f32 v{S+i}, v{vSH}, v{S+i}")
        if stamp == 2:
            a("s_waitcnt vmcnt(9)"); stamp_to(a, 73)
        a.label(f"{tag}_round")
        a("s_waitcnt vmcnt(0)")
        if stamp == 2: stamp_to(a, 74)
        for grp in range(4):
            r = regs(grp); t = 10 + grp
            a(f"v_max3_u32 v{t}, v{r[0]}, v{r[1]}, v{r[2]}")
            r = r[3:]
            while len(r) > 1:
                a(f"v_max3_u32 v{t}, v{t}, v{r[0]}, v{r[1]}"); r = r[2:]
            if r: a(f"v_max_u32 v{t}, v{t}, v{r[0]}")
            a(f"v_cmp_eq_u32 s[{MK[grp]}:{MK[grp]+1}], -1, v{t}")
        a("s_nop 1")
        a(f"s_or_b64 s[68:69], s[{MK[0]}:{MK[0]+1}], s[{MK[1]}:{MK[1]+1}]")
        a(f"s_or_b64 s[68:69], s[68:69], s[{MK[2]}:{MK[2]+1}]")
        a(f"s_or_b64 s[68:69], s[68:69], s[{MK[3]}:{MK[3]+1}]")
        a(f"s_cbranch_scc0 {tag}_nold")
        if nsleep: a(f"s_sleep {nsleep}")
        for grp in range(4):
            a(f"s_mov_b64 exec, s[{MK[grp]}:{MK[grp]+1}]")
            a(f"s_cbranch_execz {tag}_sk{grp}")
            for x in loads(grp): a(x)
            a.label(f"{tag}_sk{grp}")
        a("s_mov_b64 exec, -1")
        a.label(f"{tag}_nold")
        for grp in range(4):
            a(f"s_cmp_eq_u64 s[{MK[grp]}:{MK[grp]+1}], 0")
            a(f"s_cbranch_scc0 {tag}_na{grp}")
            a(f"s_bitcmp1_b32 s67, {grp}")
            a(f"s_cbranch_scc0 {tag}_na{grp}")
            a(f"s_bitset0_b32 s67, {grp}")
            if grp < 3:
                for i in range(12):
                    a(f"v_dot2_f32_bf16 v{S+2*i}, v{PU+16*grp+i}, v{vSL}, v{S+2*i}")
                    a(f"v_dot2_f32_bf16 v{S+2*i+1}, v{PU+16*grp+i}, v{vSH}, v{S+2*i+1}")
            else:
                ZT = ZU + 24
                zs = [ZU + i for i in range(12)]
                if pool:
                    for i in range(8):
                        a(f"v_perm_b32 v{ZT+24+i}, v{ZU+4+2*i+1}, v{ZU+4+2*i}, s31")
                        zs[4 + i] = ZT + 24 + i
                for i in range(12):
                    a(f"v_lshlrev_b32 v{ZT+2*i}, 16, v{zs[i]}")
                    a(f"v_and_b32 v{ZT+2*i+1}, 0xffff0000, v{zs[i]}")
                for i in range(24): a(f"v_fmac_f32 v{S+i}, v{QG+i}, v{ZT+i}")
            a.label(f"{tag}_na{grp}")
        a("s_cmp_eq_u32 s67, 0")
        a(f"s_cbranch_scc1 {tag}_fin")
        a(f"s_sub_u32 s{sCNT}, s{sCNT}, 1")
        a(f"s_cbranch_scc0 {tag}_round")
        a.label(f"{tag}_fin")
        if stamp: a(f"s_mov_b32 s75, s{sCNT}")
        a("s_nop 2")
        for pq in range(3):
            T = QR + 4 * pq; O = PU + 4 * pq
            for r in range(4): a(f"v_cvt_pk_bf16_f32 v{T+r}, v{S+8*pq+2*r}, v{S+8*pq+2*r+1}")
            for r in range(4): a(f"v_cndmask_b32 v{O+r}, v{T+r}, v{T+(r^2)}, s[52:53]")
            a(f"buffer_store_dwordx4 {vr(O,4)}, v{vQ0}, s[44:47], s30 offen offset:{64*pq} {OM}")
        if stamp: stamp_out(a, (72, 80, 75, 71, 82, sT, 73, 74))
        a("s_endpgm")
    a("s_cmp_eq_u32 s63, 60")
    a(f"s_cbranch_scc1 {name}_fpool")
    final(f"{name}_fn", False)
    a.label(f"{name}_fpool")
    final(f"{name}_fp", True)
    conv7(a, name, stamp=stamp, AB=AB)


def gate7(a, name, stamp):
    a.label(f"{name}_gate")
    a(f"s_load_dwordx2 s[8:9], s[0:1], {KA['q']}")
    a(f"s_load_dwordx2 s[16:17], s[0:1], {KA['gate_w']}")
    a(f"s_load_dwordx2 s[6:7], s[0:1], {KA['ws']}")
    a(f"s_load_dwordx2 s[28:29], s[0:1], {KA['dbg']}")
    for x in conv_ptrs(): a(x)
    a("v_lshrrev_b32 v1, 6, v0")
    a("v_and_b32 v2, 63, v0")
    a("v_readfirstlane_b32 s22, v1")
    a("v_and_b32 v3, 7, v2")
    a("v_lshrrev_b32 v4, 3, v2")
    a("s_lshl_b32 s50, s49, 3")
    a("s_add_u32 s50, s50, s22")
    a(f"s_mul_i32 s51, s50, {64*1152}")
    a("s_lshr_b32 s33, s22, 2")
    a("v_mul_u32_u24 v5, 1152, v4")
    a("v_lshl_add_u32 v5, v3, 4, v5")
    a("v_lshlrev_b32 v6, 4, v3")
    for k in range(4): a(f"v_mov_b32 v{12+k}, -1")
    a("v_lshlrev_b32 v7, 4, v2")
    a("s_waitcnt lgkmcnt(0)")
    for x in in_srd(8, 8, 2048 * 1152) + in_srd(16, 16, 1152) + in_srd(28, 28, 256) + clear_setup() + ws_srd(92, WS_FL, FL_BYTES) + pubmask(22): a(x)
    a("s_cmp_eq_u32 s49, 0")
    a(f"s_cbranch_scc0 {name}_gnc")
    for k in range(4): a(f"v_mov_b32 v{16+k}, 0")
    a("s_lshl_b32 s34, s22, 13")
    a("s_add_u32 s35, s34, 4096")
    for k in range(8): a(f"buffer_store_dwordx4 v[16:19], v7, s[92:95], s{34 + (k>>2)} offen offset:{1024*(k&3)} {SC}")
    a("s_waitcnt vmcnt(0)")
    a("s_barrier")
    a("s_and_b64 exec, s[100:101], 1")
    a(f"buffer_store_dword v12, off, s[28:31], 0 {SC}")
    a("s_mov_b64 exec, -1")
    a.label(f"{name}_gnc")
    GW = 16; QQ = 64
    for j in range(9): a(f"buffer_load_dwordx4 {vr(GW+4*j,4)}, v6, s[16:19], 0 offen offset:{128*j}")
    def qld(st):
        b = QQ + (st % 5) * 36
        for j in range(9): a(f"buffer_load_dwordx4 {vr(b+4*j,4)}, v5, s[8:11], s51 offen offset:{128*j}")
        a(f"s_add_u32 s51, s51, {8*1152}")
    for st in range(5): qld(st)
    a("v_mov_b32 v10, 0")
    for st in range(8):
        b = QQ + (st % 5) * 36
        a(f"s_waitcnt vmcnt({9 * (min(8, st + 5) - st - 1)})")
        a("v_mov_b32 v8, 0"); a("v_mov_b32 v9, 0")
        for k in range(36): a(f"v_dot2_f32_bf16 v{8+(k&1)}, v{b+k}, v{GW+k}, v{8+(k&1)}")
        a("s_nop 3")
        if st + 5 < 8: qld(st + 5)
        a("v_add_f32 v8, v8, v9")
        a("s_nop 1")
        a("v_add_f32_dpp v8, v8, v8 quad_perm:[1,0,3,2] row_mask:0xf bank_mask:0xf")
        a("s_nop 1")
        a("v_add_f32_dpp v8, v8, v8 quad_perm:[2,3,0,1] row_mask:0xf bank_mask:0xf")
        a("s_nop 1")
        a("v_add_f32_dpp v8, v8, v8 row_half_mirror row_mask:0xf bank_mask:0xf")
        a(f"v_cmp_eq_u32 vcc, {st}, v3")
        a("v_cndmask_b32 v10, v10, v8, vcc")
    for k in range(5):
        a(f"buffer_store_dwordx4 v[12:15], v7, s[56:59], s69 offen {SC}")
        a("s_add_u32 s69, s69, 1024")
    a("v_cvt_pk_bf16_f32 v11, v10, v10")
    a("v_lshlrev_b32 v10, 16, v11")
    a("v_mul_f32 v10, 0xbfb8aa3b, v10")
    a("v_exp_f32 v10, v10")
    a("s_nop 0")
    a("v_add_f32 v10, 1.0, v10")
    a("v_rcp_f32 v10, v10")
    a("s_nop 0")
    a("v_cvt_pk_bf16_f32 v11, v10, v10")
    a("v_lshlrev_b32 v10, 16, v11")
    a("v_lshl_add_u32 v11, v3, 3, v4")
    a("v_lshlrev_b32 v11, 2, v11")
    a("s_lshl_b32 s50, s50, 8")
    a(f"s_add_u32 s50, s50, {G_OFF}")
    a(f"buffer_store_dword v10, v11, s[56:59], s50 offen {SC}")
    for x in conv_srd(24, 19) + conv_ssm() + ["v_mov_b32 v1, v19", "v_mov_b32 v2, v20"] + img_zero(24): a(x)
    a(f"s_movk_i32 s{sCNT}, 0x4000")
    a.label(f"{name}_gl")
    a("s_mov_b64 exec, 1")
    a(f"buffer_load_dword v{vPL}, off, s[28:31], 0 {SC}")
    a("s_mov_b64 exec, -1")
    a("s_waitcnt vmcnt(0)")
    a(f"v_readfirstlane_b32 s34, v{vPL}")
    a("s_cmp_lg_u32 s34, 0")
    a(f"s_cbranch_scc1 {name}_gok")
    a("s_sleep 2")
    a(f"s_sub_u32 s{sCNT}, s{sCNT}, 1")
    a(f"s_cbranch_scc0 {name}_gl")
    a.label(f"{name}_gok")
    a("s_waitcnt lgkmcnt(0)")
    a("s_barrier")
    for x in publish(1, 24, sTFO): a(x)
    a(f"s_mov_b32 s{sPFO}, 0")
    a(f"v_mov_b32 v{vPL}, 0")
    kv_wait(a, f"{name}_gkw", 24)
    a("s_mov_b64 s[100:101], 0")
    a("s_barrier")
    emit(a, img_dma())
    a("s_waitcnt vmcnt(0)")
    a("s_barrier")
    conv_head(a, stamp)
    a("s_cmp_eq_u32 s33, 0")
    a(f"s_cbranch_scc1 {name}_convx")
    a("s_waitcnt lgkmcnt(0)")
    a("s_barrier")
    a("s_barrier")
    a(f"s_branch {name}_convy")

def conv7(a, name, stamp=False, AB=1):
    def setup():
        a(f"s_mul_i32 s32, s22, {CS}")
        a(f"s_add_u32 s32, s32, {PB}")
        a("v_lshlrev_b32 v16, 3, v2")
        a("v_add_u32 v16, s32, v16")
        a("v_lshlrev_b32 v10, 5, v4")
        a("v_lshlrev_b32 v11, 4, v3")
        a("v_sub_u32 v11, v11, v10")
        a("s_lshl_b32 s34, s22, 6")
        a(f"s_add_u32 s34, s34, {X9 + 480}")
        a("v_add_u32 v13, s34, v11")
        a("s_add_u32 s34, s32, 32")
        a("v_add_u32 v14, s34, v5")
        a(f"v_add_u32 v7, {2*PL}, v14")
        a(f"s_add_u32 s34, s35, {PB + 8*CS + 32}")
        a("v_add_u32 v15, s34, v5")
        a(f"v_add_u32 v8, {2*PL}, v15")
        a("v_sub_u32 v17, 3, v4")
        a("v_and_b32 v17, 3, v17")
        a(f"v_mul_u32_u24 v18, {PL + 2}, v17")
        a("v_lshl_add_u32 v18, v4, 1, v18")
        a("v_lshl_add_u32 v18, v3, 4, v18")
        a("v_add_u32 v18, 2, v18")
        a("v_add_u32 v20, s32, v18")
        a("v_add_u32 v21, 2048, v20")
        a("s_lshl_b32 s34, s22, 6")
        a(f"s_add_u32 s34, s34, {PB + 8*CS}")
        a("v_add_u32 v22, s34, v18")
        a("v_add_u32 v23, 2048, v22")
        for x in ws_srd(16, WS_OB, OB_BYTES): a(x)
        a("v_lshl_add_u32 v17, v3, 3, v4")
        a("v_sub_u32 v17, 15, v17")
        a("v_and_b32 v18, 1, v17")
        a("v_lshlrev_b32 v18, 4, v18")
        a("v_lshrrev_b32 v17, 1, v17")
        for s, ch in ((60, 28), (61, 29)):
            a(f"s_and_b32 s34, s{ch}, 1")
            a("s_lshl_b32 s34, s34, 4")
            a(f"s_lshr_b32 s{s}, s{s}, s34")
            a(f"s_and_b32 s{s}, s{s}, 0xffff")
        a("s_cmp_eq_u32 s22, 0")
        a("s_cselect_b32 s61, s61, 0")
        a("v_lshlrev_b32 v19, v18, s60")
        a("v_lshlrev_b32 v18, v18, s61")
        for q in range(4):
            a(f"v_cmp_eq_u32 vcc, {q}, v17")
            a(f"v_cndmask_b32 v{AD+q}, 0, v19, vcc")
            a(f"v_cndmask_b32 v{AD9+q}, 0, v18, vcc")
    def zero_hdr():
        Z = 56
        for k in range(4): a(f"v_mov_b32 v{Z+k}, 0")
        a(f"v_bfe_u32 v{Z+4}, v2, 1, 2")
        a(f"v_mul_u32_u24 v{Z+4}, {PL}, v{Z+4}")
        a(f"v_and_b32 v{Z+5}, 1, v2")
        a(f"v_lshl_add_u32 v{Z+4}, v{Z+5}, 4, v{Z+4}")
        a(f"v_add_u32 v{Z+5}, s32, v{Z+4}")
        a(f"ds_write_b128 v{Z+5}, {vr(Z,4)}")
        a(f"ds_write_b128 v{Z+4}, {vr(Z,4)} offset:{PB + 8*CS}")
    def copies(h, t, va, vb, off, which):
        p2, p3, r = h, h + 1, h + 2
        src = [p2, p3, r, r + 1, r + 2, r + 3]
        if 0 in which: a(f"ds_write_b128 v{va}, {vr(r,4)} offset:{off}")
        if 1 in which:
            for k in range(4): a(f"v_alignbit_b32 v{t+k}, v{src[k+2]}, v{src[k+1]}, 16")
            a(f"ds_write_b128 v{va}, {vr(t,4)} offset:{off + PL}")
        if 2 in which:
            for k in range(4): a(f"v_mov_b32 v{t+4+k}, v{src[k+1]}")
            a(f"ds_write_b128 v{vb}, {vr(t+4,4)} offset:{off}")
        if 3 in which:
            for k in range(4): a(f"v_alignbit_b32 v{t+8+k}, v{src[k+1]}, v{src[k]}, 16")
            a(f"ds_write_b128 v{vb}, {vr(t+8,4)} offset:{off + PL}")
    def pool_copies():
        a("s_mov_b32 exec_hi, 0")
        copies(H9, C9, 15, 8, 0, (0, 1, 2, 3))
        a("s_mov_b64 exec, -1")
    def areads(r, va):
        return [f"ds_read2_b64 {vr(AF+4*i,4)}, v{va + (i>>2)} offset0:{64*(i&3) + 8*r} offset1:{64*(i&3) + 8*r + 1}" for i in range(8)]
    CT = 200
    a.label(f"{name}_convx")
    setup()
    a("s_barrier")
    a("s_waitcnt vmcnt(0)")
    for b in range(4): copies(HL + 6 * b, CT + 12 * b, 14, 7, 1024 * b, (1, 2, 3))
    pool_copies()
    a("s_waitcnt lgkmcnt(0)")
    a("s_barrier")
    zero_hdr()
    for b in range(4): copies(HL + 6 * b, CT + 12 * b, 14, 7, 1024 * b, (0,))
    for x in areads(0, 20): a(x)
    a("s_waitcnt lgkmcnt(0)")
    a(f"s_branch {name}_cloop")
    a.label(f"{name}_convy")
    setup()
    zero_hdr()
    a("s_waitcnt vmcnt(0)")
    for b in range(4): copies(HL + 6 * b, CT + 12 * b, 14, 7, 1024 * b, (0, 1, 2, 3))
    pool_copies()
    for x in areads(0, 20): a(x)
    a("s_waitcnt lgkmcnt(0)")
    a("s_barrier")
    a.label(f"{name}_cloop")
    if stamp: stamp_to(a, 75)
    def dpp_ops():
        o = []
        for i in range(7, -1, -1):
            for q in range(4):
                o.append(f"v_mov_b32_dpp v{BF+4*i+q}, v{BF+4*i+q} row_shr:2 row_mask:0xf bank_mask:0xf bound_ctrl:0")
            if i:
                for q in range(4):
                    o.append(f"v_mov_b32_dpp v{BF+4*i+q}, v{BF+4*(i-1)+q} row_shl:14 row_mask:0xf bank_mask:0xf")
        return o
    for st in range(9):
        acc = CA if st < 8 else C9
        a("s_setprio 1")
        ms = []
        if st in (0, 8):
            for nt in range(8): ms.append((nt, AD if st == 0 else AD9, nt, True))
        for aa in range(8):
            for nt in range(aa, 8): ms.append((nt, AF + 4 * aa, nt - aa, False))
        for k, (nt, af, bi, zero) in enumerate(ms):
            c = "0" if zero else vr(acc + 4 * nt, 4)
            a(f"v_mfma_f32_16x16x32_bf16 {vr(acc+4*nt,4)}, {vr(BF+4*bi,4)}, {vr(af,4)}, {c}")
            if k + 1 == len(ms) - AB:
                a("s_setprio 3")
                a("s_barrier")
        a("s_setprio 0")
        if st == 0:
            for x in publish(63, 24): a(x)
        if st < 7:
            rd = areads(st + 1, 20); dp = dpp_ops()
            for j, x in enumerate(dp):
                if j % 6 == 0 and rd: a(rd.pop(0))
                a(x)
            for x in rd: a(x)
        elif st == 7:
            for x in areads(0, 22): a(x)
            for i in range(8): a(f"ds_read_b128 {vr(BF+4*i,4)}, v13 offset:{3584 - 512*i}")
            for nt in range(8):
                y = CA + 4 * nt
                a(f"v_cvt_pk_bf16_f32 v{HL+2*nt}, v{y}, v{y+1}")
                a(f"v_cvt_pk_bf16_f32 v{HL+2*nt+1}, v{y+2}, v{y+3}")
                a(f"ds_write_b64 v16, {vr(HL+2*nt,2)} offset:{512*nt}")
        else:
            a(f"s_add_u32 s34, s32, {PL}")
            a("v_add_u32 v17, s34, v5")
            a("s_nop 7")
            a("s_nop 3")
            for nt in range(8): a(f"ds_write_b128 v17, {vr(C9+4*nt,4)} offset:{(nt>>2)*PL + 1024*(nt&3)}")
        a("s_waitcnt lgkmcnt(0)")
        if st == 8:
            a("s_cmp_lt_u32 s22, 4")
            a(f"s_cbranch_scc0 {name}_ppy")
            a("s_barrier")
            a.label(f"{name}_ppy")
        else:
            a("s_barrier")
    a("s_barrier")
    if stamp: stamp_to(a, 71)
    a("s_bitcmp1_b32 s78, 1")
    a(f"s_cselect_b32 s42, {4*CS}, 0")
    a(f"s_cselect_b32 s43, 0, {4*CS}")
    a(f"s_add_u32 s42, s42, {PB}")
    a(f"s_add_u32 s43, s43, {PB}")
    a("v_lshl_add_u32 v17, v0, 3, s42")
    a("v_lshl_add_u32 v18, v0, 3, s43")
    for e in range(8): a(f"ds_read_b64 {vr(AF+2*e,2)}, v{17 + (e>>2)} offset:{(e&3)*CS}")
    a("s_and_b32 s42, s22, 3")
    a("s_lshl_b32 s42, s42, 10")
    a(f"s_mul_i32 s43, s33, {PL}")
    a("s_add_u32 s42, s42, s43")
    a(f"s_add_u32 s42, s42, {PB + PL}")
    a("v_add_u32 v19, s42, v5")
    for e in range(8): a(f"ds_read_b128 {vr(BF+4*e,4)}, v19 offset:{e*CS}")
    a("s_mov_b32 s56, 0x05040100")
    a("s_mov_b32 s57, 0x07060302")
    a(f"s_mul_i32 s58, s77, {OBS}")
    a("s_lshl_b32 s59, s22, 9")
    a("s_add_u32 s59, s59, s58")
    a("s_add_u32 s59, s59, 32768")
    a("s_lshl_b32 s60, s22, 12")
    a("s_add_u32 s58, s58, s60")
    a("v_lshlrev_b32 v21, 3, v2")
    a("s_waitcnt lgkmcnt(8)")
    for j in range(4):
        for p in range(4):
            a(f"v_perm_b32 v{CA+4*j+p}, v{AF+2*(2*p+1)+(j>>1)}, v{AF+2*(2*p)+(j>>1)}, s{57 if j&1 else 56}")
        for p in range(4): a(f"v_min_u32 v{CA+4*j+p}, -2, v{CA+4*j+p}")
        a(f"buffer_store_dwordx4 {vr(CA+4*j,4)}, v5, s[16:19], s58 offen offset:{1024*j} {SC}")
    a("s_waitcnt lgkmcnt(0)")
    for e in range(1, 8):
        a(f"v_pk_add_f32 {vr(BF,2)}, {vr(BF,2)}, {vr(BF+4*e,2)}")
        a(f"v_pk_add_f32 {vr(BF+2,2)}, {vr(BF+2,2)}, {vr(BF+4*e+2,2)}")
    a(f"v_cvt_pk_bf16_f32 v{CA+20}, v{BF}, v{BF+1}")
    a(f"v_cvt_pk_bf16_f32 v{CA+21}, v{BF+2}, v{BF+3}")
    a(f"v_min_u32 v{CA+20}, -2, v{CA+20}")
    a(f"v_min_u32 v{CA+21}, -2, v{CA+21}")
    a(f"buffer_store_dwordx2 {vr(CA+20,2)}, v21, s[16:19], s59 offen {SC}")
    if stamp:
        a(f"s_add_u32 s76, s{sT}, 1000")
        stamp_out(a, (72, 80, 75, 71, 82, 76, 73, 74))
    a("s_endpgm")
```

```python
from gen_common import *
import os
WS_OB = 0x1400000; OBS = 40960; OB_BYTES = 256 * OBS + 8192
G_OFF = 256 * OBS
WS_XR = 0x3000000; XR_BYTES = 576 * 4096
LDS_ALL = 163840
SC = "sc0 sc1"
sT, sCNT, sTFO = 96, 98, 99
sPFO = 2
I_A1, I_A2, I_MID, I_B1, I_FIN, I_KV = 0, 1, 2, 3, 4, 5
LDS_SCR = 83968
LX = int(os.environ.get('LX', 0))
WS_FL = WS_OB + OB_BYTES; FL_BYTES = 65536
G2_STAGE = 40960
BBIAS = 2048
vB = [1, 2, 6]; vA = 3; vPA = 22; vPL = 9

def conv_masks():
    ms = []
    for par in range(2):
        pick = []
        if par: pick.append(31)
        for want in (4, 3, 2, 1, 0):
            for idx in range(32):
                r = 32 * par + idx
                if r < 63 and r % 7 == want and len(pick) < 8: pick.append(idx)
        ms.append(sum(1 << i for i in pick))
    return ms
CM = conv_masks()

def p2_ids(cv, ob, gi, t0, t1):
    return [f"s_lshr_b32 s{t0}, s{sT}, 3",
            f"s_bitcmp1_b32 s{sT}, 0",
            f"s_mov_b32 s{t1}, {CM[0]}",
            f"s_cselect_b32 s{t1}, {CM[1]}, s{t1}",
            f"s_lshr_b32 s{cv}, s{t1}, s{t0}",
            f"s_and_b32 s{cv}, s{cv}, 1",
            f"s_bfm_b32 s{gi}, s{t0}, 0",
            f"s_and_b32 s{gi}, s{gi}, s{t1}",
            f"s_bcnt1_i32_b32 s{gi}, s{gi}",
            f"s_sub_u32 s{t0}, s{t0}, s{gi}",
            f"s_and_b32 s{t1}, s{sT}, 7",
            f"s_mul_i32 s{ob}, s{t1}, 24",
            f"s_add_u32 s{ob}, s{ob}, s{t0}",
            f"s_lshl_b32 s{t1}, s{t1}, 3",
            f"s_add_u32 s{gi}, s{gi}, s{t1}",
            f"s_add_u32 s{t1}, s{gi}, 192",
            f"s_cmp_eq_u32 s{cv}, 1",
            f"s_cselect_b32 s{gi}, s{gi}, s{t0}",
            f"s_cselect_b32 s{ob}, s{t1}, s{ob}"]

def ws_srd(d, off, nbytes):
    return [f"s_add_u32 s{d}, s6, {off}", f"s_addc_u32 s{d+1}, s7, 0", f"s_and_b32 s{d+1}, s{d+1}, 0xffff",
            f"s_mov_b32 s{d+2}, {nbytes}", f"s_mov_b32 s{d+3}, 0x00020000"]
def in_srd(d, p, nbytes):
    o = [] if d == p else [f"s_mov_b32 s{d}, s{p}"]
    return o + [f"s_and_b32 s{d+1}, s{p+1}, 0xffff", f"s_mov_b32 s{d+2}, {nbytes}", f"s_mov_b32 s{d+3}, 0x00020000"]

def publish(val, vt, so=sPFO):
    return [f"v_mov_b32 v{vt}, {val}", f"v_lshlrev_b32 v{vt+1}, 2, v0", f"v_and_b32 v{vt+1}, 127, v{vt+1}", "s_mov_b64 exec, s[100:101]",
            f"buffer_store_dword v{vt}, v{vt+1}, s[92:95], s{so} offen {SC}", "s_mov_b64 exec, -1"]
def pubmask(sw):
    return [f"s_cmp_eq_u32 s{sw}, 0", "s_cselect_b32 s100, -1, 0", "s_mov_b32 s101, 0"]

KT = {(0, 0): [0,2,1,3,4,6,8,5,7], (0, 1): [1,3,0,2,5,7,4,6,8], (1, 0): [8,6,7,5,4,2,0,3,1], (1, 1): [7,5,8,6,3,1,4,2,0]}
def ktab(par, tau): return sum(n << (4 * i) for i, n in enumerate(KT[(par, tau)]))

def pair_of(j, d_pi, d_spa, d_spb, d_mid, t0, t1):
    return [f"s_and_b32 s{t0}, s85, 3", f"s_lshl_b32 s{t0}, s{t0}, 1", f"s_lshr_b32 s{t1}, s{j}, 1", f"s_add_u32 s{d_spa}, s{t0}, s{t1}",
            f"s_lshr_b32 s{t0}, s85, 2", f"s_lshl_b32 s{t0}, s{t0}, 1", f"s_and_b32 s{t1}, s{j}, 1", f"s_add_u32 s{t0}, s{t0}, s{t1}",
            f"s_lshl_b32 s{t1}, s32, 2", f"s_add_u32 s{t1}, s{t1}, s{t0}",
            f"s_add_u32 s{t0}, s{t1}, s32",
            f"s_cmp_eq_u32 s{d_spa}, 7", f"s_cselect_b32 s{d_mid}, 1, 0", f"s_cselect_b32 s{d_spa}, s{t1}, s{d_spa}", f"s_cselect_b32 s{t0}, 4, s{t0}",
            f"s_mul_i32 s{d_pi}, s{d_spa}, 9", f"s_add_u32 s{d_pi}, s{d_pi}, s{t0}",
            f"s_cmp_eq_u32 s{d_spa}, 6", f"s_addc_u32 s{d_pi}, s{d_pi}, 0",
            f"s_mov_b32 s{d_spb}, s{d_spa}",
            f"s_cmp_eq_u32 s{d_spa}, 7", f"s_cselect_b32 s{d_pi}, 54, s{d_pi}", f"s_cselect_b32 s{d_spa}, 5, s{d_spa}", f"s_cselect_b32 s{d_spb}, 6, s{d_spb}"]

def g2_ids():
    o = [f"s_and_b32 s32, s{sT}, 1", f"s_bfe_u32 s79, s{sT}, 0x20001",
          "s_mul_i32 s85, s78, 43", "s_lshr_b32 s85, s85, 7", "s_and_b32 s85, s85, 7",
          "s_mul_i32 s34, s85, 3", "s_sub_u32 s86, s78, s34", "s_min_u32 s86, s86, 2",
          "s_and_b32 s84, s22, 3"]
    if LX == 1:
        o += ["s_lshl_b32 s34, s79, 1", "s_and_b32 s79, s85, 3", "s_lshr_b32 s85, s85, 2", "s_add_u32 s85, s85, s34"]
    if LX == 2:
        o += ["s_and_b32 s34, s79, 1", "s_lshl_b32 s34, s34, 2", "s_and_b32 s79, s79, 2", "s_and_b32 s35, s85, 1", "s_add_u32 s79, s79, s35",
              "s_lshr_b32 s85, s85, 1", "s_add_u32 s85, s85, s34"]
    return o
def g2_scal():
    o = g2_ids()
    o += pair_of(84, 3, 87, 88, 89, 34, 35)
    o += ["s_lshl_b32 s3, s3, 12", f"s_mul_i32 s34, s79, {18*262144}", "s_add_u32 s3, s3, s34",
          "s_and_b32 s34, s79, 1", "s_lshl_b32 s34, s34, 11", "s_add_u32 s60, s3, s34", "s_sub_u32 s61, s3, s34",
          "s_lshr_b32 s34, s84, 1", "s_lshl_b32 s34, s34, 2", "s_and_b32 s35, s84, 1", "s_add_u32 s35, s35, s34",
          f"s_mul_i32 s62, s79, {18*73728}", f"s_mul_i32 s34, s35, {8*1152}", "s_add_u32 s62, s62, s34",
          "s_mul_i32 s34, s86, 384", "s_add_u32 s62, s62, s34",
          "s_mul_i32 s41, s35, 3072", "s_add_u32 s41, s41, 16384",
          "s_lshr_b32 s34, s79, 1", "s_xor_b32 s34, s34, s84", "s_lshl_b32 s40, s34, 12",
          f"s_sub_u32 s12, s12, {BBIAS}", "s_subb_u32 s13, s13, 0", "s_and_b32 s13, s13, 0xffff", f"s_mov_b32 s14, {4608*1152 + BBIAS}", "s_mov_b32 s15, 0x00020000"]
    for lo in (1, 0):
        f = (lambda v: v & 0xffffffff) if lo else (lambda v: v >> 32)
        d = 54 if lo else 55
        o += ["s_cmp_lt_u32 s85, 4", f"s_mov_b32 s34, {f(ktab(0,1))}", f"s_cselect_b32 s34, {f(ktab(0,0))}, s34",
              f"s_mov_b32 s35, {f(ktab(1,1))}", f"s_cselect_b32 s35, {f(ktab(1,0))}, s35",
              "s_cmp_eq_u32 s32, 0", f"s_cselect_b32 s{d}, s34, s35"]
    return o

def b_off(i, t, d):
    return [f"v_and_b32 v{t}, 63, v0", f"v_add_u32 v{t}, {64*i}, v{t}",
            f"v_mul_u32_u24 v{t+1}, 2731, v{t}", f"v_lshrrev_b32 v{t+1}, 16, v{t+1}",
            f"v_mul_u32_u24 v{t+2}, 24, v{t+1}", f"v_sub_u32 v{t}, v{t}, v{t+2}",
            f"v_and_b32 v{t+2}, 2, v{t+1}", f"v_xor_b32 v{t}, v{t}, v{t+2}",
            f"v_bfe_u32 v{t+2}, v0, 6, 1", f"v_lshlrev_b32 v{t+2}, 2, v{t+2}", f"v_xor_b32 v{t}, v{t}, v{t+2}",
            f"v_mul_u32_u24 v{t+1}, 1152, v{t+1}",
            f"v_add_u32 v{t+1}, {BBIAS - 1024*i}, v{t+1}",
            f"v_lshl_add_u32 v{d}, v{t}, 4, v{t+1}"]
def a_off():
    return [f"v_and_b32 v{vA}, 63, v0", f"v_lshlrev_b32 v{vA}, 4, v{vA}"]

def st_k(st):
    i = st >> 1
    o = [f"s_bfe_u32 s3, s{54 + (i >> 3)}, {hex(0x40000 | (4 * (i & 7)))}", "s_lshl_b32 s3, s3, 1"]
    if st & 1: o.append("s_add_u32 s3, s3, 1")
    return o
def offA(): return ["s_lshl_b32 s21, s3, 18", "s_add_u32 s20, s21, s60", "s_add_u32 s21, s21, s61"]
def offB(): return ["s_mul_i32 s3, s3, 73728", "s_add_u32 s3, s3, s62"]
def st_off(st): return st_k(st) + offA() + offB()
def dmaA(buf):
    g = [[f"s_add_u32 m0, s40, {buf}", "s_nop 0", f"buffer_load_dwordx4 v{vA}, s[16:19], s20 offen {SC} lds"]]
    for j in range(1, 4): g.append([f"buffer_load_dwordx4 v{vA}, s[16:19], s{20 if j < 2 else 21} offen offset:{1024*j} {SC} lds"])
    return g
def dmaB(buf):
    g = []
    for hh in range(2):
        for j in range(3):
            o = []
            if j == 0: o = [f"s_add_u32 m0, s41, {buf}", "s_nop 0"] if hh == 0 else ["s_add_u32 m0, m0, 6144", f"s_add_u32 s3, s3, {16*1152}"]
            off = f" offset:{1024*j}" if j else ""
            o.append(f"buffer_load_dwordx4 v{vB[j]}, s[12:15], s3 offen{off} lds")
            g.append(o)
    return g
def dmaA_half(buf):
    return [["s_add_u32 s21, s21, 2048", "s_cmp_eq_u32 s33, 0", "s_cselect_b32 s20, s20, s21", "s_lshl_b32 s21, s33, 11", "s_add_u32 s21, s21, s40", f"s_add_u32 m0, s21, {buf}", "s_nop 0",
             f"buffer_load_dwordx4 v{vA}, s[16:19], s20 offen {SC} lds"],
            [f"buffer_load_dwordx4 v{vA}, s[16:19], s20 offen offset:1024 {SC} lds"]]
def dmaB_half(buf):
    g = [[f"s_mul_i32 s21, s33, {16*1152}", "s_add_u32 s3, s3, s21", "s_mul_i32 s21, s33, 6144", "s_add_u32 s21, s21, s41", f"s_add_u32 m0, s21, {buf}", "s_nop 0",
          f"buffer_load_dwordx4 v{vB[0]}, s[12:15], s3 offen lds"]]
    for j in (1, 2): g.append([f"buffer_load_dwordx4 v{vB[j]}, s[12:15], s3 offen offset:{1024*j} lds"])
    return g

def poll_addr(t, d):
    return [f"v_and_b32 v{t}, 15, v0", f"v_lshlrev_b32 v{t}, 2, v{t}",
            f"v_lshrrev_b64 v[{t+2}:{t+3}], v{t}, s[54:55]", f"v_and_b32 v{t}, 15, v{t+2}",
            f"v_mov_b32 v{t+1}, s87", f"v_mov_b32 v{t+2}, s88", f"v_and_b32 v{t+3}, 16, v0", f"v_cmp_eq_u32 vcc, 0, v{t+3}",
            f"v_cndmask_b32 v{t+1}, v{t+2}, v{t+1}, vcc",
            f"v_mad_u32_u24 v{t+1}, v{t}, 7, v{t+1}", f"v_lshrrev_b32 v{t+3}, 5, v{t+1}",
            f"s_mul_i32 s34, s79, {63*128}", f"v_lshl_add_u32 v{t+1}, v{t+1}, 7, s34",
            "s_lshr_b32 s34, s85, 2", f"v_xor_b32 v{t}, s34, v{t}", f"v_and_b32 v{t}, 1, v{t}", f"v_xor_b32 v{t+3}, s32, v{t+3}",
            f"v_mad_u32_u24 v{t}, v{t+3}, 3, v{t}",
            "s_cmp_eq_u32 s89, 1", "s_cselect_b64 vcc, -1, 0", f"v_cndmask_b32 v{t}, v{t}, 2, vcc",
            f"v_lshl_add_u32 v{d}, v{t}, 2, v{t+1}"]
def kv_addr(t, d):
    return [f"s_lshr_b32 s34, s78, 3", f"v_mov_b32 v{t}, s34", f"v_and_b32 v{t+1}, 16, v0", f"v_cmp_eq_u32 vcc, 0, v{t+1}", f"v_cndmask_b32 v{t}, 8, v{t}, vcc",
            f"v_and_b32 v{t+1}, 15, v0", f"v_mad_u32_u24 v{t}, v{t+1}, 9, v{t}",
            f"v_lshrrev_b32 v{t+1}, 2, v{t}", f"v_and_b32 v{t}, 3, v{t}",
            f"v_mad_u32_u24 v{t}, v{t+1}, 7, v{t}", f"v_lshlrev_b32 v{d}, 7, v{t}"]
def kv_issue():
    return ["s_mov_b64 exec, s[100:101]", f"buffer_load_dword v{vPL}, v{vPA}, s[92:95], 0 offen {SC}", "s_mov_b64 exec, -1"]
def kv_wait(a, tag, t):
    a("s_cmp_eq_u32 s100, 0")
    a(f"s_cbranch_scc1 {tag}_ok")
    a(f"s_movk_i32 s{sCNT}, 0x4000")
    a.label(f"{tag}_l")
    a(f"v_and_b32 v{t}, {1 << I_KV}, v{vPL}")
    a(f"v_cmp_ne_u32 vcc, 0, v{t}")
    a("s_nop 1")
    a("s_cmp_eq_u32 vcc_lo, -1")
    a(f"s_cbranch_scc1 {tag}_ok")
    a("s_sleep 8")
    a("s_andn2_b64 exec, s[100:101], vcc")
    a(f"buffer_load_dword v{vPL}, v{vPA}, s[92:95], 0 offen {SC}")
    a("s_mov_b64 exec, -1")
    a("s_waitcnt vmcnt(0)")
    a(f"s_sub_u32 s{sCNT}, s{sCNT}, 1")
    a(f"s_cbranch_scc0 {tag}_l")
    a.label(f"{tag}_ok")
CS = 4128; PL = 9 * CS
X9 = 0; PB = 4608
sRD = 76
def poll_init(t, d):
    return ["s_cmp_eq_u32 s87, s88", f"s_cselect_b32 s{sRD}, 0xffff0000, 0", f"v_and_b32 v{t}, 31, v0", f"v_bfe_i32 v{d}, s{sRD}, v{t}, 1"]
def poll_issue(want=0x1ff):
    return [f"s_andn2_b32 exec_lo, {hex(want | want << 16)}, s{sRD}", "s_mov_b32 exec_hi, 0", f"buffer_load_dword v{vPL}, v{vPA}, s[92:95], 0 offen {SC}", "s_mov_b64 exec, -1"]
def poll_eval(t):
    return [f"v_bfe_u32 v{t}, v{vPA}, 2, 3", f"v_bfe_u32 v{t}, v{vPL}, v{t}, 1", f"v_cmp_ne_u32 vcc, 0, v{t}", "s_nop 1", f"s_mov_b32 s{sRD}, vcc_lo", "s_lshr_b32 s66, vcc_lo, 16", "s_and_b32 s66, s66, vcc_lo"]
```

```python
import sys
from gen_fy_common import *
from gen_fy1 import phase1
from gen_fy2 import *
opts = sys.argv[2:]
kw = {}
for o in opts:
    if "=" in o:
        k, v = o.split("="); kw[k] = int(v)
stamp = 2 if "stamp2" in opts else "stamp" in opts
hdr = open('gated_mix__ssm_conv_h3__glu_gated_swiglu__prompt.s.ref').read().split('\n')
hdr = [l for l in hdr if l.startswith(';') and '@launch' not in l]
a = Asm()
for l in hdr: a.raw(l)
a.raw(f"; @launch kernel=fused_kernel grid=(256,1,1) block=(512,1,1) lds={LDS_ALL}")
a.raw('.amdgcn_target "amdgcn-amd-amdhsa--gfx950"')
kw1 = {k[2:]: v for k, v in kw.items() if k.startswith("1_")}
kw2 = {k[2:]: v for k, v in kw.items() if k.startswith("2_")}
name = "fused_kernel"
kernel_header(a, name)
a("s_cmp_ge_u32 s2, 256")
a(f"s_cbranch_scc0 {name}_go")
a("s_endpgm")
a.label(f"{name}_go")
a(f"s_mov_b32 s{sT}, s2")
if stamp:
    a("s_memtime s[70:71]")
    a("s_memrealtime s[72:73]")
    a("s_waitcnt lgkmcnt(0)")
    for k in (71, 73, 74, 75): a(f"s_mov_b32 s{k}, 0")
phase1(a, name, tails(a, name, stamp=stamp), stamp=stamp, **kw1)
gate7(a, name, stamp)
phase2(a, name, stamp=stamp, **kw2)
kernel_desc(a, name, 256, 102)
open(sys.argv[1], "w").write(a.text())
```

```python
from gen_fy_common import *

WBUF = 32768
XA0 = 98304
XAS = 14336
SLOT = 18432
S3 = 90112
P = 7
RING = 6
vW0, vW1, vX0, vX1, vX2, vRW, vRX0, vRX1 = 1, 2, 3, 4, 5, 6, 7, 8
TMP = 10
vRW2 = 22
vPF = 23
FR = 24
ACC = 48
WR = 112
PRE = 104
sWS = [36, 37, 38]; sXS = [4, 5, 48]; sXR = 39; sMW = 97
sSM, sSS, sA2, sB1, sB2 = 52, 53, 50, 51, 90
sPFT = 91
POOLB = 65536

def stamp_to(a, d):
    a("s_memtime s[80:81]"); a("s_waitcnt lgkmcnt(0)"); a(f"s_sub_u32 s{d}, s80, s70")

def clear_setup():
    return p2_ids(76, 77, 78, 34, 35) + [f"s_lshl_b32 s{sTFO}, s77, 7", f"s_add_u32 s{sTFO}, s{sTFO}, 32768", f"s_mul_i32 s69, s77, {OBS}",
            "s_mul_i32 s34, s22, 5120", "s_add_u32 s69, s69, s34"] + ws_srd(56, WS_OB, OB_BYTES)

def conv_srd(t, d):
    return ws_srd(12, WS_XR, XR_BYTES) + ["s_lshl_b32 s79, s78, 3", "s_add_u32 s79, s79, s22", "s_lshl_b32 s79, s79, 12",
            "s_lshr_b32 s34, s78, 3", "s_add_u32 s34, s34, 64", "s_lshl_b32 s34, s34, 3", "s_add_u32 s34, s34, s22", "s_lshl_b32 s40, s34, 12",
            f"v_and_b32 v{t}, 63, v0", f"v_lshlrev_b32 v{d}, 4, v{t}", f"v_lshrrev_b32 v{t+1}, 1, v{t}", f"v_xor_b32 v{t+1}, s78, v{t+1}", f"v_and_b32 v{t+1}, 7, v{t+1}",
            f"v_lshlrev_b32 v{t}, 7, v{t}", f"v_lshl_add_u32 v{d+1}, v{t+1}, 4, v{t}"] + kv_addr(t, d + 3)
def img_dma():
    g = [[f"s_lshl_b32 s45, s22, 12", f"s_add_u32 m0, s45, {PB}", "s_nop 0", f"buffer_load_dwordx4 v1, s[12:15], s79 offen {SC} lds"]]
    for j in range(1, 4): g.append([f"buffer_load_dwordx4 v1, s[12:15], s79 offen offset:{1024*j} {SC} lds"])
    return g
def x9_dma():
    return [["s_lshl_b32 s45, s22, 9", f"s_add_u32 m0, s45, {X9}", "s_mov_b32 exec_hi, 0", f"buffer_load_dwordx4 v2, s[12:15], s40 offen {SC} lds", "s_mov_b64 exec, -1"]]
def img_zero(t):
    return [f"v_mov_b32 v{t}, 0", f"v_mov_b32 v{t+1}, 0", f"v_lshrrev_b32 v{t+2}, 1, v1", f"v_add_u32 v{t+2}, {PB + 32768}, v{t+2}", f"ds_write_b64 v{t+2}, {vr(t,2)} offset:{3840 + 4096}",
            "s_mul_i32 s34, s22, 472", f"v_add_u32 v{t+3}, s34, v{t+2}", f"ds_write_b64 v{t+3}, {vr(t,2)}",
            f"ds_write_b64 v{t+2}, {vr(t,2)} offset:{3840 - 512}"]
def pl_dma(b):
    if b < 4:
        g = [[f"s_mul_i32 s45, s22, {CS}", f"s_add_u32 m0, s45, {P0 + 32 + 1024*b}", "s_lshl_b32 s45, s78, 3", "s_add_u32 s45, s45, s22", "s_lshl_b32 s45, s45, 12", f"s_add_u32 s45, s45, {16 + 1024*b}",
              "buffer_load_dwordx4 v1, s[24:27], s45 offen lds"]]
        M = ["s_mov_b64 exec, -2"] if b == 0 else []
    else:
        M = ["s_mov_b32 exec_hi, 0"]
        g = [["s_lshl_b32 s45, s22, 9", f"s_add_u32 m0, s45, {P0 + 8*CS + 32}", "s_lshl_b32 s34, s78, 12", "s_add_u32 s45, s45, s34", f"s_add_u32 s45, s45, {512*4096 + 16}"] + M +
             ["buffer_load_dwordx4 v1, s[24:27], s45 offen lds", "s_mov_b64 exec, -1"]]
    g.append([f"s_add_u32 m0, m0, {PL}", "s_sub_u32 s45, s45, 2"] + M + ["buffer_load_dwordx4 v1, s[24:27], s45 offen lds"] + (["s_mov_b64 exec, -1"] if M else []))
    return g
def conv_ptrs():
    return [f"s_load_dwordx4 s[36:39], s[0:1], {KA['ssm_k']}"]
def conv_ssm():
    return ["s_sub_u32 s24, s36, 16", "s_subb_u32 s25, s37, 0", "s_and_b32 s25, s25, 0xffff", f"s_mov_b32 s26, {576*4096 + 16}", "s_mov_b32 s27, 0x00020000",
            "s_lshl_b32 s34, s78, 3", "s_add_u32 s34, s34, s22", "s_lshl_b32 s34, s34, 1", "s_and_b32 s34, s34, 0xfffffffc", "s_load_dword s60, s[38:39], s34",
            "s_lshl_b32 s34, s78, 1", "s_and_b32 s34, s34, 0xfffffffc", "s_add_u32 s34, s34, 1024", "s_load_dword s61, s[38:39], s34"]
QA = WR + 56; QB = WR + 128
QK = QA; QT = QA + 12; QV = QB; QE = QB + 8; QO = QB + 12
vO1, vO2, vTA, vSA = PRE + 4, PRE + 5, 21, PRE + 7
QP = [17, 18, 19, 20, 21, 10]; QC = [11, QA + 11, vO1, vO2]
def prep_addr(t):
    return ["s_lshl_b32 s34, s30, 2", "s_add_u32 s34, s34, s31", "s_min_u32 s34, s34, 143", "s_mul_i32 s35, s34, 7282", "s_lshr_b32 s35, s35, 16",
            "s_mul_i32 s29, s35, 9", "s_sub_u32 s34, s34, s29",
            "s_lshl_b32 s35, s35, 3", "s_add_u32 s35, s35, s22",
            f"v_and_b32 v{t}, 31, v11", f"v_lshrrev_b32 v{t+1}, 5, v11",
            f"s_mul_i32 s29, s35, {16*1152}", "s_lshl_b32 s3, s34, 7", "s_add_u32 s29, s29, s3",
            f"v_mul_u32_u24 v{t+2}, {8*1152}, v{t+1}", f"v_lshl_add_u32 v{t+2}, v{t}, 2, v{t+2}", f"v_add_u32 v{vO1}, s29, v{t+2}",
            f"v_add_u32 v{vO2}, {7*1152}, v{vO1}",
            "s_lshl_b32 s3, s34, 9", f"v_lshl_add_u32 v{vTA}, v{t}, 4, s3",
            "s_sub_u32 s35, 127, s35", "s_lshl_b32 s29, s35, 8", "s_lshl_b32 s3, s34, 18", "s_add_u32 s29, s29, s3", f"s_add_u32 s29, s29, {WS_XR + 128}",
            f"v_and_b32 v{t+2}, 3, v{t}", f"v_lshl_add_u32 v{t+2}, v{t+2}, 1, v{t+1}", f"v_xor_b32 v{t+2}, s35, v{t+2}", f"v_and_b32 v{t+2}, 7, v{t+2}",
            f"v_lshrrev_b32 v{t}, 2, v{t}", f"v_lshlrev_b32 v{t}, 15, v{t}", f"v_lshl_add_u32 v{t}, v{t+2}, 4, v{t}", f"v_add_u32 v{vSA}, s29, v{t}"]
def prep_loads(n):
    g = [([f"v_mov_b32 v{QK+i}, 0" for i in range(3)] + [f"v_cmp_le_u32 vcc, {3*1152}, v{vO1}"], f"global_load_dwordx4 {vr(QT,4)}, v{vTA}, s[88:89]")]
    for r in range(-3, 8):
        v, o = (vO1, r * 1152) if r < 4 else (vO2, (r - 7) * 1152)
        g.append((["s_and_b64 exec, exec, vcc"] if r == -3 else ["s_mov_b64 exec, s[66:67]"] if r == 0 else [], f"global_load_dword v{QK+r+3}, v{v}, s[84:85] offset:{o}"))
    for r in range(8):
        v, o = (vO1, r * 1152) if r < 4 else (vO2, (r - 7) * 1152)
        g.append(([], f"global_load_dword v{QV+r}, v{v}, s[86:87] offset:{o}"))
    out = []
    m = -(-len(g) // n)
    for b in range(n):
        o = []
        for k, (pre, ld) in enumerate(g[b*m:(b+1)*m]):
            o += pre + (["s_mov_b64 exec, s[66:67]"] if k == 0 else []) + [ld]
        out.append((o + ["s_mov_b64 exec, -1"], len(g[b*m:(b+1)*m])))
    return out
def prep_valu():
    o = ["s_mov_b32 s88, 0x05040100", "s_mov_b32 s89, 0x07060302"]
    for h in range(2):
        O = QO if h else QE
        for hf in range(2):
            b = 4 * hf
            o += [f"v_perm_b32 v{QP[i]}, v{QK+b+i}, v{QK+b+i+1}, s{88+h}" for i in range(6)]
            o += [f"v_dot2_f32_bf16 v{QC[i]}, v{QP[i]}, v{QT+2*h+1}, 0" for i in range(4)]
            o += [f"v_dot2_f32_bf16 v{QC[i]}, v{QP[i+2]}, v{QT+2*h}, v{QC[i]}" for i in range(4)]
            o += [(f"v_and_b32 v{QP[i]}, 0xffff0000, v{QV+b+i}" if h else f"v_lshlrev_b32 v{QP[i]}, 16, v{QV+b+i}") for i in range(4)]
            o += [f"v_mul_f32 v{QP[i]}, v{QP[i]}, v{QC[i]}" for i in range(4)]
            o += [f"v_cvt_pk_bf16_f32 v{O+2-2*hf}, v{QP[3]}, v{QP[2]}", f"v_cvt_pk_bf16_f32 v{O+3-2*hf}, v{QP[1]}, v{QP[0]}"]
    o += ["s_nop 1"] + [f"v_permlane32_swap_b32 v{QE+i}, v{QO+i}" for i in range(4)]
    return o
def prep_stores():
    return [["s_mov_b64 exec, s[66:67]", f"global_store_dwordx4 v{vSA}, {vr(QE,4)}, s[6:7] {SC}"],
            [f"global_store_dwordx4 v{vSA}, {vr(QO,4)}, s[6:7] offset:-128 {SC}", "s_mov_b64 exec, -1"]]

KR0 = 18432; KTAP = 65024; KR3 = 83968
def kp_ptrs():
    return [f"s_load_dwordx4 s[84:87], s[0:1], {KA['k']}", f"s_load_dwordx2 s[88:89], s[0:1], {KA['shift_k']}"]
def kp_task():
    return ["s_mul_i32 s35, s34, 7282", "s_lshr_b32 s35, s35, 16",
            "s_mul_i32 s4, s35, 9", "s_sub_u32 s34, s34, s4",
            "s_lshl_b32 s35, s35, 3", "s_add_u32 s35, s35, s22",
            f"s_mul_i32 s4, s35, {16*1152}", "s_lshl_b32 s5, s34, 7", "s_add_u32 s4, s4, s5", "s_lshl_b32 s48, s34, 9",
            "s_sub_u32 s5, 127, s35", "s_lshl_b32 s35, s5, 8", "s_lshl_b32 s34, s34, 18", "s_add_u32 s34, s34, s35", f"s_add_u32 s34, s34, {WS_XR + 128}",
            "s_add_u32 s64, s6, s34", "s_addc_u32 s65, s7, 0"]
def kp_scal():
    return kp_ptrs() + [f"s_lshr_b32 s34, s{sPFO}, 7", "s_mul_i32 s35, s34, 9363", "s_lshr_b32 s35, s35, 16", "s_mul_i32 s35, s35, 3", "s_sub_u32 s34, s34, s35",
            "s_min_u32 s34, s34, 143"] + kp_task()
GK0 = 40960
def gk_task(i): return ["s_mul_i32 s34, s49, 36", f"s_add_u32 s34, s34, {4*GKL[i] + 3}"] + kp_task() + ["s_mul_i32 s3, s22, 5120", f"s_add_u32 s3, s3, {GK0 + (i % 3) * 40960}"]
def gk_loads(t, i):
    return gk_task(i) + kp_vo(t) + ["s_add_u32 m0, s3, 512", f"v_subrev_u32 v{t+2}, {4*1152}, v{t}", f"global_load_lds_dwordx4 v{t}, s[84:85]",
            "s_add_u32 m0, s3, 1536", f"v_max_i32 v{t+2}, 0, v{t+2}", f"global_load_lds_dwordx4 v{t+1}, s[84:85]",
            "s_add_u32 m0, s3, 2560", f"v_mov_b32 v{t+4}, 0", f"global_load_lds_dwordx4 v{t}, s[86:87]",
            "s_add_u32 m0, s3, 3584", f"v_mov_b32 v{t+5}, 0", f"global_load_lds_dwordx4 v{t+1}, s[86:87]",
            f"v_and_b32 v{t+3}, 63, v0", f"v_lshl_add_u32 v{t}, v{t+3}, 3, s3", f"v_lshl_add_u32 v{t+3}, v{t+3}, 4, s48",
            "s_mov_b32 m0, s3", "s_cmp_lt_u32 s4, 1152", "s_cselect_b64 exec, -1, 0", f"ds_write_b64 v{t}, {vr(t+4,2)}",
            "s_cselect_b32 exec_lo, 0, -1", "s_mov_b32 exec_hi, 0", f"global_load_lds_dwordx4 v{t+2}, s[84:85]",
            "s_add_u32 m0, s3, 4608", "s_mov_b32 exec_lo, -1", f"global_load_lds_dwordx4 v{t+3}, s[88:89]", "s_mov_b64 exec, -1"]
def gk_reads(t, ch):
    A = t + 5; E = t + 6; V = t + 12
    o = [f"v_and_b32 v{A}, 63, v0", f"v_lshl_add_u32 v{A}, v{A}, 3, s3", f"ds_read_b64 {vr(t,2)}, v{A} offset:4608"] + kp_lane(t) + [f"v_add_u32 v{t+3}, s3, v{t+2}"]
    o += [f"ds_read_b64_tr_b16 {vr(E+2*i,2)}, v{t+3} offset:{1024*ch + 512*i}" for i in range(3)]
    o += [f"ds_read_b64_tr_b16 {vr(V+2-2*i,2)}, v{t+3} offset:{2560 + 1024*ch + 512*i}" for i in range(2)]
    return o
def kp_lane(t):
    return [f"v_bfe_u32 v{t+2}, v0, 2, 2", f"v_xor_b32 v{t+2}, 3, v{t+2}", f"v_bfe_u32 v{t+3}, v0, 4, 2", f"v_lshlrev_b32 v{t+3}, 5, v{t+3}", f"v_lshl_add_u32 v{t+2}, v{t+2}, 7, v{t+3}",
            f"v_and_b32 v{t+3}, 3, v0", f"v_lshl_add_u32 v{t+2}, v{t+3}, 3, v{t+2}"]
def kp_vo(t):
    return [f"v_bfe_u32 v{t}, v0, 3, 3", f"v_mul_u32_u24 v{t}, 1152, v{t}", f"v_and_b32 v{t+1}, 7, v0", f"v_lshl_add_u32 v{t}, v{t+1}, 4, v{t}", f"v_add_u32 v{t}, s4, v{t}",
            f"v_add_u32 v{t+1}, {8*1152}, v{t}"]
def kp_vb(d):
    return [f"s_lshl_b32 s{d}, s33, 15", f"s_add_u32 s{d}, s{d}, {KR0 + 12800}", "s_sub_u32 s34, s22, s33", "s_lshl_b32 s34, s34, 10", f"s_add_u32 s34, s34, {KR3}",
            "s_and_b32 s3, s22, 3", "s_cmp_eq_u32 s3, 3", f"s_cselect_b32 s{d}, s{d}, s34"]
def kp_loads(t, part):
    M = ["s_mov_b64 exec, s[66:67]"]; U = ["s_mov_b64 exec, -1"]
    if part:
        return [kp_vo(t) + kp_vb(35) + ["s_mov_b32 m0, s35"] + M + [f"global_load_lds_dwordx4 v{t+1}, s[86:87]{KM}"] + U]
    g = [kp_vo(t) + ["s_and_b32 s34, s22, 3", "s_lshl_b32 s35, s33, 15", "s_lshl_b32 s3, s34, 11", "s_add_u32 s3, s3, s35", f"s_add_u32 m0, s3, {KR0 + 512}"] + M +
         [f"global_load_lds_dwordx4 v{t}, s[84:85]{KM}"] + U]
    g.append(["s_add_u32 m0, m0, 1024"] + M + [f"global_load_lds_dwordx4 v{t+1}, s[84:85]{KM}"] + U)
    g.append(["s_lshl_b32 s3, s34, 10", "s_add_u32 s3, s3, s35", f"s_add_u32 m0, s3, {KR0 + 8704}"] + M + [f"global_load_lds_dwordx4 v{t}, s[86:87]{KM}"] + U)
    g.append([f"v_subrev_u32 v{t+2}, {4*1152}, v{t}", f"v_max_i32 v{t+2}, 0, v{t+2}", f"v_mov_b32 v{t+4}, 0", f"v_mov_b32 v{t+5}, 0", f"v_and_b32 v{t+3}, 63, v0", f"v_lshlrev_b32 v{t+3}, 3, v{t+3}",
              f"s_add_u32 m0, s35, {KR0}", "s_cmp_lt_u32 s4, 1152", "s_cselect_b64 exec, -1, 0", f"ds_write_b64 v{t+3}, {vr(t+4,2)} offset:{KR0}",
              "s_cselect_b32 s34, 1, s34", "s_cmp_eq_u32 s34, 0", "s_cselect_b32 exec_lo, s66, 0", "s_mov_b32 exec_hi, 0", f"global_load_lds_dwordx4 v{t+2}, s[84:85]{KM}"] + U)
    g.append([f"v_lshl_add_u32 v{t+3}, v{t+3}, 1, s48", f"s_mov_b32 m0, {KTAP}", "s_and_b64 exec, s[66:67], s[100:101]", f"global_load_lds_dwordx4 v{t+3}, s[88:89]"] + U)
    return g
def kp_reads(t, ch):
    A = t + 5; E = t + 6; V = t + 12
    o = [f"v_and_b32 v{A}, 63, v0", f"v_lshlrev_b32 v{A}, 3, v{A}", f"ds_read_b64 {vr(t,2)}, v{A} offset:{KTAP}",
         f"v_bfe_u32 v{t+2}, v0, 2, 2", f"v_xor_b32 v{t+2}, 3, v{t+2}", f"v_bfe_u32 v{t+3}, v0, 4, 2", f"v_lshlrev_b32 v{t+3}, 5, v{t+3}", f"v_lshl_add_u32 v{t+2}, v{t+2}, 7, v{t+3}",
         f"v_and_b32 v{t+3}, 3, v0", f"v_lshl_add_u32 v{t+2}, v{t+3}, 3, v{t+2}",
         "s_and_b32 s34, s22, 3", "s_lshl_b32 s35, s33, 15", "s_lshl_b32 s3, s34, 11", "s_add_u32 s3, s3, s35", f"v_add_u32 v{A}, s3, v{t+2}"]
    o += [f"ds_read_b64_tr_b16 {vr(E+2*i,2)}, v{A} offset:{KR0 + 1024*ch + 512*i}" for i in range(3)]
    if ch: o += kp_vb(35)
    else: o += ["s_lshl_b32 s34, s34, 10", "s_add_u32 s35, s35, s34", f"s_add_u32 s35, s35, {KR0 + 8704}"]
    o += [f"v_add_u32 v{t+3}, s35, v{t+2}"]
    o += [f"ds_read_b64_tr_b16 {vr(V+2-2*i,2)}, v{t+3} offset:{512*i}" for i in range(2)]
    return o
def kp_valu(t, ch):
    A = t + 5; E = t + 6; V = t + 12; Y = t + 16
    e = lambda j: E + ((j + 2) ^ 1)
    o = [f"v_lshlrev_b32 v{t+2}, 16, v{t}", f"v_alignbit_b32 v{t+3}, v{t+1}, v{t}, 16", f"v_lshrrev_b32 v{t+4}, 16, v{t+1}",
         f"v_xor_b32 v{A}, s5, v0", f"v_and_b32 v{A}, 7, v{A}"]
    y = lambda j, odd: Y + 2 * (3 - j) + (0 if odd else 1)
    o += [f"v_dot2_f32_bf16 v{y(j,1)}, v{e(j)}, v{t}, 0" for j in range(4)]
    o += [f"v_dot2_f32_bf16 v{y(j,0)}, v{e(j)}, v{t+2}, 0" for j in range(4)]
    o += [f"v_dot2_f32_bf16 v{y(j,1)}, v{e(j-1)}, v{t+1}, v{y(j,1)}" for j in range(4)]
    o += [f"v_dot2_f32_bf16 v{y(j,0)}, v{e(j-1)}, v{t+3}, v{y(j,0)}" for j in range(4)]
    o += [f"v_dot2_f32_bf16 v{y(j,0)}, v{e(j-2)}, v{t+4}, v{y(j,0)}" for j in range(4)]
    o += [f"v_bfe_u32 v{t+4}, v0, 3, 3", f"v_lshlrev_b32 v{t+4}, 15, v{t+4}", f"v_lshl_add_u32 v{A}, v{A}, 4, v{t+4}"]
    X = [t, t + 2, E, E + 2]
    for i in range(4): o += [f"v_lshlrev_b32 v{X[i]}, 16, v{V+i}", f"v_and_b32 v{X[i]+1}, 0xffff0000, v{V+i}"]
    o += [f"v_pk_mul_f32 {vr(Y+2*i,2)}, {vr(Y+2*i,2)}, {vr(X[i],2)}" for i in range(4)]
    o += [f"v_cvt_pk_bf16_f32 v{V+i}, v{Y+2*i}, v{Y+2*i+1}" for i in range(4)]
    return o
def kp_store(t, ch):
    return ["s_mov_b64 exec, s[66:67]", f"global_store_dwordx4 v{t+5}, {vr(t+12,4)}, s[64:65] offset:{-128*ch} {SC}", "s_mov_b64 exec, -1"]

def phase1(a, name, tails, stamp=False, AB=1, MV=144, PF0=9, PFS=1, w2pf=1, AB0=4, verbose=0, C0=2, DC=4, ph=0, BSE=5, st2=1, vmm=1, B1D=4, SGE=3, clrm=0, dbgB=0, nokv=0, PL0=1, PLN=2, PC=5, PVM=10, KL=7, KC=10, KB=150, kp=1, KW=2, KPI=2, PD0=12, spf=1):
    stmod = SC
    a(f"s_and_b32 s23, s{sT}, 7")
    a(f"s_lshr_b32 s29, s{sT}, 3")
    a("s_lshr_b32 s49, s23, 1")
    a("s_and_b32 s32, s23, 1")
    a("s_lshl_b32 s28, s32, 5")
    a("s_add_u32 s28, s28, s29")
    a("s_cmp_eq_u32 s28, 63")
    a(f"s_cbranch_scc1 {name}_gate")
    a(f"s_load_dwordx2 s[8:9], s[0:1], {KA['q']}")
    a(f"s_load_dwordx4 s[24:27], s[0:1], {KA['w1']}")
    a(f"s_load_dwordx2 s[6:7], s[0:1], {KA['ws']}")
    a(f"s_load_dwordx2 s[92:93], s[0:1], {KA['dbg']}")
    a(f"s_load_dwordx2 s[12:13], s[0:1], {KA['w2']}")
    a(f"s_load_dwordx2 s[88:89], s[0:1], {KA['ssm_k']}")
    a("s_mul_i32 s30, s49, 63")
    a("s_add_u32 s28, s28, s30")
    a("v_lshrrev_b32 v10, 6, v0")
    a("v_and_b32 v11, 63, v0")
    a("v_readfirstlane_b32 s22, v10")
    a("s_mul_i32 s29, s28, 9363")
    a("s_lshr_b32 s30, s29, 16")
    a("s_mul_i32 s29, s30, 7")
    a("s_sub_u32 s31, s28, s29")
    a(f"s_mul_i32 s{sSM}, s31, 18")
    a("s_cmp_eq_u32 s31, 6")
    a("s_cselect_b32 s29, 2, 0")
    a(f"s_add_u32 s{sSM}, s{sSM}, s29")
    a("s_add_u32 s34, s49, s30")
    a("s_and_b32 s34, s34, 1")
    a("s_lshl_b32 s34, s34, 2")
    a("s_xor_b32 s35, s34, 4")
    a("s_mul_i32 s29, s32, 10")
    a(f"s_add_u32 s{sA2}, s{sSM}, s29")
    a(f"s_add_u32 s47, s{sA2}, s34")
    a(f"s_add_u32 s{sA2}, s{sA2}, s35")
    a("s_sub_u32 s29, 10, s29")
    a(f"s_add_u32 s{sB2}, s{sSM}, s29")
    a(f"s_add_u32 s{sB1}, s{sB2}, s34")
    a(f"s_add_u32 s{sB2}, s{sB2}, s35")
    a(f"s_add_u32 s{sSM}, s{sSM}, 8")
    a(f"s_add_u32 s{sSS}, s31, 103")
    a("s_add_u32 s34, s47, s22")
    a(f"s_add_u32 s35, s{sSM}, s22")
    a("s_sub_u32 s35, s35, 4")
    a("s_cmp_lt_u32 s22, 4")
    a("s_cselect_b32 s34, s34, s35")
    a("s_cmp_lt_u32 s31, 5")
    a(f"s_cselect_b32 s35, s{sA2}, s{sSS}")
    a("s_cmp_lt_u32 s22, 6")
    a("s_cselect_b32 s34, s34, s35")
    a(f"s_mul_i32 s{sXR}, s34, {SLOT}")
    a("s_add_u32 s34, s30, s31")
    a("s_mul_i32 s35, s34, 21846")
    a("s_lshr_b32 s35, s35, 16")
    a("s_mul_i32 s35, s35, 3")
    a("s_sub_u32 s34, s34, s35")
    a("s_mul_i32 s49, s34, 3")
    for sg in range(3):
        if sg:
            a("s_add_u32 s34, s34, 1")
            a("s_cmp_eq_u32 s34, 3")
            a("s_cselect_b32 s34, 0, s34")
        a(f"s_mul_i32 s{sWS[sg]}, s34, {3*64*9216}")
        a(f"s_mul_i32 s{sXS[sg]}, s34, 384")
    a("v_lshrrev_b32 v12, 4, v11")
    a("v_and_b32 v13, 15, v11")
    a("s_and_b32 s33, s22, 3")
    a("s_lshl_b32 s33, s33, 4")
    a("v_add_u32 v14, s33, v12")
    a("v_mul_u32_u24 v14, 9216, v14")
    a("s_lshl_b32 s33, s30, 8")
    a("v_add_u32 v14, s33, v14")
    a("v_lshlrev_b32 v15, 1, v12")
    a("v_xor_b32 v15, v15, v13")
    a(f"v_lshl_add_u32 v{vW0}, v15, 4, v14")
    a("v_xor_b32 v15, 8, v15")
    a("v_lshl_add_u32 v14, v15, 4, v14")
    a(f"v_add_u32 v{vW1}, {8*9216 - 2048}, v14")
    a("v_lshrrev_b32 v14, 3, v11")
    a("v_and_b32 v15, 7, v11")
    a("v_xor_b32 v15, v15, v12")
    a("v_mul_u32_u24 v14, 1152, v14")
    a(f"v_lshl_add_u32 v{vX0}, v15, 4, v14")
    a("v_xor_b32 v15, 4, v15")
    a("v_lshl_add_u32 v14, v15, 4, v14")
    a(f"v_add_u32 v{vX1}, {8*1152 - 1024}, v14")
    a("s_lshr_b32 s33, s22, 2")
    a(f"s_lshl_b32 s{sMW}, s22, 12")
    a("s_lshl_b32 s42, s22, 11")
    a("s_cmp_eq_u32 s22, 7")
    a("s_cselect_b64 s[64:65], 0, -1")
    a(f"s_mov_b32 s10, {2048*1152}")
    a("s_mov_b32 s11, 0x00020000")
    a("s_cmp_eq_u32 s33, 0")
    a("s_waitcnt lgkmcnt(0)")
    a("s_cselect_b32 s24, s24, s26")
    a("s_cselect_b32 s25, s25, s27")
    a("s_and_b32 s25, s25, 0xffff")
    a(f"s_mov_b32 s26, {576*9216}")
    a("s_mov_b32 s27, 0x00020000")
    a("s_and_b32 s9, s9, 0xffff")

    def stageA_dma(s):
        sr = "s[24:27]"
        sg = s // 3; o = (s % 3) * 64 * 9216
        g = []
        g.append([f"s_add_u32 m0, s{sMW}, {(s % 3) * WBUF}", f"s_add_u32 s21, s{sWS[sg]}, {o + 4*9216 - 1024}", f"s_add_u32 s20, s{sWS[sg]}, {o}",
                  f"buffer_load_dwordx4 v{vW0}, {sr}, s20 offen lds"])
        g.append([f"buffer_load_dwordx4 v{vW0}, {sr}, s21 offen offset:1024 lds"])
        g.append([f"buffer_load_dwordx4 v{vW1}, {sr}, s20 offen offset:2048 lds"])
        g.append([f"buffer_load_dwordx4 v{vW1}, {sr}, s21 offen offset:3072 lds"])
        g.append([f"s_add_u32 m0, s42, {XA0 + (s % 4) * XAS}", f"s_add_u32 s45, s{sXR}, s{sXS[sg]}", f"s_add_u32 s45, s45, {(s % 3) * 128}", "s_mov_b64 exec, s[64:65]",
                  f"buffer_load_dwordx4 v{vX0}, s[8:11], s45 offen lds", "s_mov_b64 exec, -1"])
        g.append(["s_mov_b64 exec, s[64:65]", f"buffer_load_dwordx4 v{vX1}, s[8:11], s45 offen offset:1024 lds", "s_mov_b64 exec, -1"])
        return g
    def emit(groups):
        for g in groups:
            for x in g: a(x)

    def rest_setup():
        a("v_bfe_u32 v14, v11, 3, 1")
        a("s_lshl_b32 s34, s22, 1")
        a("v_add_u32 v14, s34, v14")
        a("v_mul_u32_u24 v14, 1152, v14")
        a("v_and_b32 v15, 7, v11")
        a("v_xor_b32 v15, s22, v15")
        a(f"v_lshl_add_u32 v{vX2}, v15, 4, v14")
        a("s_add_u32 s34, s49, s22")
        a("s_sub_u32 s35, s34, 9")
        a("s_cmp_ge_u32 s34, 9")
        a("s_cselect_b32 s34, s35, s34")
        a("s_lshl_b32 s63, s34, 7")
        a(f"s_add_u32 s49, s{sXS[2]}, 256")
        a("v_lshrrev_b32 v14, 2, v13")
        a("v_and_b32 v15, 1, v12")
        a("v_lshl_add_u32 v15, v15, 2, v14")
        a("v_xor_b32 v15, s22, v15")
        a("v_lshl_add_u32 v14, v12, 3, v14")
        a("v_lshlrev_b32 v14, 8, v14")
        a("v_lshl_add_u32 v14, v15, 5, v14")
        a("v_and_b32 v15, 3, v11")
        a(f"v_lshl_add_u32 v{vRW}, v15, 3, v14")
        a(f"v_add_u32 v{vRW2}, 0x10000, v{vRW}")
        a("v_lshrrev_b32 v14, 1, v13")
        a("v_xor_b32 v14, v14, v12")
        a("v_lshlrev_b32 v15, 7, v13")
        a("v_lshl_add_u32 v14, v14, 4, v15")
        a(f"v_add_u32 v{vRX0}, {XA0}, v14")
        a(f"v_xor_b32 v{vRX1}, 64, v{vRX0}")
        a("s_lshl_b32 s34, s30, 3")
        a("s_add_u32 s34, s34, s22")
        a("s_lshr_b32 s35, s34, 2")
        a("s_lshl_b32 s35, s35, 18")
        a("s_and_b32 s34, s34, 3")
        a("s_lshl_b32 s34, s34, 9")
        a("s_add_u32 s34, s34, s35")
        a("v_lshlrev_b32 v14, 5, v13")
        a("v_lshrrev_b32 v15, 1, v12")
        a("v_lshl_add_u32 v14, v15, 4, v14")
        a("v_and_b32 v15, 1, v12")
        a("v_lshl_add_u32 v14, v15, 11, v14")
        a(f"v_add_u32 v{vPF}, s34, v14")
        a("s_lshl_b32 s43, s22, 8")
        a("s_add_u32 s43, s43, 16384")
        a("s_mov_b32 s46, 0xbfb8aa3b")
        for s in (47, sSM, sSS, sA2, sB1, sB2): a(f"s_lshl_b32 s{s}, s{s}, 11")
        srd(a, 16, 6, 7, H_BYTES)
        a("s_and_b32 s93, s93, 0xffff")
        a("s_movk_i32 s94, 256")
        a("s_mov_b32 s95, 0x00020000")
        a(f"s_lshl_b32 s{sPFO}, s28, 7")
        for x in pubmask(22) + clear_setup(): a(x)
        for k in range(4): a(f"v_mov_b32 v{12+k}, -1")
        a("v_lshlrev_b32 v16, 4, v11")
        if not kp:
            for x in prep_addr(FR): a(x)
        a(f"s_mov_b32 s{sCNT}, s31")
        a("s_cmp_lt_u32 s31, 4")
        a("s_cselect_b64 s[66:67], -1, 0")
        for x in [f"s_lshr_b32 s34, s{sT}, 3", "s_lshl_b32 s34, s34, 3", "s_add_u32 s34, s34, s22",
                  "s_lshr_b32 s35, s23, 1", "s_mul_i32 s35, s35, 162", f"s_add_u32 s{sPFT}, s35, s34",
                  "s_lshl_b32 s35, s23, 5", "s_add_u32 s35, s35, s34", "s_sub_u32 s35, s35, 162",
                  "s_lshl_b32 s29, s23, 2", "s_add_u32 s29, s29, s34", f"s_add_u32 s29, s29, {256 - 194}",
                  "s_cmp_lt_u32 s34, 194", "s_cselect_b32 s35, s35, s29", f"s_mov_b32 s30, {576*4096}",
                  "s_cmp_lt_u32 s34, 162", f"s_cselect_b32 s{sPFT}, s{sPFT}, s35", "s_cselect_b32 s28, s12, s88", "s_cselect_b32 s29, s13, s89",
                  f"s_cselect_b32 s30, {4608*1152}, s30", "s_and_b32 s29, s29, 0xffff", f"s_lshl_b32 s{sPFT}, s{sPFT}, 13",
                  f"s_cmp_lt_u32 s34, {198 if spf else 162}", "s_cselect_b32 s30, s30, 0", "s_mov_b32 s31, 0x00020000"]: a(x)

    def pro_end(tg):
        if st2 == 1: emit(stageA_dma(2))
        a(f"s_cmp_ge_u32 s{sCNT}, 5")
        a("s_waitcnt vmcnt(12) lgkmcnt(0)")
        a("s_barrier")
    emit(stageA_dma(0))
    emit(stageA_dma(1))
    if st2 == 0: emit(stageA_dma(2))
    rest_setup()
    a("s_cmp_eq_u32 s76, 1")
    a(f"s_cbranch_scc1 {name}_rsc")
    for x in g2_scal() + b_off(0, FR, PRE) + b_off(1, FR + 4, PRE + 1) + b_off(2, FR + 8, PRE + 2) + poll_addr(FR + 12, PRE + 3) + poll_init(FR, PRE + 6): a(x)
    pro_end("g")
    a(f"s_cbranch_scc1 {name}_g19")

    def body(kind):
        NSUB = int(kind[1:]); conv = kind[0] == 'c'
        E = 9 + NSUB - P
        BS0 = E - BSE; SG0 = E - SGE
        segs = [("A1", 0, 4, None), ("M", 4, 2, sSM)]
        p0 = 6
        if NSUB == 19: segs.append(("S", 6, 1, sSS)); p0 = 7
        segs += [("A2", p0, 4, sA2), ("B1", p0 + 4, 4, sB1), ("B2", p0 + 8, 4, sB2)]
        def seg_of(pos):
            for s in segs:
                if s[1] <= pos < s[1] + s[2]: return s
        def slot_addr(q): return (q - 9) * WBUF if q < 12 else S3 + ((q - E) % 4) * SLOT
        def subB_dma(q):
            sa = slot_addr(q); pos = q - 2; sg = seg_of(pos); j = pos - sg[1]
            pre = []
            if j == 0 or pos == P: pre = [f"s_mul_i32 s44, s{sg[3]}, 9", "s_add_u32 s68, s44, s49", "s_add_u32 s44, s44, s63"]
            g = []
            g.append(pre + [f"s_add_u32 m0, s42, {sa}", f"s_add_u32 s45, s44, {j*SLOT}", f"buffer_load_dwordx4 v{vX0}, s[8:11], s45 offen lds"])
            g.append([f"buffer_load_dwordx4 v{vX1}, s[8:11], s45 offen offset:1024 lds"])
            g.append([f"s_add_u32 m0, s43, {sa}", f"s_add_u32 s45, s68, {j*SLOT}", "s_mov_b64 exec, 0xffff", f"buffer_load_dwordx4 v{vX2}, s[8:11], s45 offen lds", "s_mov_b64 exec, -1"])
            return g
        vm = dict(n=18, known=6)
        landed = {1: 12, 2: 18}
        mark = {}
        pend = []
        pubs = {}
        level = dict(v=0)
        lg = dict(n=0); lgidx = {}; waited = dict(lg=0)
        def wreg(mat, ks): return WR + (mat * 18 + ks) * 4
        def acc(sub, mat): return ACC + (sub % 8 if sub < NSUB - 1 else 2) * 8 + mat * 4
        def frags(p):
            if p < 9: return [(tt, sub, 2 * p + tt) for tt in range(2) for sub in range(P)]
            return [(ks & 1, p - 2, ks) for ks in range(18)]
        cur_base = dict(v=XA0)
        ring = dict(n=0)
        rslot = {}
        def emit_read(p, i):
            tt, sub, ks = frags(p)[i]
            if p < 9:
                off = XA0 + (p % 4) * XAS + sub * 2048
            else:
                sa = slot_addr(p)
                if i == 0 and not (sa >= cur_base['v'] and sa + SLOT - cur_base['v'] <= 65536):
                    d = sa - cur_base['v']
                    a(f"v_add_u32 v{vRX0}, {d & 0xffffffff}, v{vRX0}")
                    a(f"v_add_u32 v{vRX1}, {d & 0xffffffff}, v{vRX1}")
                    cur_base['v'] = sa
                off = sa + (ks >> 1) * 2048
            off -= cur_base['v']
            assert 0 <= off < 65536
            r = FR + (ring['n'] % RING) * 4; ring['n'] += 1
            rslot[(p, i)] = r
            a(f"ds_read_b128 {vr(r, 4)}, v{vRX1 if tt else vRX0} offset:{off}")
            lg['n'] += 1; lgidx[("X", p, i)] = lg['n']
        def emit_wread(s, tt, mat):
            b = s % 3
            base = f"v{vRW2}" if b == 2 else f"v{vRW}"
            off = ((b & 1) * WBUF if b < 2 else 0) + mat * 16384 + tt * 8192
            r = wreg(mat, 2 * s + tt)
            a(f"ds_read_b64_tr_b16 {vr(r,2)}, {base} offset:{off}")
            a(f"ds_read_b64_tr_b16 {vr(r+2,2)}, {base} offset:{off + 1024}")
            lg['n'] += 2; lgidx[("W", 2 * s + tt, mat)] = lg['n']
        def wait_lg(tag):
            need = lgidx[tag]
            if need <= waited['lg']: return
            n = lg['n'] - need
            a(f"s_waitcnt lgkmcnt({min(n, 15)})")
            waited['lg'] = need if n <= 15 else lg['n'] - 15
        def preload_list(p):
            o = []
            if p < 9:
                o += [lambda: emit_wread(p, 0, 0), lambda: emit_read(p, 0), lambda: emit_wread(p, 0, 1)]
                for i in range(1, RING): o.append(lambda i=i: emit_read(p, i))
                o += [lambda: emit_wread(p, 1, 0), lambda: emit_wread(p, 1, 1)]
            else:
                for i in range(RING): o.append(lambda i=i: emit_read(p, i))
            return o
        epq = []
        def add_epi(sub, avail):
            sg = seg_of(sub); j = sub - sg[1]; second = j & 1; single = sg[2] == 1
            G = acc(sub, 0); U = acc(sub, 1); T = TMP; O = TMP + 8 + second * 2
            ops = []
            for r in range(4): ops.append((4, [f"v_mul_f32 v{T+r}, s46, v{G+r}"]))
            for r in range(4): ops.append((8, [f"v_exp_f32 v{T+r}, v{T+r}"]))
            for r in range(4): ops.append((4, [f"v_mul_f32 v{T+4+r}, v{G+r}, v{U+r}"]))
            for r in range(4): ops.append((4, [f"v_add_f32 v{T+r}, 1.0, v{T+r}"]))
            for r in range(4): ops.append((8, [f"v_rcp_f32 v{T+r}, v{T+r}"]))
            for r in range(4): ops.append((4, [f"v_mul_f32 v{T+4+r}, v{T+4+r}, v{T+r}"]))
            ops.append((4, [f"v_cvt_pk_bf16_f32 v{O}, v{T+4}, v{T+5}"]))
            ops.append((4, [f"v_cvt_pk_bf16_f32 v{O+1}, v{T+6}, v{T+7}"]))
            pre = []
            if sg[3] is not None and j < 2: pre = [f"s_mov_b32 s47, s{sg[3]}"]
            if single:
                ops.append((8, [f"v_bfe_u32 v{T}, v0, 4, 1", f"v_mul_u32_u24 v{T}, 2040, v{T}"]))
                ops.append((4, [f"v_sub_u32 v{T}, v{vPF}, v{T}"]))
                ops.append((0, pre + [f"buffer_store_dwordx2 {vr(O,2)}, v{T}, s[16:19], s47 offen {stmod}", "s_nop 0"], "vm"))
            elif second:
                O0 = TMP + 8
                ops.append((8, ["s_nop 0", f"v_permlane16_swap_b32 v{O0}, v{O0+2}", f"v_permlane16_swap_b32 v{O0+1}, v{O0+3}"]))
                ops.append((0, pre + ["s_nop 0", f"buffer_store_dwordx4 {vr(O0,4)}, v{vPF}, s[16:19], s47 offen {stmod}", "s_add_u32 s47, s47, 4096"], "vm"))
            else:
                ops.append((0, [], "novm"))
            for o in ops: epq.append((o[0], o[1], avail, len(o) > 2, sub))
        for sub in range(NSUB): add_epi(sub, max(8, sub + 2))
        done_sub = set()
        lvl_pos = {3: I_A1, p0 - 1: I_MID, p0 + 3: I_A2, p0 + 7: I_B1}
        def pop_epi(p):
            c, ins, av, isvm, sub = epq.pop(0)
            for x in ins: a(x)
            if isvm:
                done_sub.add(sub)
                if ins:
                    vm['n'] += 1
                    if sub in lvl_pos:
                        pend.append((lvl_pos[sub], vm['n']))
                        if verbose: print(f"{kind}: level {lvl_pos[sub]} stored at {p}")
            return c
        def vmop(ins):
            for x in ins: a(x)
            vm['n'] += 1
        def vmwait(idx, extra=""):
            if idx > vm['known']:
                a(f"s_waitcnt vmcnt({min(63, vm['n'] - idx)}){extra}")
                vm['known'] = idx
            elif extra: a(f"s_waitcnt{extra}")
        bg = {p: [] for p in range(E)}
        bg[8] = [f"v_mov_b32 v{d}, v{PRE+i}" for i, d in enumerate(vB + [vPA]) if not (conv and i == 2)]
        if not conv: bg[8].append(f"v_mov_b32 v{vPL}, v{PRE+6}")
        prep = NSUB == 18 and not nokv and not kp
        kprep = NSUB == 18 and not nokv and kp and not (conv and GK)
        if kprep and not conv: bg[KL + 2] = bg[KL + 2] + g2_ids()
        pvs = []
        if prep:
            pv = prep_valu(); plb = prep_loads(PLN)
            bg[PC] = pv[:PVM]; bg[PC + 1] = pv[len(pv)-PVM:]; pvs = pv[PVM:len(pv)-PVM]
            if not conv: bg[7] = g2_ids()
        elif NSUB == 18 and not kprep and not (conv and GK): pend.append((I_KV, 18))

        a.label(f"{name}_{kind}")
        for f in preload_list(0): f()
        a(f"s_cmp_eq_u32 s33, 0")
        a(f"s_cbranch_scc1 {name}_skipY{kind}")
        a("s_waitcnt vmcnt(6) lgkmcnt(0)")
        a("s_barrier")
        a.label(f"{name}_skipY{kind}")
        for p in range(E):
            fr = frags(p); nf = len(fr); mcred = 0.0
            if stamp and p == 9: stamp_to(a, 71)
            a("s_setprio 1")
            for i in range(nf):
                tt, sub, ks = fr[i]
                if ks == 0 and sub >= 8: assert (sub - 8) in done_sub and (sub < NSUB - 1 or 10 in done_sub), (NSUB, sub)
                for mat in range(2):
                    wait_lg(("X", p, i))
                    if p < 9: wait_lg(("W", ks, mat))
                    c = "0" if ks == 0 else vr(acc(sub, mat), 4)
                    a(f"v_mfma_f32_16x16x32_bf16 {vr(acc(sub,mat),4)}, {vr(wreg(mat,ks),4)}, {vr(rslot[(p,i)],4)}, {c}")
                    if bg[p]: a(bg[p].pop(0))
                    if mat == 0 and clrm and C0 <= p <= C0 + 4 and i == 8:
                        vmop([f"buffer_store_dwordx4 v[12:15], v16, s[56:59], s69 offen {SC}", "s_add_u32 s69, s69, 1024"])
                        if p == C0 + 4: pend.append((-1, vm['n']))
                    if mat == 0 and p >= 9:
                        mcred = min(mcred + MV / 18.0, 12); u = 0
                        while epq and epq[0][2] <= p - 1 and (vmm or not epq[0][3]) and epq[0][0] <= mcred and u + epq[0][0] <= 8:
                            c_ = pop_epi(p - 0.5); mcred -= c_; u += c_
                if i + RING < nf: emit_read(p, i + RING)
                if p == E - 1 and i == nf - 1 - AB0 and not conv:
                    a("s_waitcnt lgkmcnt(0)"); waited['lg'] = lg['n']
                    a(f"s_cmp_eq_u32 s33, 0")
                    a(f"s_cbranch_scc1 {name}_skipB{kind}")
                    a("s_barrier")
                    a.label(f"{name}_skipB{kind}")
                if i == nf - 1 - AB:
                    if p == 0: vmwait(12, " lgkmcnt(0)")
                    else: a("s_waitcnt lgkmcnt(0)")
                    waited['lg'] = lg['n']
                    a("s_setprio 3")
                    if p == E - 1:
                        a(f"s_cmp_eq_u32 s33, 0")
                        a(f"s_cbranch_scc0 {name}_skipA{kind}")
                        a("s_barrier")
                        a.label(f"{name}_skipA{kind}")
                    else:
                        a("s_barrier")
            assert not bg[p]
            a("s_setprio 0")
            if p == E - 1: break
            if ph:
                vmop(["s_memtime s[80:81]", f"s_lshl_b32 s34, s{sT}, 3", "s_add_u32 s34, s34, s22", "s_lshl_b32 s34, s34, 7", f"s_add_u32 s34, s34, {0x9000000 + 4*p}",
                      f"v_mov_b32 v{FR+1}, s34", "s_waitcnt lgkmcnt(0)", "s_sub_u32 s80, s80, s70", f"v_mov_b32 v{FR}, s80", "s_mov_b64 exec, 1",
                      f"global_store_dword v{FR+1}, v{FR}, s[6:7]", "s_mov_b64 exec, -1", "s_nop 0"])
            dq = []
            if p + 3 < E:
                q = p + 3
                gs = stageA_dma(q) if q < 9 else subB_dma(q)
                for k, gg in enumerate(gs): dq.append((gg, q if k == len(gs) - 1 else None))
            nslot = len(dq)
            def pop_dma():
                gg, q = dq.pop(0)
                for x in gg: a(x)
                vm['n'] += 1
                if q is not None:
                    landed[q] = vm['n']
                    if q == "clr": pend.append((-1, vm['n']))
            if kprep and p in (KC, KC + 1):
                assert vm['known'] >= mark[('kl', p - KC)]
                for x in kp_reads(FR, p - KC): a(x)
                while dq: pop_dma()
                a('s_waitcnt lgkmcnt(0)')
                if conv:
                    a("s_cmp_eq_u32 s66, 0")
                    a(f"s_cbranch_scc1 {name}_kps{p}")
                for x in kp_valu(FR, p - KC): a(x)
                if conv: a.label(f"{name}_kps{p}")
                vmop(kp_store(FR, p - KC))
                if p == KC + 1: pend.append((I_KV, vm['n'])); mark['ks'] = vm['n']
            if dq: pop_dma()
            if kprep and p == KL - 1:
                for x in kp_scal(): a(x)
            if kprep and p in (KL, KL + 1):
                while dq: pop_dma()
                for g_ in kp_loads(FR + 8, p - KL): vmop(g_)
                mark[('kl', p - KL)] = vm['n']
            if p == DC + 2:
                tg = f"{name}_dc{kind}"
                vmwait(mark['dc'])
                for x in ["s_cmp_eq_u32 s100, 0", f"s_cbranch_scc1 {tg}_ok", f"s_movk_i32 s{sCNT}, 0x4000"]: a(x)
                a.label(f"{tg}_l")
                for x in [f"v_readfirstlane_b32 s34, v{vPL}", "s_cmp_lg_u32 s34, 0", f"s_cbranch_scc1 {tg}_ok", "s_sleep 2", "s_mov_b64 exec, 1",
                          f"buffer_load_dword v{vPL}, off, s[92:95], 0 {SC}", "s_mov_b64 exec, -1", "s_waitcnt vmcnt(0)",
                          f"s_sub_u32 s{sCNT}, s{sCNT}, 1", f"s_cbranch_scc0 {tg}_l"]: a(x)
                a.label(f"{tg}_ok")
                for x in ws_srd(92, WS_FL, FL_BYTES): a(x)
            if p in pubs:
                assert p > DC + 2
                if -1 in pubs[p]: vmop(publish(1, FR, sTFO))
                bits = [b for b in pubs[p] if b >= 0]
                for b in bits: level['v'] |= 1 << b
                if bits: vmop(publish(level['v'], FR + 2))
                if verbose: print(f"{kind}: publish {pubs[p]} at side {p}")
            if p == DC:
                vmop(["s_and_b64 exec, s[100:101], 1", f"buffer_load_dword v{vPL}, off, s[92:95], 0 {SC}", "s_mov_b64 exec, -1"])
                mark['dc'] = vm['n']
            if w2pf and p >= PF0 and (p - PF0) % PFS == 0 and (p - PF0) // PFS < 4:
                k = (p - PF0) // PFS
                assert p < E - 3
                while dq: pop_dma()
                vmop([f"v_and_b32 v{FR+4}, 63, v0", f"v_lshlrev_b32 v{FR+4}, 7, v{FR+4}", f"s_mov_b32 m0, {32256 if kp else LDS_SCR}", "s_and_b32 s34, s22, 3", f"s_cmp_eq_u32 s34, {k}", "s_cselect_b64 exec, -1, 0",
                      f"buffer_load_dword v{FR+4}, s[28:31], s{sPFT} offen lds", "s_mov_b64 exec, -1"])
                mark['pf'] = vm['n']
            if kp and p == min(BS0, SG0): assert vm['known'] >= mark.get('pf', 0), 'pf'
            if prep:
                if p == PL0 - 1:
                    a(f"s_load_dwordx4 s[84:87], s[0:1], {KA['k']}"); a(f"s_load_dwordx2 s[88:89], s[0:1], {KA['shift_k']}")
                if p == PC + 1:
                    for x in prep_stores(): vmop(x)
                    pend.append((I_KV, vm['n']))
            if conv:
                if p == 8:
                    for x in conv_ptrs(): a(x)
                if p == 9:
                    for x in conv_ssm(): a(x)
                if p == SG0 - KPI:
                    vmop(kv_issue()); mark['poll'] = vm['n']
                if p == SG0 - 1:
                    vmwait(mark['poll'])
                    kv_wait(a, f"{name}_kw", FR)
                if p == SG0:
                    assert p >= E - 3
                    dq += [(x, "stg") for x in img_dma()]
                if p == E - 2:
                    for x in img_zero(FR): a(x)
                    dq += [(x, None) for x in x9_dma()]
                if PD0 <= p < PD0 + 5:
                    if p == PD0 + 3: assert vm['known'] >= mark.get('pf', 0)
                    dq += [(x, "pl") for x in pl_dma(p - PD0)]
            else:
                if p in (BS0, BS0 + 1):
                    hh = p - BS0
                    pre = ["s_and_b32 s3, s54, 15", "s_lshl_b32 s3, s3, 1", "s_add_u32 s3, s3, s33"] + offB() + [f"s_mul_i32 s21, s33, {G2_STAGE}", "s_add_u32 s21, s21, s41"]
                    if hh: pre += [f"s_add_u32 s3, s3, {16*1152}"]
                    pre += [f"s_add_u32 m0, s21, {6144*hh}", "s_nop 0"]
                    if dbgB == 1: pre += ["s_and_b32 s3, s3, 0xfff80"]
                    for j in range(3):
                        if dbgB == 2: continue
                        dq.append(((pre if j == 0 else []) + [f"buffer_load_dwordx4 v{vB[j]}, {'s[8:11]' if dbgB else 's[12:15]'}, s3 offen offset:{1024*j} lds"], None))
                if p == E - 4: a("s_mov_b32 s67, 0")
                if p in (E - 3, E - 2):
                    vmwait(mark['poll'])
                    for x in poll_eval(FR) + [f"s_and_b32 s34, s66, {1 << (p - E + 3)}", "s_or_b32 s67, s67, s34"]: a(x)
                if p in (E - 4, E - 3, E - 2):
                    vmop(poll_issue(7)); mark['poll'] = vm['n']
                if p == E - 3:
                    pre = a_off() + ["s_and_b32 s3, s54, 15", "s_lshl_b32 s3, s3, 1", "s_add_u32 s3, s3, s33"] + offA() + [f"s_mul_i32 s34, s33, {G2_STAGE}"]
                    g = dmaA("s34"); g[0] = pre + g[0]
                    dq += [(x, "e3") for x in g]
                if p == E - 2:
                    g = dmaA_half(2 * G2_STAGE); g[0] = st_off(2) + g[0]
                    dq += [(x, "e2") for x in g + dmaB_half(2 * G2_STAGE)]
            pl = preload_list(p + 1)
            if C0 <= p <= C0 + 4 and not clrm:
                k = p - C0
                dq.append(([f"buffer_store_dwordx4 v[12:15], v16, s[56:59], s69 offen {SC}", "s_add_u32 s69, s69, 1024"], "clr" if k == 4 else None))
            if p >= 8 and epq:
                rem = sum(o[0] for o in epq if o[4] < NSUB - 1)
                budget = rem / (E - 1 - p) - MV * 0.9
                if p <= E - B1D:
                    r2 = sum(o[0] for o in epq if o[4] <= p0 + 7)
                    budget = max(budget, (r2 - MV * 0.9 * (E - B1D - p)) / (E - B1D - p + 1))
                if kprep and p in (KC, KC + 1): budget -= KB
                must = p - 1 - 8
                used = 0
                step = max(budget, 40) / (len(dq) + 0.5) if dq else 1e9
                nxt_d = 0; nxt_p = 8
                while epq and epq[0][2] <= p and (used + epq[0][0] <= budget + 3 or epq[0][0] == 0 or epq[0][4] <= must):
                    if dq and used >= nxt_d:
                        pop_dma(); nxt_d += step
                    elif pl and used >= nxt_p:
                        pl.pop(0)(); nxt_p = used + 8
                    if epq[0][3] and epq[0][1]:
                        while p + 3 < E and (p + 3) not in landed: pop_dma()
                    used += pop_epi(p)
            while dq:
                pop_dma()
                for k in range(2):
                    if pl: pl.pop(0)()
                if prep and p == PC:
                    for k in range(8):
                        if pvs: a(pvs.pop(0))
            for f in pl: f()
            if prep and p == PC:
                for x in pvs: a(x)
            if prep and PL0 <= p < PL0 + PLN:
                ins, n_ = plb[p - PL0]
                for x in ins: a(x)
                vm['n'] += n_; landed["pl"] = vm['n']
            req = [0]
            if p + 2 < E: req.append(landed[p + 2])
            if p == E - 3: req += [i_ for b, i_ in pend]
            if prep and p == PC - 1: req.append(landed["pl"])
            if conv and p == E - 2: req.append(landed["stg"])
            if kprep and p == KC + KW: req.append(mark['ks'])
            vmwait(max(req), " lgkmcnt(0)")
            for b, i_ in list(pend):
                if i_ <= vm['known'] and p + 1 > DC + 2:
                    pubs.setdefault(p + 1, []).append(b); pend.remove((b, i_))
            waited['lg'] = lg['n']
            a("s_barrier")
        if stamp: stamp_to(a, 73)
        left = [(c, ins, isvm and bool(ins)) for c, ins, av, isvm, sub in epq]
        if verbose: print("left epi cycles", sum(x[0] for x in left), "level", level['v'], "pending", pend, {k: v for k, v in pubs.items() if k >= E - 1})
        assert level['v'] & 15 == 15 and not pend
        st = dict(n=vm['n'], e3=landed.get("e3"), e2=landed.get("e2"), poll=mark.get("poll"), pl=landed.get("pl"))
        tailX, tailY = tails[kind[0]]
        a("s_nop 7")
        a("s_cmp_eq_u32 s33, 0")
        a(f"s_cbranch_scc0 {name}_tY{kind}")
        a("s_nop 1")
        tailX(f"{name}_x{kind}", left, dict(st))
        a.label(f"{name}_tY{kind}")
        a("s_nop 1")
        tailY(f"{name}_y{kind}", left, dict(st))
    body("g18")
    a.label(f"{name}_rsc")
    for x in conv_srd(FR, PRE): a(x)
    pro_end("c")
    body("c18")
    body("g19")
```

```python
from gen_fy_common import *
from gen_fy1 import clear_setup, conv_srd, img_dma, img_zero, conv_ptrs, conv_ssm, pl_dma, x9_dma, kp_ptrs, gk_task, gk_loads, gk_reads, kp_valu

NST = 18
XCH = 2 * G2_STAGE
INFO = dict(k2=63)

def emit(a, groups):
    n = 0
    for g in groups:
        for x in g: a(x)
        n += 1
    return n

def spin(a, i, tag, t):
    a(f"s_bitcmp1_b32 s66, {i}")
    a(f"s_cbranch_scc1 {tag}_ok")
    a(f"s_movk_i32 s{sCNT}, 0x4000")
    a.label(f"{tag}_l")
    for x in poll_issue((2 << i) - 1): a(x)
    a("s_waitcnt vmcnt(0)")
    for x in poll_eval(t): a(x)
    a(f"s_bitcmp1_b32 s66, {i}")
    a(f"s_cbranch_scc1 {tag}_ok")
    a("s_sleep 2")
    a(f"s_sub_u32 s{sCNT}, s{sCNT}, 1")
    a(f"s_cbranch_scc0 {tag}_l")
    a.label(f"{tag}_ok")

def stamp_out(a, regs):
    a("s_waitcnt vmcnt(0)")
    a("s_memrealtime s[80:81]")
    a("s_memtime s[82:83]")
    a("s_waitcnt lgkmcnt(0)")
    a("s_sub_u32 s82, s82, s70")
    for kk, s in enumerate(regs): a(f"v_mov_b32 v{24+kk}, s{s}")
    a(f"s_lshl_b32 s70, s{sT}, 3")
    a("s_add_u32 s70, s70, s22")
    a("s_lshl_b32 s70, s70, 5")
    a("s_add_u32 s70, s70, 0x8000000")
    a("v_mov_b32 v32, s70")
    a("s_mov_b64 exec, 1")
    a("global_store_dwordx4 v32, v[24:27], s[6:7]")
    a("global_store_dwordx4 v32, v[28:31], s[6:7] offset:16")
def stamp_to(a, d):
    a("s_memtime s[80:81]"); a("s_waitcnt lgkmcnt(0)"); a(f"s_sub_u32 s{d}, s80, s70")

def late(a, tag, g):
    a("s_bitcmp1_b32 s67, 0")
    a(f"s_cbranch_scc1 {tag}_a1")
    spin(a, 0, f"{tag}_s0", 24)
    for x in st_k(g) + offA(): a(x)
    emit(a, dmaA(g * G2_STAGE))
    a.label(f"{tag}_a1")
    a("s_bitcmp1_b32 s67, 1")
    a(f"s_cbranch_scc1 {tag}_a2")
    spin(a, 1, f"{tag}_s1", 24)
    for x in st_k(2) + offA(): a(x)
    emit(a, dmaA_half(2 * G2_STAGE))
    a.label(f"{tag}_a2")
    a("s_waitcnt vmcnt(0)")

def tails(a, name, stamp=False):
    def epi(left):
        n = 0
        for c, ins, isvm in left:
            for x in ins: a(x)
            n += isvm
        return n
    def tailX(tag, left, st):
        n = st['n']
        assert INFO.setdefault('left', left) == left
        INFO['k2'] = min(INFO['k2'], n + sum(x[2] for x in left) - st['e2'])
        INFO['k0'] = min(INFO.get('k0', 63), n - st['e3'])
        a("s_cmp_eq_u32 s67, 3")
        a(f"s_cbranch_scc0 {name}_xlate")
        a(f"s_branch {name}_cons")
    def tailY(tag, left, st):
        a(f"s_waitcnt vmcnt({min(63, st['n'] - st['poll'])})")
        for x in poll_eval(24): a(x)
        a("s_cmp_eq_u32 s67, 3")
        a(f"s_cbranch_scc1 {tag}_e")
        late(a, tag, 1)
        a.label(f"{tag}_e")
        for x in poll_issue(31) + st_off(3): a(x)
        emit(a, dmaA(3 * G2_STAGE) + dmaB(3 * G2_STAGE))
        a("s_barrier")
        spin(a, 2, f"{tag}_s2", 24)
        for x in st_off(4): a(x)
        emit(a, dmaA(0) + dmaB(0))
        epi(left)
        a(f"s_branch {name}_prod")
    def ctail(tag, left, st):
        conv_head(a, stamp)
        n = st['n'] + epi(left)
        a(f"s_waitcnt vmcnt({n - st['pl']})")
        a(f"s_branch {name}_conv")
    return dict(g=(tailX, tailY), c=(ctail, ctail))

CA = 32; AF = 72; BF = 104; C9 = 136; AD = 168; AD9 = 172; HL = 176; FX = 192
vBA = 24
def breads(r, i): return f"ds_read_b128 {vr(BF+4*i,4)}, v{vBA + (r&3)} offset:{(7-i)*4096 + 2048*(r>>2)}"
def conv_head(a, stamp):
    if stamp: stamp_to(a, 74)
    a("v_and_b32 v2, 63, v0")
    a("v_lshlrev_b32 v5, 4, v2")
    a("v_lshrrev_b32 v3, 4, v2")
    a("v_and_b32 v4, 15, v2")
    a("v_lshlrev_b32 v6, 1, v4")
    a("v_sub_u32 v6, v3, v6")
    a(f"s_mov_b32 s35, {PB}")
    for r in range(4):
        a(f"v_add_u32 v6, {30 if r == 0 else 4}, v6")
        a("v_lshrrev_b32 v7, 1, v6")
        a("v_xor_b32 v7, s22, v7")
        a("v_and_b32 v7, 7, v7")
        a("v_lshl_add_u32 v8, v6, 7, s35")
        a(f"v_lshl_add_u32 v{vBA+r}, v7, 4, v8")
        if r == 0:
            a(f"s_mul_i32 s32, s22, {CS}")
            a(f"s_add_u32 s32, s32, {P0}")
            a("v_mov_b32 v9, s32")
            a(f"ds_read_b128 {vr(FX,4)}, v9 offset:32")
            for i in range(8): a(breads(0, i))

def phase2(a, name, stamp=False, om=0, AB=1, nsleep=1, pre=0, dly=0, xm=1, TFS=7, LF0=12, fo=2):
    poll = 1
    XM = ['', 'sc0 sc1', 'sc1', 'nt'][xm]
    OM = ['', 'sc0 sc1', 'nt'][om]
    a.label(f"{name}_xlate")
    late(a, f"{name}_xl", 0)
    a.label(f"{name}_cons")
    if stamp: stamp_to(a, 74)
    a("s_and_b32 s42, s22, 1")
    a("s_lshr_b32 s43, s22, 1")
    a("v_bfe_u32 v3, v0, 4, 2")
    a("v_and_b32 v4, 15, v0")
    a("v_lshrrev_b32 v5, 1, v3")
    a("v_lshlrev_b32 v5, 9, v5")
    a("v_and_b32 v6, 1, v3")
    a("v_lshl_add_u32 v5, v6, 4, v5")
    a("s_lshl_b32 s34, s42, 13")
    a("v_lshl_add_u32 v7, v4, 5, v5")
    a("v_add_u32 v24, s34, v7")
    a(f"v_add_u32 v25, {2*G2_STAGE}, v24")
    a("v_lshrrev_b32 v5, 2, v4")
    a("v_lshl_add_u32 v6, v3, 3, v5")
    a("v_mul_u32_u24 v6, 384, v6")
    a("v_and_b32 v7, 1, v0")
    a("v_lshl_add_u32 v6, v7, 4, v6")
    a("v_add_u32 v6, 16384, v6")
    a("v_lshrrev_b32 v5, 1, v5")
    a("v_and_b32 v7, 1, v3")
    a("v_lshl_add_u32 v5, v7, 1, v5")
    a("v_bfe_u32 v8, v0, 1, 1")
    a("v_xor_b32 v5, v5, v8")
    for jj4 in range(4):
        if jj4 % 2 == 0:
            a("s_mul_i32 s34, s43, 3")
            a(f"s_add_u32 s34, s34, {jj4>>1}")
            a("s_and_b32 s35, s34, 1")
            a("s_lshl_b32 s35, s35, 1")
            a("s_lshr_b32 s34, s34, 1")
            a("s_lshl_b32 s34, s34, 7")
            a("v_xor_b32 v7, s35, v5")
            a("v_lshl_add_u32 v7, v7, 5, v6")
            a("v_lshl_add_u32 v7, v8, 3, v7")
            a(f"v_add_u32 v{26+jj4}, s34, v7")
        else:
            a(f"v_xor_b32 v{26+jj4}, 8, v{25+jj4}")
        a(f"v_add_u32 v{30+jj4}, {2*G2_STAGE}, v{26+jj4}")
    FR = 80; ACC = 160
    def acc(mi, j): return ACC + (mi * 6 + j) * 4
    def fa(t, mi): return FR + (t & 1) * 40 + mi * 4
    def fb(t, j): return FR + (t & 1) * 40 + 16 + j * 4
    def read_ops(t):
        st = t >> 1; b = st % 4; tt = t & 1; bo = (b & 1) * G2_STAGE; bh = b >> 1
        ops = []
        for mi in range(4):
            ops.append(f"ds_read_b128 {vr(fa(t,mi),4)}, v{24+bh} offset:{bo + tt*1024 + mi*2048}")
        for j in range(6):
            off = bo + tt * 32 * 384 + (j >> 2) * 128
            ops.append(f"ds_read_b64_tr_b16 {vr(fb(t,j),2)}, v{26+4*bh+(j&3)} offset:{off}")
            ops.append(f"ds_read_b64_tr_b16 {vr(fb(t,j)+2,2)}, v{26+4*bh+(j&3)} offset:{off + 4*384}")
        A = ops[:4]; B = ops[4:]
        return [A[0], B[0], B[1], A[1], A[2], A[3]] + B[2:]
    a("s_setprio 1")
    a(f"s_waitcnt vmcnt({INFO['k0']})")
    a("s_barrier")
    if stamp: stamp_to(a, 75)
    for x in read_ops(0): a(x)
    lf = [x[1] for x in INFO['left']]
    for k in range(LF0):
        for x in lf.pop(0): a(x)
    a("s_waitcnt lgkmcnt(0)")
    extra = ws_srd(56, WS_OB, OB_BYTES) + [f"s_mul_i32 s44, s77, {OBS}", "s_mul_i32 s34, s22, 9216", "s_add_u32 s44, s44, s34",
             "v_and_b32 v5, 63, v0", "v_lshlrev_b32 v5, 4, v5", "s_mul_i32 s34, s22, 6144", f"s_add_u32 s34, s34, {XCH}", "v_add_u32 v6, s34, v5"]
    NT = 2 * NST
    for t in range(NT - 2 * (fo > 0)):
        st = t >> 1
        if (t & 1) and st + 1 < NST:
            if st == 1:
                assert not lf
                a(f"s_waitcnt vmcnt({INFO['k2']})")
            if st == 3: a("s_waitcnt vmcnt(0)")
            a("s_barrier")
        rd = read_ops(t + 1) if t + 1 < NT else []
        order = [(j, mi) for j in range(6) for mi in range(4)]
        if t == NT - 1: order = [(j, mi) for mi in (1, 2, 3, 0) for j in range(6)]
        for j, mi in order:
            c = "0" if t == 0 else vr(acc(mi, j), 4)
            a(f"v_mfma_f32_16x16x32_bf16 {vr(acc(mi,j),4)}, {vr(fb(t,j),4)}, {vr(fa(t,mi),4)}, {c}")
            if rd: a(rd.pop(0))
            elif extra and t >= 2: a(extra.pop(0))
            if lf:
                for x in lf.pop(0): a(x)
        if t + 1 < NT:
            a("s_waitcnt lgkmcnt(0)")
    assert not extra
    eq = []; k = 0
    t0_, t1_ = NT - 2, NT - 1
    seq = [(t, mi, j) for t, mi in ((t0_, 1), (t0_, 2), (t1_, 1), (t1_, 2), (t0_, 3), (t1_, 3), (t0_, 0), (t1_, 0)) for j in range(6)] if fo else []
    for mi in (1, 2, 3):
        for pq in range(3):
            t0 = acc(mi, 2 * pq); t1 = acc(mi, 2 * pq + 1)
            T = 40 + (k % 6) * 4; k += 1
            av = seq.index((t1_, mi, 2 * pq + 1)) + 3 if fo else 0
            o = [f"v_cvt_pk_bf16_f32 v{T}, v{t0}, v{t0+1}", f"v_cvt_pk_bf16_f32 v{T+1}, v{t0+2}, v{t0+3}", f"v_cvt_pk_bf16_f32 v{T+2}, v{t1}, v{t1+1}", f"v_cvt_pk_bf16_f32 v{T+3}, v{t1+2}, v{t1+3}"]
            o += [f"v_min_u32 v{T+r}, -2, v{T+r}" for r in range(4)]
            o += [f"buffer_store_dwordx4 {vr(T,4)}, v5, s[56:59], s44 offen offset:{pq*1024} {XM if LX != 2 or mi == 1 else SC}"]
            if pq == 2 and mi < 3: o += ["s_add_u32 s44, s44, 3072"]
            eq += [(av, x) for x in o]
    rd = read_ops(t1_)
    for n_, (t, mi, j) in enumerate(seq):
        if n_ == 12: a("s_waitcnt lgkmcnt(0)")
        a(f"v_mfma_f32_16x16x32_bf16 {vr(acc(mi,j),4)}, {vr(fb(t,j),4)}, {vr(fa(t,mi),4)}, {vr(acc(mi,j),4)}")
        for _ in range(2):
            if rd: a(rd.pop(0))
        u = 0
        while eq and eq[0][0] <= n_ and (u < fo or not eq[0][1].startswith("v_")):
            x = eq.pop(0)[1]; a(x); u += x.startswith("v_")
    if stamp: stamp_to(a, 71)
    if len(eq) < 8: a("s_nop 7")
    for av, x in eq: a(x)
    for j in range(6): a(f"ds_write_b128 v6, {vr(acc(0,j),4)} offset:{1024*j}")
    a("s_waitcnt lgkmcnt(0)")
    a("s_barrier")
    if stamp: stamp_out(a, (72, 80, 75, 71, 82, sT, 73, 74))
    a("s_endpgm")

    a.label(f"{name}_prod")
    if stamp: stamp_to(a, 74)
    issued = 21; landed = {2: 0, 3: 11, 4: 21}; pidx = 1
    QR = 32; QG = 48; S = 72; PU = 96; ZU = 144; vG = 44; vSL = 45; vSH = 46; vOM = 47
    vQ0, vQ1, vL16, vZ, vP0, vP1, vXR = 26, 27, 28, 29, 30, 31, 25
    for st in range(1, NST - 1):
        need = landed[st + 1]
        ev = st % 2 == 0 and st + 4 < NST
        if ev: need = max(need, pidx)
        a(f"s_waitcnt vmcnt({issued - need})")
        a("s_barrier")
        if st == 3:
            for x in pubmask(84) + publish(63, 24): a(x)
            issued += 1
        if st + 4 < NST:
            if ev and poll:
                for x in poll_eval(24): a(x)
                spin(a, (st + 4) >> 1, f"{name}_ps{st}", 24)
                if st + 6 < NST:
                    for x in poll_issue((8 << ((st + 4) >> 1)) - 1 & 0x1ff): a(x)
                    issued += 1; pidx = issued
            for x in st_off(st + 4): a(x)
            b = (st % 4) * G2_STAGE
            issued += emit(a, dmaA(b) + dmaB(b)); landed[st + 4] = issued
        def tf_loads():
            a("s_mov_b64 exec, s[36:37]")
            a(f"buffer_load_dword v12, v10, s[92:95], 0 offen {SC}")
            a("s_mov_b64 exec, s[38:39]")
            a(f"buffer_load_dword v13, v11, s[92:95], 0 offen {SC}")
            a("s_mov_b64 exec, -1")
        if st == TFS:
            a(f"s_and_b32 s23, s{sT}, 7")
            for i in (1, 2, 3):
                if LX == 1:
                    a(f"s_xor_b32 s34, s79, {i}")
                    a("s_sub_u32 s34, s34, s79")
                    a("s_mul_i32 s34, s34, 3")
                    a(f"s_add_u32 s{49+i}, s34, s77")
                elif LX == 2:
                    a(f"s_xor_b32 s34, s79, {i&1}")
                    a("s_sub_u32 s34, s34, s79")
                    a("s_mul_i32 s34, s34, 3")
                    a(f"s_xor_b32 s35, s23, {2*(i&2)}")
                    a("s_mul_i32 s35, s35, 24")
                    a("s_add_u32 s34, s34, s35")
                    a(f"s_add_u32 s{49+i}, s34, s78")
                else:
                    a(f"s_xor_b32 s34, s23, {2*i}")
                    a("s_mul_i32 s34, s34, 24")
                    a(f"s_add_u32 s{49+i}, s34, s78")
            if poll:
                a("v_and_b32 v10, 63, v0")
                a("v_lshlrev_b32 v10, 7, v10")
                a(f"v_add_u32 v10, {32768 + 192*128}, v10")
                a("v_mov_b32 v11, s50")
                a("v_writelane_b32 v11, s51, 1")
                a("v_writelane_b32 v11, s52, 2")
                a("v_lshlrev_b32 v11, 7, v11")
                a("v_add_u32 v11, 32768, v11")
                a("v_mov_b32 v12, 1")
                a("v_mov_b32 v13, 1")
                a("s_cmp_eq_u32 s86, 0")
                a("s_mov_b32 s36, 0xff008000")
                a("s_cselect_b32 s36, 0x80ffffff, s36")
                a("s_mov_b32 s37, 0x8000ffff")
                a("s_cselect_b32 s37, 0x80008000, s37")
                a("s_cmp_eq_u32 s86, 2")
                a("s_cselect_b64 s[36:37], -1, s[36:37]")
                a("s_lshl_b32 s34, 0x11111111, s84")
                a("s_and_b32 s36, s36, s34")
                a("s_and_b32 s37, s37, s34")
                a("s_and_b32 s38, s34, 7")
                a("s_mov_b32 s39, 0")
                tf_loads()
                issued += 2
        if st == NST - 5 and poll:
            tg = f"{name}_tf"
            a(f"s_movk_i32 s{sCNT}, 0x4000")
            a.label(f"{tg}_l")
            a("v_and_b32 v14, v12, v13")
            a("v_cmp_eq_u32 vcc, 1, v14")
            a("s_nop 1")
            a("s_cmp_eq_u64 vcc, -1")
            a(f"s_cbranch_scc1 {tg}_ok")
            a("s_sleep 4")
            tf_loads()
            a("s_waitcnt vmcnt(0)")
            a(f"s_sub_u32 s{sCNT}, s{sCNT}, 1")
            a(f"s_cbranch_scc0 {tg}_l")
            a.label(f"{tg}_ok")
        if st == NST - 4:
            a(f"s_load_dwordx2 s[44:45], s[0:1], {KA['out']}")
            for x in ws_srd(56, WS_OB, OB_BYTES): a(x)
            a("s_and_b32 s42, s22, 1")
            a("s_lshr_b32 s43, s84, 1")
            a("s_lshl_b32 s42, s42, 1")
            a("s_lshr_b32 s34, s79, 1")
            a("s_add_u32 s42, s42, s34")
            for x in pair_of(42, 29, 87, 88, 89, 34, 35): a(x)
            a("s_lshl_b32 s29, s29, 1")
            a("s_and_b32 s34, s79, 1")
            a("s_add_u32 s29, s29, s34")
            a(f"s_mul_i32 s30, s29, {16*1152}")
            a("s_mul_i32 s34, s86, 384")
            a("s_add_u32 s30, s30, s34")
            a("s_mul_i32 s34, s43, 192")
            a("s_add_u32 s30, s30, s34")
            a("v_bfe_u32 v3, v0, 4, 2")
            a("v_and_b32 v4, 15, v0")
            a(f"v_mul_u32_u24 v{vQ0}, 1152, v4")
            a(f"v_lshl_add_u32 v{vQ0}, v3, 4, v{vQ0}")
            a("v_lshrrev_b32 v5, 1, v3")
            a(f"v_lshl_add_u32 v10, v5, 3, v{vQ0}")
            a(f"v_xor_b32 v{vQ1}, 8, v10")
            for pq in range(3):
                a(f"buffer_load_dwordx2 {vr(QR+4*pq,2)}, v10, s[8:11], s30 offen offset:{64*pq}")
                a(f"buffer_load_dwordx2 {vr(QR+4*pq+2,2)}, v{vQ1}, s[8:11], s30 offen offset:{64*pq}")
            a("v_lshlrev_b32 v10, 2, v4")
            a("s_lshl_b32 s34, s29, 6")
            a(f"s_add_u32 s34, s34, {G_OFF}")
            a(f"buffer_load_dword v{vG}, v10, s[56:59], s34 offen {SC}")
            issued += 7
            a(f"v_and_b32 v{vL16}, 63, v0")
            a(f"v_lshlrev_b32 v{vL16}, 4, v{vL16}")
            a("s_mul_i32 s34, s84, 6144")
            a(f"s_add_u32 s34, s34, {XCH}")
            a(f"v_add_u32 v{vXR}, s34, v{vL16}")
            a(f"v_mul_u32_u24 v{vZ}, {OBS}, v3")
            a(f"v_lshl_add_u32 v{vZ}, v4, 4, v{vZ}")
            a("v_lshl_add_u32 v10, v3, 1, v5")
            a(f"v_mul_u32_u24 v{vP0}, {4*OBS}, v10")
            a(f"v_lshl_add_u32 v{vP0}, v4, 3, v{vP0}")
            a("v_xor_b32 v10, 1, v10")
            a(f"v_mul_u32_u24 v{vP1}, {4*OBS}, v10")
            a(f"v_lshl_add_u32 v{vP1}, v4, 3, v{vP1}")
            for i in (1, 2, 3):
                a(f"s_mul_i32 s{59+i}, s{49+i}, {OBS}")
                a("s_mul_i32 s34, s84, 9216")
                a(f"s_add_u32 s{59+i}, s{59+i}, s34")
                a(f"s_add_u32 s{59+i}, s{59+i}, {(i-1)*3072}")
            a("s_mul_i32 s63, s86, 24")
            a("s_mul_i32 s34, s43, 12")
            a("s_add_u32 s63, s63, s34")
            a("s_add_u32 s34, s63, 192")
            a(f"s_mul_i32 s64, s34, {OBS}")
            a("s_lshr_b32 s34, s29, 4")
            a("s_lshl_b32 s35, s34, 12")
            a("s_add_u32 s64, s64, s35")
            a("s_lshl_b32 s65, s34, 9")
            a("s_and_b32 s34, s29, 3")
            a("s_lshl_b32 s35, s34, 10")
            a("s_add_u32 s64, s64, s35")
            a("s_lshr_b32 s34, s34, 1")
            a("s_lshl_b32 s34, s34, 2")
            a("s_add_u32 s65, s65, s34")
            a("s_bfe_u32 s34, s29, 0x20002")
            a("s_lshl_b32 s35, s34, 8")
            a("s_add_u32 s64, s64, s35")
            a("s_lshl_b32 s34, s34, 7")
            a("s_add_u32 s65, s65, s34")
            a(f"s_add_u32 s65, s65, {192*OBS + 32768}")
            a("s_bitcmp1_b32 s29, 0")
            a("s_mov_b32 s31, 0x05040100")
            a("s_cselect_b32 s31, 0x07060302, s31")
            a("s_waitcnt lgkmcnt(0)")
            a("s_and_b32 s45, s45, 0xffff")
            a(f"s_mov_b32 s46, {2048*1152}")
            a("s_mov_b32 s47, 0x00020000")
    a("s_waitcnt vmcnt(0)")
    a(f"v_sub_f32 v{vOM}, 1.0, v{vG}")
    a(f"v_cvt_pk_bf16_f32 v{vSL}, v{vOM}, v{vOM}")
    a(f"v_and_b32 v{vSH}, 0xffff0000, v{vSL}")
    a(f"v_lshrrev_b32 v{vSL}, 16, v{vSL}")
    for i in range(12):
        a(f"v_lshlrev_b32 v{QG+2*i}, 16, v{QR+i}")
        a(f"v_and_b32 v{QG+2*i+1}, 0xffff0000, v{QR+i}")
    for i in range(24): a(f"v_mul_f32 v{QG+i}, v{QG+i}, v{vG}")
    a("v_cmp_lt_u32 s[52:53], 1, v3")
    def final(tag, pool):
        MK = [36, 38, 40, 54]
        def loads(grp):
            o = []
            if grp < 3:
                for pq in range(3): o.append(f"buffer_load_dwordx4 {vr(PU+16*grp+4*pq,4)}, v{vL16}, s[56:59], s{60+grp} offen offset:{1024*pq} {SC}")
            else:
                o.append(f"buffer_load_dwordx4 {vr(ZU,4)}, v{vZ}, s[56:59], s64 offen {SC}")
                if not pool:
                    for pq in (1, 2):
                        o.append(f"s_add_u32 s34, s64, {4*pq*OBS}")
                        o.append(f"buffer_load_dwordx4 {vr(ZU+4*pq,4)}, v{vZ}, s[56:59], s34 offen {SC}")
                else:
                    for pq in (1, 2):
                        for e in range(4):
                            o.append(f"s_add_u32 s34, s65, {(32*(pq-1) + e)*OBS}")
                            o.append(f"buffer_load_dword v{ZU+4+8*(pq-1)+e}, v{vP0}, s[56:59], s34 offen {SC}")
                            o.append(f"buffer_load_dword v{ZU+4+8*(pq-1)+4+e}, v{vP1}, s[56:59], s34 offen {SC}")
            return o
        def regs(grp):
            if grp < 3: return list(range(PU + 16 * grp, PU + 16 * grp + 12))
            return list(range(ZU, ZU + (20 if pool else 12)))
        if pre:
            for grp in range(4):
                for x in loads(grp): a(x)
        a("s_mov_b32 s67, 15")
        a("s_barrier")
        if stamp: stamp_to(a, 71)
        if dly: a(f"s_sleep {dly}")
        if not pre:
            for grp in range(4):
                for x in loads(grp): a(x)
        for j in range(6): a(f"ds_read_b128 {vr(S+4*j,4)}, v{vXR} offset:{1024*j}")
        a(f"s_movk_i32 s{sCNT}, 0x4000")
        a("s_waitcnt lgkmcnt(0)")
        for i in range(24): a(f"v_mul_f32 v{S+i}, v{vSH}, v{S+i}")
        if stamp == 2:
            a("s_waitcnt vmcnt(9)"); stamp_to(a, 73)
        a.label(f"{tag}_round")
        a("s_waitcnt vmcnt(0)")
        if stamp == 2: stamp_to(a, 74)
        for grp in range(4):
            r = regs(grp); t = 10 + grp
            a(f"v_max3_u32 v{t}, v{r[0]}, v{r[1]}, v{r[2]}")
            r = r[3:]
            while len(r) > 1:
                a(f"v_max3_u32 v{t}, v{t}, v{r[0]}, v{r[1]}"); r = r[2:]
            if r: a(f"v_max_u32 v{t}, v{t}, v{r[0]}")
            a(f"v_cmp_eq_u32 s[{MK[grp]}:{MK[grp]+1}], -1, v{t}")
        a("s_nop 1")
        a(f"s_or_b64 s[68:69], s[{MK[0]}:{MK[0]+1}], s[{MK[1]}:{MK[1]+1}]")
        a(f"s_or_b64 s[68:69], s[68:69], s[{MK[2]}:{MK[2]+1}]")
        a(f"s_or_b64 s[68:69], s[68:69], s[{MK[3]}:{MK[3]+1}]")
        a(f"s_cbranch_scc0 {tag}_nold")
        if nsleep: a(f"s_sleep {nsleep}")
        for grp in range(4):
            a(f"s_mov_b64 exec, s[{MK[grp]}:{MK[grp]+1}]")
            a(f"s_cbranch_execz {tag}_sk{grp}")
            for x in loads(grp): a(x)
            a.label(f"{tag}_sk{grp}")
        a("s_mov_b64 exec, -1")
        a.label(f"{tag}_nold")
        for grp in range(4):
            a(f"s_cmp_eq_u64 s[{MK[grp]}:{MK[grp]+1}], 0")
            a(f"s_cbranch_scc0 {tag}_na{grp}")
            a(f"s_bitcmp1_b32 s67, {grp}")
            a(f"s_cbranch_scc0 {tag}_na{grp}")
            a(f"s_bitset0_b32 s67, {grp}")
            if grp < 3:
                for i in range(12):
                    a(f"v_dot2_f32_bf16 v{S+2*i}, v{PU+16*grp+i}, v{vSL}, v{S+2*i}")
                    a(f"v_dot2_f32_bf16 v{S+2*i+1}, v{PU+16*grp+i}, v{vSH}, v{S+2*i+1}")
            else:
                ZT = ZU + 24
                zs = [ZU + i for i in range(12)]
                if pool:
                    for i in range(8):
                        a(f"v_perm_b32 v{ZT+24+i}, v{ZU+4+2*i+1}, v{ZU+4+2*i}, s31")
                        zs[4 + i] = ZT + 24 + i
                for i in range(12):
                    a(f"v_lshlrev_b32 v{ZT+2*i}, 16, v{zs[i]}")
                    a(f"v_and_b32 v{ZT+2*i+1}, 0xffff0000, v{zs[i]}")
                for i in range(24): a(f"v_fmac_f32 v{S+i}, v{QG+i}, v{ZT+i}")
            a.label(f"{tag}_na{grp}")
        a("s_cmp_eq_u32 s67, 0")
        a(f"s_cbranch_scc1 {tag}_fin")
        a(f"s_sub_u32 s{sCNT}, s{sCNT}, 1")
        a(f"s_cbranch_scc0 {tag}_round")
        a.label(f"{tag}_fin")
        if stamp: a(f"s_mov_b32 s75, s{sCNT}")
        a("s_nop 2")
        for pq in range(3):
            T = QR + 4 * pq; O = PU + 4 * pq
            for r in range(4): a(f"v_cvt_pk_bf16_f32 v{T+r}, v{S+8*pq+2*r}, v{S+8*pq+2*r+1}")
            for r in range(4): a(f"v_cndmask_b32 v{O+r}, v{T+r}, v{T+(r^2)}, s[52:53]")
            a(f"buffer_store_dwordx4 {vr(O,4)}, v{vQ0}, s[44:47], s30 offen offset:{64*pq} {OM}")
        if stamp: stamp_out(a, (72, 80, 75, 71, 82, sT, 73, 74))
        a("s_endpgm")
    a("s_cmp_eq_u32 s63, 60")
    a(f"s_cbranch_scc1 {name}_fpool")
    final(f"{name}_fn", False)
    a.label(f"{name}_fpool")
    final(f"{name}_fp", True)
    conv7(a, name, stamp=stamp, AB=AB)


def gate7(a, name, stamp):
    a.label(f"{name}_gate")
    a(f"s_load_dwordx2 s[8:9], s[0:1], {KA['q']}")
    a(f"s_load_dwordx2 s[16:17], s[0:1], {KA['gate_w']}")
    a(f"s_load_dwordx2 s[6:7], s[0:1], {KA['ws']}")
    a(f"s_load_dwordx2 s[28:29], s[0:1], {KA['dbg']}")
    for x in conv_ptrs() + kp_ptrs(): a(x)
    a("v_lshrrev_b32 v1, 6, v0")
    a("v_and_b32 v2, 63, v0")
    a("v_readfirstlane_b32 s22, v1")
    a("v_and_b32 v3, 7, v2")
    a("v_lshrrev_b32 v4, 3, v2")
    a("s_lshl_b32 s50, s49, 3")
    a("s_add_u32 s50, s50, s22")
    a(f"s_mul_i32 s51, s50, {64*1152}")
    a("s_lshr_b32 s33, s22, 2")
    a("v_mul_u32_u24 v5, 1152, v4")
    a("v_lshl_add_u32 v5, v3, 4, v5")
    a("v_lshlrev_b32 v6, 4, v3")
    for k in range(4): a(f"v_mov_b32 v{12+k}, -1")
    a("v_lshlrev_b32 v7, 4, v2")
    a("s_waitcnt lgkmcnt(0)")
    for x in in_srd(8, 8, 2048 * 1152) + in_srd(16, 16, 1152) + in_srd(28, 28, 256) + clear_setup() + ws_srd(92, WS_FL, FL_BYTES) + pubmask(22): a(x)
    a("s_cmp_eq_u32 s49, 0")
    a(f"s_cbranch_scc0 {name}_gnc")
    for k in range(4): a(f"v_mov_b32 v{16+k}, 0")
    a("s_lshl_b32 s34, s22, 13")
    a("s_add_u32 s35, s34, 4096")
    for k in range(8): a(f"buffer_store_dwordx4 v[16:19], v7, s[92:95], s{34 + (k>>2)} offen offset:{1024*(k&3)} {SC}")
    a("s_waitcnt vmcnt(0)")
    a("s_barrier")
    a("s_and_b64 exec, s[100:101], 1")
    a(f"buffer_store_dword v12, off, s[28:31], 0 {SC}")
    a("s_mov_b64 exec, -1")
    a.label(f"{name}_gnc")
    for i in range(3 * GK):
        for x in gk_loads(244, i): a(x)
    GW = 16; QQ = 64
    for j in range(9): a(f"buffer_load_dwordx4 {vr(GW+4*j,4)}, v6, s[16:19], 0 offen offset:{128*j}")
    def qld(st):
        b = QQ + (st % 5) * 36
        for j in range(9): a(f"buffer_load_dwordx4 {vr(b+4*j,4)}, v5, s[8:11], s51 offen offset:{128*j}")
        a(f"s_add_u32 s51, s51, {8*1152}")
    for st in range(5):
        if st == 4: a('s_waitcnt vmcnt(50)')
        qld(st)
    a("v_mov_b32 v10, 0")
    for st in range(8):
        b = QQ + (st % 5) * 36
        a(f"s_waitcnt vmcnt({9 * (min(8, st + 5) - st - 1)})")
        a("v_mov_b32 v8, 0"); a("v_mov_b32 v9, 0")
        for k in range(36): a(f"v_dot2_f32_bf16 v{8+(k&1)}, v{b+k}, v{GW+k}, v{8+(k&1)}")
        a("s_nop 3")
        if st + 5 < 8: qld(st + 5)
        a("v_add_f32 v8, v8, v9")
        a("s_nop 1")
        a("v_add_f32_dpp v8, v8, v8 quad_perm:[1,0,3,2] row_mask:0xf bank_mask:0xf")
        a("s_nop 1")
        a("v_add_f32_dpp v8, v8, v8 quad_perm:[2,3,0,1] row_mask:0xf bank_mask:0xf")
        a("s_nop 1")
        a("v_add_f32_dpp v8, v8, v8 row_half_mirror row_mask:0xf bank_mask:0xf")
        a(f"v_cmp_eq_u32 vcc, {st}, v3")
        a("v_cndmask_b32 v10, v10, v8, vcc")
    for k in range(5):
        a(f"buffer_store_dwordx4 v[12:15], v7, s[56:59], s69 offen {SC}")
        a("s_add_u32 s69, s69, 1024")
    a("v_cvt_pk_bf16_f32 v11, v10, v10")
    a("v_lshlrev_b32 v10, 16, v11")
    a("v_mul_f32 v10, 0xbfb8aa3b, v10")
    a("v_exp_f32 v10, v10")
    a("s_nop 0")
    a("v_add_f32 v10, 1.0, v10")
    a("v_rcp_f32 v10, v10")
    a("s_nop 0")
    a("v_cvt_pk_bf16_f32 v11, v10, v10")
    a("v_lshlrev_b32 v10, 16, v11")
    a("v_lshl_add_u32 v11, v3, 3, v4")
    a("v_lshlrev_b32 v11, 2, v11")
    a("s_lshl_b32 s50, s50, 8")
    a(f"s_add_u32 s50, s50, {G_OFF}")
    a(f"buffer_store_dword v10, v11, s[56:59], s50 offen {SC}")
    for i in range(6 * GK):
        if i >= 3: a(f"s_waitcnt vmcnt({[16, 10, 4][i-3]})")
        for x in gk_task(i) + gk_reads(24, 0) + gk_reads(64, 1): a(x)
        a("s_waitcnt lgkmcnt(0)")
        for ch in range(2):
            t = 24 + 40 * ch
            for x in kp_valu(t, ch): a(x)
            a(f"global_store_dwordx4 v{t+5}, {vr(t+12,4)}, s[64:65] offset:{-128*ch} {SC}")
        if i < 3:
            for x in gk_loads(244, i + 3): a(x)
    for x in conv_srd(24, 19) + conv_ssm() + ["v_mov_b32 v1, v19", "v_mov_b32 v2, v20"] + img_zero(24): a(x)
    for b in range(5): emit(a, pl_dma(b))
    a(f"s_movk_i32 s{sCNT}, 0x4000")
    a.label(f"{name}_gl")
    a("s_mov_b64 exec, 1")
    a(f"buffer_load_dword v{vPL}, off, s[28:31], 0 {SC}")
    a("s_mov_b64 exec, -1")
    a("s_waitcnt vmcnt(0)")
    a(f"v_readfirstlane_b32 s34, v{vPL}")
    a("s_cmp_lg_u32 s34, 0")
    a(f"s_cbranch_scc1 {name}_gok")
    a("s_sleep 2")
    a(f"s_sub_u32 s{sCNT}, s{sCNT}, 1")
    a(f"s_cbranch_scc0 {name}_gl")
    a.label(f"{name}_gok")
    a("s_waitcnt lgkmcnt(0)")
    a("s_barrier")
    a(f"s_lshl_b32 s{sPFO}, s49, 7")
    a(f"s_add_u32 s{sPFO}, s{sPFO}, {252*128}")
    for x in publish(1, 24, sTFO) + publish(1 << I_KV, 26): a(x)
    a(f"v_mov_b32 v{vPL}, 0")
    kv_wait(a, f"{name}_gkw", 24)
    a("s_mov_b64 s[100:101], 0")
    a("s_barrier")
    emit(a, img_dma() + x9_dma())
    a("s_waitcnt vmcnt(0)")
    a("s_barrier")
    conv_head(a, stamp)
    a(f"s_branch {name}_conv")

def conv7(a, name, stamp=False, AB=1, CBS=2):
    vAA = 10; vA9 = 14
    a.label(f"{name}_conv")
    Z = FX + 8
    for k in range(4): a(f"v_mov_b32 v{Z+k}, 0")
    a(f"v_bfe_u32 v7, v2, 1, 1")
    a(f"v_mul_u32_u24 v7, {PL}, v7")
    a(f"v_and_b32 v8, 1, v2")
    a(f"v_lshl_add_u32 v7, v8, 4, v7")
    a(f"v_add_u32 v8, s32, v7")
    a(f"v_add_u32 v7, {P0 + 8*CS}, v7")
    a(f"v_mov_b32 v28, {P0 + PL + 8*CS + 32}")
    a("s_waitcnt lgkmcnt(8)")
    a(f"v_lshlrev_b32 v{FX+4}, 16, v{FX}")
    for k in range(1, 4): a(f"v_alignbit_b32 v{FX+4+k}, v{FX+k}, v{FX+k-1}, 16")
    a("s_mov_b64 exec, 15")
    a(f"ds_write_b128 v8, {vr(Z,4)}")
    a(f"ds_write_b128 v7, {vr(Z,4)}")
    a("s_mov_b64 exec, 1")
    a(f"ds_write_b128 v9, {vr(FX+4,4)} offset:{PL + 32}")
    a("s_cmp_eq_u32 s22, 0")
    a("s_cselect_b64 exec, 1, 0")
    a(f"ds_write_b16 v28, v{Z}")
    a("s_mov_b64 exec, -1")
    a("v_add_u32 v17, 1, v4")
    a("v_and_b32 v17, 1, v17")
    a(f"v_mul_u32_u24 v18, {PL + 2}, v17")
    a("v_lshl_add_u32 v18, v4, 1, v18")
    a("v_lshl_add_u32 v18, v3, 4, v18")
    a("s_add_u32 s34, s32, 2")
    a(f"v_add_u32 v{vAA}, s34, v18")
    for k in range(1, 4): a(f"v_add_u32 v{vAA+k}, {1024*k}, v{vAA}")
    def areads(r, i, va):
        o = 128 * (i & 1) + 16 * r
        return [f"ds_read2_b32 {vr(AF+4*i+2*h,2)}, v{va + (i>>1)} offset0:{o + 2*h} offset1:{o + 2*h + 1}" for h in range(2)]
    lg = dict(n=0, w=0); idx = {}
    def rd(tag, ins):
        for x in ins: a(x); lg['n'] += 1
        idx[tag] = lg['n']
    def need(tag):
        k = idx.get(tag, 0)
        if k > lg['w']:
            n = min(15, lg['n'] - k)
            a(f"s_waitcnt lgkmcnt({n})"); lg['w'] = lg['n'] - n
    rd("B", ["s_nop 0"]); lg['n'] = 0; idx["B"] = 0
    for i in range(8): rd(("A", 0, i), areads(0, i, vAA))
    a("s_lshl_b32 s34, s22, 6")
    a(f"s_add_u32 s35, s34, {P0 + 8*CS + 2}")
    a(f"v_add_u32 v{vA9}, s35, v18")
    for k in range(1, 4): a(f"v_add_u32 v{vA9+k}, {1024*k}, v{vA9}")
    a("v_lshlrev_b32 v20, 5, v4")
    a("v_lshlrev_b32 v21, 4, v3")
    a("v_sub_u32 v21, v21, v20")
    a(f"s_add_u32 s34, s34, {X9 + 480}")
    a("v_add_u32 v22, s34, v21")
    a("v_lshl_add_u32 v23, v2, 3, s32")
    a("v_lshl_add_u32 v20, v3, 3, v4")
    a("v_sub_u32 v20, 15, v20")
    a("v_and_b32 v21, 1, v20")
    a("v_lshlrev_b32 v21, 4, v21")
    a("v_lshrrev_b32 v20, 1, v20")
    for s, ch in ((60, 22), (61, 78)):
        a(f"s_and_b32 s34, s{ch}, 1")
        a("s_lshl_b32 s34, s34, 4")
        a(f"s_lshr_b32 s{s}, s{s}, s34")
        a(f"s_and_b32 s{s}, s{s}, 0xffff")
    a("s_cmp_eq_u32 s22, 0")
    a("s_cselect_b32 s61, s61, 0")
    a("v_lshlrev_b32 v19, v21, s60")
    a("v_lshlrev_b32 v21, v21, s61")
    for q in range(4):
        a(f"v_cmp_eq_u32 vcc, {q}, v20")
        a(f"v_cndmask_b32 v{AD+q}, 0, v19, vcc")
        a(f"v_cndmask_b32 v{AD9+q}, 0, v21, vcc")
    a("s_waitcnt lgkmcnt(15)"); lg['w'] = 1
    if stamp: stamp_to(a, 75); lg['w'] = lg['n']
    extra = []
    for st in range(9):
        acc = CA if st < 8 else C9
        ms = []
        if st in (0, 8):
            for nt in range(7, -1, -1): ms.append((nt, None, nt))
        for aa in range(8):
            for nt in range(7, aa - 1, -1): ms.append((nt, aa, nt - aa))
        if st == 1: extra = [[x] for x in ws_srd(16, WS_OB, OB_BYTES)]
        if st == 8:
            extra = [[]] * 4
            for nt in range(8):
                y = CA + 4 * nt
                extra += [[f"v_cvt_pk_bf16_f32 v{HL+2*nt}, v{y}, v{y+1}"], [f"v_cvt_pk_bf16_f32 v{HL+2*nt+1}, v{y+2}, v{y+3}"], [("z", f"ds_write_b64 v23, {vr(HL+2*nt,2)} offset:{512*nt}")]]
            extra += [[f"s_add_u32 s34, s32, {PL}"], ["v_add_u32 v17, s34, v5"], [f"v_add_u32 v18, {P2 - PL - P0}, v17"]]
        for k, (nt, aa, bi) in enumerate(ms):
            need(("B", st, bi))
            if aa is not None: need(("A", st, aa))
            c = "0" if aa is None else vr(acc + 4 * nt, 4)
            af = AF + 4 * aa if aa is not None else (AD if st == 0 else AD9)
            a(f"v_mfma_f32_16x16x32_bf16 {vr(acc+4*nt,4)}, {vr(BF+4*bi,4)}, {vr(af,4)}, {c}")
            if aa is not None and st < 8:
                if nt == 7: rd(("B", st + 1, bi), [breads(st + 1, bi) if st < 7 else f"ds_read_b128 {vr(BF+4*bi,4)}, v22 offset:{3584 - 512*bi}"])
                if nt == aa: rd(("A", st + 1, aa), areads(st + 1, aa, vAA) if st < 7 else areads(0, aa, vA9))
            if extra:
                for x in extra.pop(0):
                    if isinstance(x, tuple): rd(x[0], [x[1]])
                    else: a(x)
        assert not extra
        if st == CBS:
            a("s_waitcnt vmcnt(0)")
            a("s_barrier")
            for x in publish(63, 28): a(x)
    a("s_nop 7")
    a("s_nop 3")
    for nt in range(8): a(f"ds_write_b128 v{17 + (nt>>2)}, {vr(C9+4*nt,4)} offset:{1024*(nt&3)}")
    a("s_waitcnt lgkmcnt(0)")
    a("s_barrier")
    if stamp: stamp_to(a, 71)
    a("s_bitcmp1_b32 s78, 1")
    a(f"s_cselect_b32 s42, {4*CS}, 0")
    a(f"s_cselect_b32 s43, 0, {4*CS}")
    a(f"s_add_u32 s42, s42, {P0}")
    a(f"s_add_u32 s43, s43, {P0}")
    a("v_lshl_add_u32 v17, v0, 3, s42")
    a("v_lshl_add_u32 v18, v0, 3, s43")
    for e in range(8): a(f"ds_read_b64 {vr(AF+2*e,2)}, v{17 + (e>>2)} offset:{(e&3)*CS}")
    a("s_and_b32 s42, s22, 3")
    a("s_lshl_b32 s42, s42, 10")
    a(f"s_mul_i32 s43, s33, {P2 - PL - P0}")
    a("s_add_u32 s42, s42, s43")
    a(f"s_add_u32 s42, s42, {P0 + PL}")
    a("v_add_u32 v19, s42, v5")
    for e in range(8): a(f"ds_read_b128 {vr(BF+4*e,4)}, v19 offset:{e*CS}")
    a("s_mov_b32 s56, 0x05040100")
    a("s_mov_b32 s57, 0x07060302")
    a(f"s_mul_i32 s58, s77, {OBS}")
    a("s_lshl_b32 s59, s22, 9")
    a("s_add_u32 s59, s59, s58")
    a("s_add_u32 s59, s59, 32768")
    a("s_lshl_b32 s60, s22, 12")
    a("s_add_u32 s58, s58, s60")
    a("v_lshlrev_b32 v21, 3, v2")
    a("s_waitcnt lgkmcnt(8)")
    for j in range(4):
        for p in range(4):
            a(f"v_perm_b32 v{CA+4*j+p}, v{AF+2*(2*p+1)+(j>>1)}, v{AF+2*(2*p)+(j>>1)}, s{57 if j&1 else 56}")
        for p in range(4): a(f"v_min_u32 v{CA+4*j+p}, -2, v{CA+4*j+p}")
        a(f"buffer_store_dwordx4 {vr(CA+4*j,4)}, v5, s[16:19], s58 offen offset:{1024*j} {SC}")
    a("s_waitcnt lgkmcnt(0)")
    for e in range(1, 8):
        a(f"v_pk_add_f32 {vr(BF,2)}, {vr(BF,2)}, {vr(BF+4*e,2)}")
        a(f"v_pk_add_f32 {vr(BF+2,2)}, {vr(BF+2,2)}, {vr(BF+4*e+2,2)}")
    a(f"v_cvt_pk_bf16_f32 v{CA+20}, v{BF}, v{BF+1}")
    a(f"v_cvt_pk_bf16_f32 v{CA+21}, v{BF+2}, v{BF+3}")
    a(f"v_min_u32 v{CA+20}, -2, v{CA+20}")
    a(f"v_min_u32 v{CA+21}, -2, v{CA+21}")
    a(f"buffer_store_dwordx2 {vr(CA+20,2)}, v21, s[16:19], s59 offen {SC}")
    if stamp:
        a(f"s_add_u32 s76, s{sT}, 1000")
        stamp_out(a, (72, 80, 75, 71, 82, 76, 73, 74))
    a("s_endpgm")
```

```python
from gen_common import *
import os
WS_OB = 0x1400000; OBS = 40960; OB_BYTES = 256 * OBS + 8192
G_OFF = 256 * OBS
WS_XR = 0x3000000; XR_BYTES = 576 * 4096
LDS_ALL = 163840
SC = "sc0 sc1"
sT, sCNT, sTFO = 96, 98, 99
sPFO = 2
I_A1, I_A2, I_MID, I_B1, I_FIN, I_KV = 0, 1, 2, 3, 4, 5
LDS_SCR = 83968
LX = int(os.environ.get('LX', 0))
WS_FL = WS_OB + OB_BYTES; FL_BYTES = 65536
G2_STAGE = 40960
BBIAS = 2048
vB = [1, 2, 6]; vA = 3; vPA = 22; vPL = 9

def conv_masks():
    ms = []
    for par in range(2):
        pick = []
        if par: pick.append(31)
        for want in (4, 3, 2, 1, 0):
            for idx in range(32):
                r = 32 * par + idx
                if r < 63 and r % 7 == want and len(pick) < 8: pick.append(idx)
        ms.append(sum(1 << i for i in pick))
    return ms
CM = conv_masks()
GK = int(os.environ.get('GK', 0))
KM = ['', ' nt', ' sc0 sc1', ' sc1'][int(os.environ.get('KM', 0))]
GKL = [r // 7 for r in range(63) if r % 7 == 3 and CM[r >> 5] >> (r & 31) & 1]
assert len(GKL) == 6

def p2_ids(cv, ob, gi, t0, t1):
    return [f"s_lshr_b32 s{t0}, s{sT}, 3",
            f"s_bitcmp1_b32 s{sT}, 0",
            f"s_mov_b32 s{t1}, {CM[0]}",
            f"s_cselect_b32 s{t1}, {CM[1]}, s{t1}",
            f"s_lshr_b32 s{cv}, s{t1}, s{t0}",
            f"s_and_b32 s{cv}, s{cv}, 1",
            f"s_bfm_b32 s{gi}, s{t0}, 0",
            f"s_and_b32 s{gi}, s{gi}, s{t1}",
            f"s_bcnt1_i32_b32 s{gi}, s{gi}",
            f"s_sub_u32 s{t0}, s{t0}, s{gi}",
            f"s_and_b32 s{t1}, s{sT}, 7",
            f"s_mul_i32 s{ob}, s{t1}, 24",
            f"s_add_u32 s{ob}, s{ob}, s{t0}",
            f"s_lshl_b32 s{t1}, s{t1}, 3",
            f"s_add_u32 s{gi}, s{gi}, s{t1}",
            f"s_add_u32 s{t1}, s{gi}, 192",
            f"s_cmp_eq_u32 s{cv}, 1",
            f"s_cselect_b32 s{gi}, s{gi}, s{t0}",
            f"s_cselect_b32 s{ob}, s{t1}, s{ob}"]

def ws_srd(d, off, nbytes):
    return [f"s_add_u32 s{d}, s6, {off}", f"s_addc_u32 s{d+1}, s7, 0", f"s_and_b32 s{d+1}, s{d+1}, 0xffff",
            f"s_mov_b32 s{d+2}, {nbytes}", f"s_mov_b32 s{d+3}, 0x00020000"]
def in_srd(d, p, nbytes):
    o = [] if d == p else [f"s_mov_b32 s{d}, s{p}"]
    return o + [f"s_and_b32 s{d+1}, s{p+1}, 0xffff", f"s_mov_b32 s{d+2}, {nbytes}", f"s_mov_b32 s{d+3}, 0x00020000"]

def publish(val, vt, so=sPFO):
    return [f"v_mov_b32 v{vt}, {val}", f"v_lshlrev_b32 v{vt+1}, 2, v0", f"v_and_b32 v{vt+1}, 127, v{vt+1}", "s_mov_b64 exec, s[100:101]",
            f"buffer_store_dword v{vt}, v{vt+1}, s[92:95], s{so} offen {SC}", "s_mov_b64 exec, -1"]
def pubmask(sw):
    return [f"s_cmp_eq_u32 s{sw}, 0", "s_cselect_b32 s100, -1, 0", "s_mov_b32 s101, 0"]

KT = {(0, 0): [0,2,1,3,4,6,8,5,7], (0, 1): [1,3,0,2,5,7,4,6,8], (1, 0): [8,6,7,5,4,2,0,3,1], (1, 1): [7,5,8,6,3,1,4,2,0]}
def ktab(par, tau): return sum(n << (4 * i) for i, n in enumerate(KT[(par, tau)]))

def pair_of(j, d_pi, d_spa, d_spb, d_mid, t0, t1):
    return [f"s_and_b32 s{t0}, s85, 3", f"s_lshl_b32 s{t0}, s{t0}, 1", f"s_lshr_b32 s{t1}, s{j}, 1", f"s_add_u32 s{d_spa}, s{t0}, s{t1}",
            f"s_lshr_b32 s{t0}, s85, 2", f"s_lshl_b32 s{t0}, s{t0}, 1", f"s_and_b32 s{t1}, s{j}, 1", f"s_add_u32 s{t0}, s{t0}, s{t1}",
            f"s_lshl_b32 s{t1}, s32, 2", f"s_add_u32 s{t1}, s{t1}, s{t0}",
            f"s_add_u32 s{t0}, s{t1}, s32",
            f"s_cmp_eq_u32 s{d_spa}, 7", f"s_cselect_b32 s{d_mid}, 1, 0", f"s_cselect_b32 s{d_spa}, s{t1}, s{d_spa}", f"s_cselect_b32 s{t0}, 4, s{t0}",
            f"s_mul_i32 s{d_pi}, s{d_spa}, 9", f"s_add_u32 s{d_pi}, s{d_pi}, s{t0}",
            f"s_cmp_eq_u32 s{d_spa}, 6", f"s_addc_u32 s{d_pi}, s{d_pi}, 0",
            f"s_mov_b32 s{d_spb}, s{d_spa}",
            f"s_cmp_eq_u32 s{d_spa}, 7", f"s_cselect_b32 s{d_pi}, 54, s{d_pi}", f"s_cselect_b32 s{d_spa}, 5, s{d_spa}", f"s_cselect_b32 s{d_spb}, 6, s{d_spb}"]

def g2_ids():
    o = [f"s_and_b32 s32, s{sT}, 1", f"s_bfe_u32 s79, s{sT}, 0x20001",
          "s_mul_i32 s85, s78, 43", "s_lshr_b32 s85, s85, 7", "s_and_b32 s85, s85, 7",
          "s_mul_i32 s34, s85, 3", "s_sub_u32 s86, s78, s34", "s_min_u32 s86, s86, 2",
          "s_and_b32 s84, s22, 3"]
    if LX == 1:
        o += ["s_lshl_b32 s34, s79, 1", "s_and_b32 s79, s85, 3", "s_lshr_b32 s85, s85, 2", "s_add_u32 s85, s85, s34"]
    if LX == 2:
        o += ["s_and_b32 s34, s79, 1", "s_lshl_b32 s34, s34, 2", "s_and_b32 s79, s79, 2", "s_and_b32 s35, s85, 1", "s_add_u32 s79, s79, s35",
              "s_lshr_b32 s85, s85, 1", "s_add_u32 s85, s85, s34"]
    return o
def g2_scal():
    o = g2_ids()
    o += pair_of(84, 3, 87, 88, 89, 34, 35)
    o += ["s_lshl_b32 s3, s3, 12", f"s_mul_i32 s34, s79, {18*262144}", "s_add_u32 s3, s3, s34",
          "s_and_b32 s34, s79, 1", "s_lshl_b32 s34, s34, 11", "s_add_u32 s60, s3, s34", "s_sub_u32 s61, s3, s34",
          "s_lshr_b32 s34, s84, 1", "s_lshl_b32 s34, s34, 2", "s_and_b32 s35, s84, 1", "s_add_u32 s35, s35, s34",
          f"s_mul_i32 s62, s79, {18*73728}", f"s_mul_i32 s34, s35, {8*1152}", "s_add_u32 s62, s62, s34",
          "s_mul_i32 s34, s86, 384", "s_add_u32 s62, s62, s34",
          "s_mul_i32 s41, s35, 3072", "s_add_u32 s41, s41, 16384",
          "s_lshr_b32 s34, s79, 1", "s_xor_b32 s34, s34, s84", "s_lshl_b32 s40, s34, 12",
          f"s_sub_u32 s12, s12, {BBIAS}", "s_subb_u32 s13, s13, 0", "s_and_b32 s13, s13, 0xffff", f"s_mov_b32 s14, {4608*1152 + BBIAS}", "s_mov_b32 s15, 0x00020000"]
    for lo in (1, 0):
        f = (lambda v: v & 0xffffffff) if lo else (lambda v: v >> 32)
        d = 54 if lo else 55
        o += ["s_cmp_lt_u32 s85, 4", f"s_mov_b32 s34, {f(ktab(0,1))}", f"s_cselect_b32 s34, {f(ktab(0,0))}, s34",
              f"s_mov_b32 s35, {f(ktab(1,1))}", f"s_cselect_b32 s35, {f(ktab(1,0))}, s35",
              "s_cmp_eq_u32 s32, 0", f"s_cselect_b32 s{d}, s34, s35"]
    return o

def b_off(i, t, d):
    return [f"v_and_b32 v{t}, 63, v0", f"v_add_u32 v{t}, {64*i}, v{t}",
            f"v_mul_u32_u24 v{t+1}, 2731, v{t}", f"v_lshrrev_b32 v{t+1}, 16, v{t+1}",
            f"v_mul_u32_u24 v{t+2}, 24, v{t+1}", f"v_sub_u32 v{t}, v{t}, v{t+2}",
            f"v_and_b32 v{t+2}, 2, v{t+1}", f"v_xor_b32 v{t}, v{t}, v{t+2}",
            f"v_bfe_u32 v{t+2}, v0, 6, 1", f"v_lshlrev_b32 v{t+2}, 2, v{t+2}", f"v_xor_b32 v{t}, v{t}, v{t+2}",
            f"v_mul_u32_u24 v{t+1}, 1152, v{t+1}",
            f"v_add_u32 v{t+1}, {BBIAS - 1024*i}, v{t+1}",
            f"v_lshl_add_u32 v{d}, v{t}, 4, v{t+1}"]
def a_off():
    return [f"v_and_b32 v{vA}, 63, v0", f"v_lshlrev_b32 v{vA}, 4, v{vA}"]

def st_k(st):
    i = st >> 1
    o = [f"s_bfe_u32 s3, s{54 + (i >> 3)}, {hex(0x40000 | (4 * (i & 7)))}", "s_lshl_b32 s3, s3, 1"]
    if st & 1: o.append("s_add_u32 s3, s3, 1")
    return o
def offA(): return ["s_lshl_b32 s21, s3, 18", "s_add_u32 s20, s21, s60", "s_add_u32 s21, s21, s61"]
def offB(): return ["s_mul_i32 s3, s3, 73728", "s_add_u32 s3, s3, s62"]
def st_off(st): return st_k(st) + offA() + offB()
def dmaA(buf):
    g = [[f"s_add_u32 m0, s40, {buf}", "s_nop 0", f"buffer_load_dwordx4 v{vA}, s[16:19], s20 offen {SC} lds"]]
    for j in range(1, 4): g.append([f"buffer_load_dwordx4 v{vA}, s[16:19], s{20 if j < 2 else 21} offen offset:{1024*j} {SC} lds"])
    return g
def dmaB(buf):
    g = []
    for hh in range(2):
        for j in range(3):
            o = []
            if j == 0: o = [f"s_add_u32 m0, s41, {buf}", "s_nop 0"] if hh == 0 else ["s_add_u32 m0, m0, 6144", f"s_add_u32 s3, s3, {16*1152}"]
            off = f" offset:{1024*j}" if j else ""
            o.append(f"buffer_load_dwordx4 v{vB[j]}, s[12:15], s3 offen{off} lds")
            g.append(o)
    return g
def dmaA_half(buf):
    return [["s_add_u32 s21, s21, 2048", "s_cmp_eq_u32 s33, 0", "s_cselect_b32 s20, s20, s21", "s_lshl_b32 s21, s33, 11", "s_add_u32 s21, s21, s40", f"s_add_u32 m0, s21, {buf}", "s_nop 0",
             f"buffer_load_dwordx4 v{vA}, s[16:19], s20 offen {SC} lds"],
            [f"buffer_load_dwordx4 v{vA}, s[16:19], s20 offen offset:1024 {SC} lds"]]
def dmaB_half(buf):
    g = [[f"s_mul_i32 s21, s33, {16*1152}", "s_add_u32 s3, s3, s21", "s_mul_i32 s21, s33, 6144", "s_add_u32 s21, s21, s41", f"s_add_u32 m0, s21, {buf}", "s_nop 0",
          f"buffer_load_dwordx4 v{vB[0]}, s[12:15], s3 offen lds"]]
    for j in (1, 2): g.append([f"buffer_load_dwordx4 v{vB[j]}, s[12:15], s3 offen offset:{1024*j} lds"])
    return g

def poll_addr(t, d):
    return [f"v_and_b32 v{t}, 15, v0", f"v_lshlrev_b32 v{t}, 2, v{t}",
            f"v_lshrrev_b64 v[{t+2}:{t+3}], v{t}, s[54:55]", f"v_and_b32 v{t}, 15, v{t+2}",
            f"v_mov_b32 v{t+1}, s87", f"v_mov_b32 v{t+2}, s88", f"v_and_b32 v{t+3}, 16, v0", f"v_cmp_eq_u32 vcc, 0, v{t+3}",
            f"v_cndmask_b32 v{t+1}, v{t+2}, v{t+1}, vcc",
            f"v_mad_u32_u24 v{t+1}, v{t}, 7, v{t+1}", f"v_lshrrev_b32 v{t+3}, 5, v{t+1}",
            f"s_mul_i32 s34, s79, {63*128}", f"v_lshl_add_u32 v{t+1}, v{t+1}, 7, s34",
            "s_lshr_b32 s34, s85, 2", f"v_xor_b32 v{t}, s34, v{t}", f"v_and_b32 v{t}, 1, v{t}", f"v_xor_b32 v{t+3}, s32, v{t+3}",
            f"v_mad_u32_u24 v{t}, v{t+3}, 3, v{t}",
            "s_cmp_eq_u32 s89, 1", "s_cselect_b64 vcc, -1, 0", f"v_cndmask_b32 v{t}, v{t}, 2, vcc",
            f"v_lshl_add_u32 v{d}, v{t}, 2, v{t+1}"]
def kv_addr(t, d):
    return [f"s_lshr_b32 s34, s78, 3", f"v_mov_b32 v{t}, s34", f"v_and_b32 v{t+1}, 16, v0", f"v_cmp_eq_u32 vcc, 0, v{t+1}", f"v_cndmask_b32 v{t}, 8, v{t}, vcc",
            f"v_and_b32 v{t+1}, 15, v0", f"v_mad_u32_u24 v{t}, v{t+1}, 9, v{t}",
            f"v_lshrrev_b32 v{t+1}, 2, v{t}", f"v_and_b32 v{t}, 3, v{t}",
            f"v_mul_u32_u24 v{t+2}, 57, v{t+1}", f"v_lshrrev_b32 v{t+2}, 9, v{t+2}", f"v_mul_u32_u24 v{t+3}, 9, v{t+2}", f"v_sub_u32 v{t+3}, v{t+1}, v{t+3}",
            f"s_movk_i32 s34, {sum(1 << l for l in GKL) * GK}", f"v_bfe_u32 v{t+3}, s34, v{t+3}, 1", f"v_add_u32 v{t+3}, v{t+3}, v{t}", f"v_cmp_eq_u32 vcc, 4, v{t+3}",
            f"v_add_u32 v{t+2}, 252, v{t+2}", f"v_mad_u32_u24 v{t}, v{t+1}, 7, v{t}", f"v_cndmask_b32 v{t}, v{t}, v{t+2}, vcc", f"v_lshlrev_b32 v{d}, 7, v{t}"]
def kv_issue():
    return ["s_mov_b64 exec, s[100:101]", f"buffer_load_dword v{vPL}, v{vPA}, s[92:95], 0 offen {SC}", "s_mov_b64 exec, -1"]
def kv_wait(a, tag, t):
    a("s_cmp_eq_u32 s100, 0")
    a(f"s_cbranch_scc1 {tag}_ok")
    a(f"s_movk_i32 s{sCNT}, 0x4000")
    a.label(f"{tag}_l")
    a(f"v_and_b32 v{t}, {1 << I_KV}, v{vPL}")
    a(f"v_cmp_ne_u32 vcc, 0, v{t}")
    a("s_nop 1")
    a("s_cmp_eq_u32 vcc_lo, -1")
    a(f"s_cbranch_scc1 {tag}_ok")
    a("s_sleep 8")
    a("s_andn2_b64 exec, s[100:101], vcc")
    a(f"buffer_load_dword v{vPL}, v{vPA}, s[92:95], 0 offen {SC}")
    a("s_mov_b64 exec, -1")
    a("s_waitcnt vmcnt(0)")
    a(f"s_sub_u32 s{sCNT}, s{sCNT}, 1")
    a(f"s_cbranch_scc0 {tag}_l")
    a.label(f"{tag}_ok")
CS = 4128; PL = 9 * CS + 32
P0 = 0; PB = 2 * PL; X9 = PB + 32768 + 3840; P2 = X9 + 4608
sRD = 76
def poll_init(t, d):
    return ["s_cmp_eq_u32 s87, s88", f"s_cselect_b32 s{sRD}, 0xffff0000, 0", f"v_and_b32 v{t}, 31, v0", f"v_bfe_i32 v{d}, s{sRD}, v{t}, 1"]
def poll_issue(want=0x1ff):
    return [f"s_andn2_b32 exec_lo, {hex(want | want << 16)}, s{sRD}", "s_mov_b32 exec_hi, 0", f"buffer_load_dword v{vPL}, v{vPA}, s[92:95], 0 offen {SC}", "s_mov_b64 exec, -1"]
def poll_eval(t):
    return [f"v_bfe_u32 v{t}, v{vPA}, 2, 3", f"v_bfe_u32 v{t}, v{vPL}, v{t}, 1", f"v_cmp_ne_u32 vcc, 0, v{t}", "s_nop 1", f"s_mov_b32 s{sRD}, vcc_lo", "s_lshr_b32 s66, vcc_lo, 16", "s_and_b32 s66, s66, vcc_lo"]
```
